```python
import torch

def _softmax(x, axis=-1):
    return torch.softmax(x, dim=axis)
def _gelu(x):
    return torch.nn.functional.gelu(x, approximate="tanh")
def _silu(x):
    return torch.nn.functional.silu(x)
def _sigmoid(x):
    return torch.sigmoid(x)
def _layernorm(x, axis=-1, eps=1e-5):
    m = x.mean(dim=axis, keepdim=True)
    v = x.var(dim=axis, keepdim=True, unbiased=False)
    return (x - m) / torch.sqrt(v + eps)
def _scatter_add(tgt, idx, src, axis=0):
    return tgt.clone().index_add_(axis, idx, src)
def _segment_sum(src, seg, n):
    out = torch.zeros((n,) + src.shape[1:], dtype=src.dtype)
    return out.index_add_(0, seg, src)
def _pad(x, pw):
    flat = tuple(v for pair in reversed(pw) for v in pair)
    return torch.nn.functional.pad(x, flat)

kernel_name = 'sequential_preLN__gqa_block_cached__glu_gated_geglu__decode'

def setup_inputs():

    _w = (lambda a: (lambda t: t.to(torch.bfloat16) if t.is_floating_point() else t)(torch.as_tensor(a)))
    def _A_setup():
        B, Sq, D = 1, 1, 1024
        Hq, Hkv, Sk, Dh = 32, 4, 65536, 128
        assert Hq % Hkv == 0, (Hq, Hkv)
        return {
            "x": _w((lambda *s: torch.randn(*s, dtype=torch.bfloat16) * 0.05)(B, Sq, D)),
            "k_cache": _w((lambda *s: torch.randn(*s, dtype=torch.bfloat16) * 3.2)(B, Hkv, Sk, Dh)),
            "v_cache": _w((lambda *s: torch.randn(*s, dtype=torch.bfloat16) * 1.6)(B, Hkv, Sk, Dh)),
            "wq": _w((lambda *s: torch.randn(*s, dtype=torch.bfloat16) * 3.2)(D, Hq * Dh) * (D ** -0.5)),
            "wo": _w((lambda *s: torch.randn(*s, dtype=torch.bfloat16) * 1.6)(Hq * Dh, D) * ((Hq * Dh) ** -0.5)),
        }
    _A_in = _A_setup()

    def _B_setup():
        B, S, Dm, Df = 1, 1, 1024, 3584
        return {
            "x": _w((lambda *s: torch.randn(*s, dtype=torch.bfloat16) * 0.05)(B, S, Dm)),
            "w_gate": _w((lambda *s: torch.randn(*s, dtype=torch.bfloat16) * 1.6)(Dm, Df) * (Dm ** -0.5)),
            "w_up": _w((lambda *s: torch.randn(*s, dtype=torch.bfloat16) * 1.6)(Dm, Df) * (Dm ** -0.5)),
            "w_down": _w((lambda *s: torch.randn(*s, dtype=torch.bfloat16) * 1.6)(Df, Dm) * (Df ** -0.5)),
        }
    _B_in = _B_setup()

    return {
        "A_x": _A_in["x"],
        "A_k_cache": _A_in["k_cache"],
        "A_v_cache": _A_in["v_cache"],
        "A_wq": _A_in["wq"],
        "A_wo": _A_in["wo"],
        "B_x": _B_in["x"],
        "B_w_gate": _B_in["w_gate"],
        "B_w_up": _B_in["w_up"],
        "B_w_down": _B_in["w_down"],
    }

def reference(A_x, A_k_cache, A_v_cache, A_wq, A_wo, B_x, B_w_gate, B_w_up, B_w_down):
    def _A_ref(x, k_cache, v_cache, wq, wo):
        B, Sq, D = x.shape
        Hq, Dh = 32, 128
        Hkv = k_cache.shape[1]
        rep = Hq // Hkv
        q = (lambda x, *d: x.permute(*d))((x @ wq).reshape(B, Sq, Hq, Dh), 0, 2, 1, 3)
        k = (lambda x, n, axis: torch.repeat_interleave(x, n, dim=axis))(k_cache, rep, axis=1)
        v = (lambda x, n, axis: torch.repeat_interleave(x, n, dim=axis))(v_cache, rep, axis=1)
        scores = torch.einsum("bhqd,bhkd->bhqk", q, k) * (Dh ** -0.5)
        p = _softmax(scores, axis=-1)
        o = torch.einsum("bhqk,bhkd->bhqd", p, v)
        return (lambda x, *d: x.permute(*d))(o, 0, 2, 1, 3).reshape(B, Sq, Hq * Dh) @ wo

    def _B_ref(x, w_gate, w_up, w_down):
        g = torch.einsum("bsd,df->bsf", x, w_gate)
        u = torch.einsum("bsd,df->bsf", x, w_up)
        h = _gelu(g) * u
        return torch.einsum("bsf,fd->bsd", h, w_down)

    x = A_x
    h = x + _A_ref(_layernorm(x, axis=-1), A_k_cache, A_v_cache, A_wq, A_wo)
    h2 = h + _B_ref(_layernorm(h, axis=-1), B_w_gate, B_w_up, B_w_down)
    return h2
```

```python
import re

TRANS = ("v_exp_f32", "v_log_f32", "v_rcp_f32", "v_rsq_f32", "v_sqrt_f32", "v_sin_f32", "v_cos_f32")


def _regs(tok):
    t = tok.strip()
    t = t.lstrip("-")
    if t.startswith("abs(") and t.endswith(")"):
        t = t[4:-1]
    if t.startswith("|") and t.endswith("|"):
        t = t[1:-1]
    m = re.fullmatch(r"([vsa])(\d+)", t)
    if m:
        return {(m.group(1), int(m.group(2)))}
    m = re.fullmatch(r"([vsa])\[(\d+):(\d+)\]", t)
    if m:
        return {(m.group(1), i) for i in range(int(m.group(2)), int(m.group(3)) + 1)}
    if t == "vcc":
        return {("s", 106), ("s", 107)}
    if t == "vcc_lo":
        return {("s", 106)}
    if t == "vcc_hi":
        return {("s", 107)}
    if t == "exec":
        return {("s", 126), ("s", 127)}
    if t == "m0":
        return {("s", 124)}
    return set()


def _split(text):
    text = text.split(";")[0].strip()
    parts = text.split(None, 1)
    mn = parts[0]
    rest = parts[1] if len(parts) > 1 else ""
    ops = []
    depth = 0
    cur = ""
    for ch in rest:
        if ch in "[(":
            depth += 1
        if ch in "])":
            depth -= 1
        if ch == "," and depth == 0:
            ops.append(cur.strip())
            cur = ""
        else:
            cur += ch
    if cur.strip():
        ops.append(cur.strip())
    mods = ""
    if ops:
        last = ops[-1].split(None, 1)
        ops[-1] = last[0]
        mods = last[1] if len(last) > 1 else ""
    return mn, ops, mods


class Ins:
    pass


def analyze(text):
    mn, ops, mods = _split(text)
    I = Ins()
    I.mn = mn
    I.text = text
    I.w = set()
    I.r = set()
    I.srcc = set()
    I.ab = set()
    I.kind = "other"
    I.dpp = ("_dpp" in mn) or ("row_" in mods) or ("quad_perm" in mods)
    R = [_regs(o) for o in ops]
    base = mn.replace("_e32", "").replace("_e64", "").replace("_dpp", "").replace("_sdwa", "")
    I.base = base
    if base.startswith("v_mfma"):
        I.kind = "mfma"
        I.w = R[0]
        I.ab = R[1] | R[2]
        I.srcc = R[3]
        I.r = I.ab | I.srcc
        I.passes = 4 if "16x16x32" in base else (8 if "32x32x16" in base else 16)
    elif base.startswith("v_"):
        I.kind = "valu"
        if base.startswith("v_permlane") and "swap" in base:
            I.w = R[0] | R[1]
            I.r = R[0] | R[1]
        elif base.startswith("v_cmp"):
            I.w = R[0]
            I.r = set().union(*R[1:])
        elif base in ("v_add_co_u32", "v_sub_co_u32", "v_addc_co_u32", "v_subb_co_u32"):
            I.w = R[0] | R[1]
            I.r = set().union(*R[2:])
        else:
            I.w = R[0]
            I.r = set().union(*R[1:]) if len(R) > 1 else set()
            if base in ("v_fmac_f32", "v_dot2c_f32_bf16") or I.dpp:
                I.r |= R[0]
        if base.startswith("v_dot"):
            I.kind = "dot"
            if base == "v_dot2c_f32_bf16":
                I.srcc = R[0]
                I.ab = R[1] | R[2]
            else:
                I.srcc = R[3]
                I.ab = R[1] | R[2]
    elif base.startswith(("buffer_load", "global_load")):
        I.kind = "vmem"
        if "lds" in mods.split():
            I.r = set().union(*R) | {("s", 124)}
        else:
            I.w = R[0]
            I.r = set().union(*R[1:])
    elif base.startswith(("buffer_store", "global_store", "buffer_atomic", "global_atomic")):
        I.kind = "vmem"
        I.r = set().union(*R)
        I.wide = ("x4" in base or "x3" in base)
        if base.startswith("buffer_store"):
            I.data = R[0]
        elif base.startswith("global_store"):
            I.data = R[1]
        else:
            I.data = set()
            if "sc0" in mods.split():
                I.w = R[0]
    elif base.startswith("ds_"):
        I.kind = "ds"
        if base.startswith(("ds_read", "ds_bpermute", "ds_permute", "ds_swizzle")) or "_rtn" in base:
            I.w = R[0]
            I.r = set().union(*R[1:])
        else:
            I.r = set().union(*R)
    elif base.startswith("s_"):
        I.kind = "salu"
        if base.startswith(("s_cmp", "s_cbranch", "s_branch", "s_waitcnt", "s_nop", "s_barrier", "s_sleep",
                            "s_setprio", "s_endpgm")):
            I.r = set().union(*R) if R else set()
            if base.startswith("s_cbranch_vcc"):
                I.r |= {("s", 106), ("s", 107)}
        else:
            I.w = R[0] if R else set()
            I.r = set().union(*R[1:]) if len(R) > 1 else set()
            if "saveexec" in base:
                I.w = I.w | {("s", 126), ("s", 127)}
    return I


def need(P, C):
    n = 0
    pv = {x for x in P.w if x[0] in "va"}
    ps = {x for x in P.w if x[0] == "s"}
    cvr = {x for x in C.r if x[0] in "va"}
    cvw = {x for x in C.w if x[0] in "va"}
    csr = {x for x in C.r if x[0] == "s"}
    if P.kind in ("valu", "dot"):
        if pv & cvr:
            if C.dpp:
                n = max(n, 2)
            if C.base.startswith("v_permlane"):
                n = max(n, 2)
            if C.base in ("v_readfirstlane_b32", "v_readlane_b32"):
                n = max(n, 1)
            if C.kind == "mfma":
                n = max(n, 2)
            if P.base in TRANS and C.kind in ("valu", "dot", "mfma", "vmem", "ds"):
                n = max(n, 1)
        if ps & csr:
            if C.kind in ("valu", "dot", "mfma"):
                n = max(n, 4 if C.base in ("v_readlane_b32", "v_writelane_b32") else 2)
            if C.kind == "vmem":
                n = max(n, 5)
            if C.kind == "salu":
                n = max(n, 5 if C.base.startswith("s_cbranch_vcc") else 1)
    if P.kind == "dot":
        if C.base == P.base:
            if pv & {x for x in C.ab}:
                n = max(n, 3)
            if (pv & cvw) and not (pv & C.srcc):
                n = max(n, 3)
        elif pv & (cvr | cvw):
            n = max(n, 3)
    if P.kind == "mfma":
        tbl = {4: (6, 8, 3), 8: (10, 12, 7), 16: (18, 20, 15)}[P.passes]
        if C.kind == "mfma":
            if pv & C.srcc:
                if not (C.srcc == pv and C.passes == P.passes):
                    n = max(n, tbl[0])
            if pv & C.ab:
                n = max(n, tbl[1])
            if (pv & cvw) and not (C.srcc == pv):
                n = max(n, tbl[1])
        else:
            if pv & (cvr | cvw):
                n = max(n, tbl[1])
            if C.kind in ("valu", "dot") and (P.srcc & cvw):
                n = max(n, tbl[2])
    if P.kind == "vmem" and getattr(P, "wide", False):
        if P.data & cvw:
            n = max(n, 2)
    if P.kind == "salu" and (("s", 124) in P.w) and (("s", 124) in C.r) and C.kind in ("vmem", "ds"):
        n = max(n, 1)
    return n


def maxneed(P):
    if P.kind == "mfma":
        return {4: 8, 8: 12, 16: 20}[P.passes]
    if P.kind in ("valu", "dot"):
        if any(x[0] == "s" for x in P.w):
            return 5
        return 3 if P.kind == "dot" else 2
    if P.kind == "vmem" and getattr(P, "wide", False):
        return 2
    if P.kind == "salu" and ("s", 124) in P.w:
        return 1
    return 0


class Asm:
    def __init__(self):
        self.lines = []
        self.hist = []
        self.vm = []
        self.nlabel = 0

    def raw(self, s):
        self.lines.append(s)

    def comment(self, s):
        self.lines.append("    ; " + s)

    def _advance(self, k):
        self.hist = [(i, d + k) for (i, d) in self.hist if d + k < 24]

    def nop(self, n):
        while n > 0:
            k = min(n, 16)
            self.lines.append(f"    s_nop {k-1}")
            self._advance(k)
            n -= k

    def __call__(self, text, tok=None):
        I = analyze(text)
        req = 0
        for (P, d) in self.hist:
            req = max(req, need(P, I) - d)
        if I.base.startswith(("s_cbranch", "s_branch")):
            for (P, d) in self.hist:
                req = max(req, maxneed(P) - d - 1)
        if req > 0:
            self.nop(req)
        self.lines.append("    " + text)
        if I.base == "s_nop":
            self._advance(int(text.split()[1]) + 1)
        else:
            self._advance(1)
        self.hist.append((I, 0))
        if I.kind == "vmem":
            self.vm.append(tok)
        if I.base == "s_waitcnt":
            m = re.search(r"vmcnt\((\d+)\)", text)
            if m:
                n = int(m.group(1))
                if n < len(self.vm):
                    self.vm = self.vm[len(self.vm) - n:] if n > 0 else []

    def flush(self):
        req = 0
        for (P, d) in self.hist:
            req = max(req, maxneed(P) - d)
        if req > 0:
            self.nop(req)

    def label(self, name):
        self.flush()
        self.lines.append(f"{name}:")

    def newlabel(self, stem):
        self.nlabel += 1
        return f"L_{stem}_{self.nlabel}"

    def wait_vm(self, tok):
        idx = [i for i, t in enumerate(self.vm) if t == tok]
        if not idx:
            return
        n = len(self.vm) - 1 - idx[-1]
        assert n <= 63, n
        self(f"s_waitcnt vmcnt({n})")

    def text(self):
        return "\n".join(self.lines) + "\n"
```

```python
import sys
from asmlib import Asm

NAME = "sequential_preLN__gqa_block_cached__glu_gated_geglu__decode"

HEADER = """; Kernarg layout for this problem (96 bytes, ptrs only, base s[0:1]):
"""

STAMP_NAMES = ["start", "qpub", "qgath", "kiss", "qrdy", "qk", "s_last", "s_glob", "viss", "prdy", "pv", "apub",
               "hopA", "h", "hopC", "end"]

WS_EPOCH = 0x0
WS_Q = 0x1000
WS_S = 0x8000
WS_H = 0x10000
WS_A = 0x100000
WS_B = 0x200000
WS_D = 0x300000
WS_STAMP = 0x400000
WS_SIZE = 0x500000

L_CNTQ, L_FLAGQ, L_CNTS, L_FLAGS = 0, 4, 8, 12
L_Q = 0x200
L_SP = 0xC00
L_SG = 0x1400
L_OP = 0x1800
L_HN = 0x1900
L_GP = 0x2200
L_QPART = 0x2C00
L_O = 0x4000
LDS_BYTES = 0x4000 + 8 * 4352

sW = 3
sX_, sA, sJ, sRI, sG, sC = 4, 5, 6, 7, 8, 9
sT16, sT10 = 10, 11
sPLO, sPHI = 12, 13
sM10, sM16 = 14, 15
rX, rK, rV, rW1, rW2, rOUT, rWS = 40, 44, 48, 52, 56, 68, 72
sTO = 76
sKB = 77
sE = 78
sLOG2E = 79
sSTAMP = 80
sT0, sT1, sT2, sT3 = 96, 97, 98, 99
sP0, sP1 = 100, 101
sSCALE, sLAST, sW1B, sROLE, sPUB = 60, 61, 62, 63, 64

vL, vN, vGq, vOK, vOV, vM, vH, vZ = 0, 1, 2, 3, 4, 5, 6, 7
vT = 8
vQ = 16
vS = 32
vW = 64
vR = 128


def srd(r):
    return f"s[{r}:{r+3}]"


def v4(r):
    return f"v[{r}:{r+3}]"


def v2(r):
    return f"v[{r}:{r+1}]"


DPPALL = "row_mask:0xf bank_mask:0xf"


def gen(opt):
    A = Asm()
    stamps = opt.get("stamps", False)
    nt = " nt" if opt.get("nt", True) else ""
    ntw = " nt" if opt.get("ntw", True) else ""
    D = opt.get("D", 3)
    DC = opt.get("DC", 6)

    def stamp(k):
        if not stamps:
            return
        A(f"s_memrealtime s[{sP0}:{sP1}]")
        A("s_waitcnt lgkmcnt(0)")
        A(f"s_mov_b32 s{sSTAMP+k}, s{sP0}")

    def mk_srd(r, ptr, size):
        A(f"s_mov_b32 s{r}, s{ptr}")
        A(f"s_and_b32 s{r+1}, s{ptr+1}, 0xffff")
        A(f"s_mov_b32 s{r+2}, {hex(size)}")
        A(f"s_mov_b32 s{r+3}, 0x20000")

    def rbf(dst, src):
        A(f"v_cvt_pk_bf16_f32 v{dst}, v{src}, v{src}")
        A(f"v_and_b32 v{dst}, s{sM16}, v{dst}")

    def row_red(op, x, rors):
        for r in rors:
            A(f"{op}_dpp v{x}, v{x}, v{x} row_ror:{r} {DPPALL}")

    def xrow_red(op, x, t):
        A(f"v_mov_b32 v{t}, v{x}")
        A(f"v_permlane16_swap_b32 v{t}, v{x}")
        A(f"{op} v{x}, v{x}, v{t}")
        A(f"v_mov_b32 v{t}, v{x}")
        A(f"v_permlane32_swap_b32 v{t}, v{x}")
        A(f"{op} v{x}, v{x}, v{t}")

    def wave_sum(x, t):
        row_red("v_add_f32", x, (8, 4, 2, 1))
        xrow_red("v_add_f32", x, t)

    def ln_stats(vals, t0, t1, t2, out_mb, out_r):
        A(f"v_add_f32 v{t0}, v{vals[0]}, v{vals[1]}")
        A(f"v_add_f32 v{t1}, v{vals[2]}, v{vals[3]}")
        for i in range(4, 16, 2):
            A(f"v_add_f32 v{t0}, v{t0}, v{vals[i]}")
            A(f"v_add_f32 v{t1}, v{t1}, v{vals[i+1]}")
        A(f"v_add_f32 v{t0}, v{t0}, v{t1}")
        wave_sum(t0, t1)
        A(f"v_mul_f32 v{t0}, 0x3a800000, v{t0}")
        A(f"v_sub_f32 v{t1}, v{vals[0]}, v{t0}")
        A(f"v_mul_f32 v{t2}, v{t1}, v{t1}")
        for i in range(1, 16):
            A(f"v_sub_f32 v{t1}, v{vals[i]}, v{t0}")
            A(f"v_fmac_f32 v{t2}, v{t1}, v{t1}")
        wave_sum(t2, t1)
        A(f"v_mul_f32 v{t2}, 0x3a800000, v{t2}")
        rbf(out_mb, t0)
        rbf(t2, t2)
        A(f"v_add_f32 v{t2}, 0x3727c5ac, v{t2}")
        rbf(t2, t2)
        A(f"v_sqrt_f32 v{t2}, v{t2}")
        rbf(t2, t2)
        A(f"v_rcp_f32 v{out_r}, v{t2}")

    def ln_apply_pair(dst, a, b, mb, r):
        A(f"v_sub_f32 v{a}, v{a}, v{mb}")
        A(f"v_sub_f32 v{b}, v{b}, v{mb}")
        A(f"v_cvt_pk_bf16_f32 v{b}, v{a}, v{b}")
        A(f"v_lshlrev_b32 v{a}, 16, v{b}")
        A(f"v_and_b32 v{b}, s{sM16}, v{b}")
        A(f"v_mul_f32 v{a}, v{a}, v{r}")
        A(f"v_mul_f32 v{b}, v{b}, v{r}")
        A(f"v_cvt_pk_bf16_f32 v{dst}, v{a}, v{b}")

    def unpack(dlo, dhi, src):
        A(f"v_lshlrev_b32 v{dlo}, 16, v{src}")
        A(f"v_and_b32 v{dhi}, s{sM16}, v{src}")

    def perm_pairs(dst, src, nrows):
        for p in range(nrows // 2):
            for t in range(4):
                a = src + (2 * p) * 4 + t
                b = src + (2 * p + 1) * 4 + t
                A(f"v_perm_b32 v{dst+p*8+2*t}, v{b}, v{a}, s{sPLO}")
                A(f"v_perm_b32 v{dst+p*8+2*t+1}, v{b}, v{a}, s{sPHI}")

    def dots(acc, wp, xp, npairs):
        for p in range(npairs):
            for c in range(8):
                src = "0" if p == 0 else f"v{acc+c}"
                A(f"v_dot2_f32_bf16 v{acc+c}, v{wp+p*8+c}, v{xp+p}, {src}")

    def red8_rows(acc):
        for c in range(4):
            A(f"v_permlane32_swap_b32 v{acc+c}, v{acc+c+4}")
        for c in range(4):
            A(f"v_add_f32 v{acc+c}, v{acc+c}, v{acc+c+4}")
        for c in range(2):
            A(f"v_permlane16_swap_b32 v{acc+c}, v{acc+c+2}")
        for c in range(2):
            A(f"v_add_f32 v{acc+c}, v{acc+c}, v{acc+c+2}")

    def tag10(r):
        A(f"v_add_u32 v{r}, 0x200, v{r}")
        A(f"v_and_b32 v{r}, s{sM10}, v{r}")
        A(f"v_or_b32 v{r}, s{sT10}, v{r}")

    def lds_wait(off):
        lp = A.newlabel("ldsw")
        dn = A.newlabel("ldsd")
        A.label(lp)
        A(f"ds_read_b32 v{vT}, v{vZ} offset:{off}")
        A("s_waitcnt lgkmcnt(0)")
        A(f"v_readfirstlane_b32 s{sT0}, v{vT}")
        A(f"s_cmp_lg_u32 s{sT0}, 0")
        A(f"s_cbranch_scc1 {dn}")
        A("s_sleep 2")
        A(f"s_sub_u32 s{sTO}, s{sTO}, 1")
        A(f"s_cmp_lg_u32 s{sTO}, 0")
        A(f"s_cbranch_scc1 {lp}")
        A("s_branch L_end")
        A.label(dn)

    def lds_arrive(off, dst_s):
        A(f"v_mov_b32 v{vT+1}, 1")
        A("s_mov_b64 exec, 1")
        A(f"ds_add_rtn_u32 v{vT}, v{vZ}, v{vT+1} offset:{off}")
        A("s_waitcnt lgkmcnt(0)")
        A(f"v_readfirstlane_b32 s{dst_s}, v{vT}")
        A("s_mov_b64 exec, -1")

    def lds_setflag(off):
        A(f"v_mov_b32 v{vT+1}, 1")
        A(f"ds_write_b32 v{vZ}, v{vT+1} offset:{off}")

    def poll(dst, voff, soffs, tagreg, mask, t, last_exec=None, sleep=0):
        n = len(soffs)
        lp = A.newlabel("poll")
        dn = A.newlabel("polld")
        A(f"v_mov_b32 v{t+2*n}, s{tagreg}")
        if last_exec is not None:
            for c in range(4):
                A(f"v_mov_b32 v{dst+4*(n-1)+c}, s{tagreg}")
        A.label(lp)
        for i in range(n):
            A(f"s_mov_b32 s{sT0}, {hex(soffs[i])}")
            if last_exec is not None and i == n - 1:
                A(f"s_mov_b32 exec_hi, {hex(last_exec)}")
            A(f"buffer_load_dwordx4 {v4(dst+4*i)}, v{voff}, {srd(rWS)}, s{sT0} offen sc1")
            if last_exec is not None and i == n - 1:
                A("s_mov_b64 exec, -1")
        A("s_waitcnt vmcnt(0)")
        for i in range(2 * n):
            A(f"v_bitop3_b32 v{t+i}, v{dst+2*i}, v{dst+2*i+1}, v{t+2*n} bitop3:0x7e")
        regs = [t + i for i in range(2 * n)]
        while len(regs) > 1:
            nxt = []
            k = 0
            while k < len(regs):
                grp = regs[k:k + 3]
                if len(grp) == 3:
                    A(f"v_or3_b32 v{grp[0]}, v{grp[0]}, v{grp[1]}, v{grp[2]}")
                elif len(grp) == 2:
                    A(f"v_or_b32 v{grp[0]}, v{grp[0]}, v{grp[1]}")
                nxt.append(grp[0])
                k += 3
            regs = nxt
        A(f"v_and_b32 v{t}, {hex(mask)}, v{t}")
        A(f"v_cmp_ne_u32 s[{sP0}:{sP1}], 0, v{t}")
        A(f"s_cmp_eq_u64 s[{sP0}:{sP1}], 0")
        A(f"s_cbranch_scc1 {dn}")
        if sleep:
            A(f"s_sleep {sleep}")
        A(f"s_sub_u32 s{sTO}, s{sTO}, 1")
        A(f"s_cmp_lg_u32 s{sTO}, 0")
        A(f"s_cbranch_scc1 {lp}")
        A("s_branch L_end")
        A.label(dn)

    def throttle(d):
        if d and len(A.vm) >= d:
            A(f"s_waitcnt vmcnt({d-1})")

    def tok(item):
        k = item[0]
        if k == "k":
            return f"k{2*item[1]+item[2]}"
        if k == "v":
            return f"v{item[1]}"
        return k

    def issue(item, d):
        kind = item[0]
        if kind == "k":
            _, b, t, sx, h = item
            A(f"s_add_u32 s{sT0}, s{sKB}, {hex((b<<21) + t*4096)}")
            throttle(d)
            r = vR + (2 * b + t) * 16 + 8 * sx + 4 * h
            A(f"buffer_load_dwordx4 {v4(r)}, v{vOK}, {srd(rK)}, s{sT0} offen offset:{sx*512+h*128}{nt}", tok(item))
        elif kind == "v":
            _, b, i = item
            A(f"s_add_u32 s{sT0}, s{sKB}, {hex((b<<21) + (i//4)*4096)}")
            throttle(d)
            r = vR + b * 32 + i * 4
            A(f"buffer_load_dwordx4 {v4(r)}, v{vOV}, {srd(rV)}, s{sT0} offen offset:{(i%4)*1024}{nt}", tok(item))
        elif kind == "w":
            _, i, sreg, rs = item
            throttle(d)
            A(f"buffer_load_dwordx4 {v4(vW+4*i)}, v{vH}, {srd(rs)}, s{sreg} offen{ntw}", "w")

    A.raw(HEADER.rstrip("\n"))
    A.raw(f"; @launch grid=(256,1,1) block=(512,1,1) lds={LDS_BYTES}")
    A.raw('.amdgcn_target "amdgcn-amd-amdhsa--gfx950"')
    A.raw(".text")
    A.raw(f".globl {NAME}_kernel")
    A.raw(".p2align 8")
    A.raw(f".type {NAME}_kernel,@function")
    A.raw(f"{NAME}_kernel:")
    A("s_cmp_ge_u32 s2, 256")
    A("s_cbranch_scc1 L_exit")
    A("s_load_dwordx16 s[16:31], s[0:1], 0")
    A("s_load_dwordx8 s[32:39], s[0:1], 64")
    if stamps:
        A(f"s_memrealtime s[{sP0}:{sP1}]")
        for k in range(16):
            A(f"s_mov_b32 s{sSTAMP+k}, 0")
    A(f"v_lshrrev_b32 v{vT}, 6, v0")
    A(f"v_and_b32 v{vL}, 63, v0")
    A(f"v_readfirstlane_b32 s{sW}, v{vT}")
    A(f"v_mov_b32 v{vZ}, 0")
    A(f"v_and_b32 v{vN}, 15, v{vL}")
    A(f"v_lshrrev_b32 v{vGq}, 4, v{vL}")
    for i in range(4):
        A(f"v_mov_b32 v{vT+i}, 0")
    A(f"s_cmp_lg_u32 s{sW}, 0")
    A("s_cbranch_scc1 L_nozero")
    A(f"ds_write_b128 v{vZ}, {v4(vT)}")
    A.label("L_nozero")
    A(f"s_and_b32 s{sX_}, s2, 7")
    A(f"s_lshr_b32 s{sA}, s2, 3")
    A(f"s_lshl_b32 s{sJ}, s{sX_}, 5")
    A(f"s_add_u32 s{sJ}, s{sJ}, s{sA}")
    A(f"s_lshr_b32 s{sG}, s{sJ}, 6")
    A(f"s_and_b32 s{sC}, s{sJ}, 63")
    A(f"s_mov_b32 s{sPLO}, 0x05040100")
    A(f"s_mov_b32 s{sPHI}, 0x07060302")
    A(f"s_mov_b32 s{sM10}, 0xfffffc00")
    A(f"s_mov_b32 s{sM16}, 0xffff0000")
    A(f"s_mov_b32 s{sTO}, 200000")
    A(f"s_mov_b32 s{sLOG2E}, 0x3fb8aa3b")
    A(f"s_mov_b32 s{sSCALE}, 0x3db504f3")
    A(f"s_lshl_b32 s{sKB}, s{sG}, 24")
    A(f"s_lshl_b32 s{sT0}, s{sC}, 2")
    A(f"s_and_b32 s{sT1}, s{sW}, 3")
    A(f"s_add_u32 s{sT0}, s{sT0}, s{sT1}")
    A(f"s_lshl_b32 s{sT0}, s{sT0}, 13")
    A(f"s_add_u32 s{sKB}, s{sKB}, s{sT0}")
    A(f"s_lshr_b32 s{sT1}, s{sW}, 2")
    A(f"s_lshl_b32 s{sT1}, s{sT1}, 23")
    A(f"s_add_u32 s{sKB}, s{sKB}, s{sT1}")
    A(f"v_and_b32 v{vT+4}, 3, v{vN}")
    A(f"v_lshlrev_b32 v{vT+4}, 10, v{vT+4}")
    A(f"v_bfe_u32 v{vT+5}, v{vN}, 2, 1")
    A(f"v_lshl_add_u32 v{vT+4}, v{vT+5}, 8, v{vT+4}")
    A(f"v_lshrrev_b32 v{vT+5}, 3, v{vN}")
    A(f"v_lshl_add_u32 v{vT+4}, v{vT+5}, 6, v{vT+4}")
    A(f"v_lshl_add_u32 v{vOK}, v{vGq}, 4, v{vT+4}")
    A(f"v_lshlrev_b32 v{vOV}, 4, v{vL}")
    A("s_waitcnt lgkmcnt(0)")
    if stamps:
        A(f"s_mov_b32 s{sSTAMP}, s{sP0}")
    A(f"s_load_dword s{sE}, s[38:39], {WS_EPOCH}")
    mk_srd(rK, 18, 0x4000000)
    mk_srd(rX, 16, 2048)
    mk_srd(rV, 20, 0x4000000)
    mk_srd(rOUT, 34, 2048)
    mk_srd(rWS, 38, WS_SIZE)
    A("s_barrier")
    A(f"s_cmp_ge_u32 s{sA}, 16")
    A("s_cbranch_scc1 L_roleM")

    k_items = [("k", b, t, sx, h) for b in range(4) for t in range(2) for sx in range(2) for h in range(2)]
    v_items = [("v", b, i) for b in range(4) for i in range(8)]

    def tags():
        A(f"s_add_u32 s{sE}, s{sE}, 1")
        A(f"s_and_b32 s{sT16}, s{sE}, 0xffff")
        A(f"s_and_b32 s{sT10}, s{sE}, 0x3ff")

    def q_gather():
        X = vS
        A(f"s_lshl_b32 s{sT1}, s{sG}, 12")
        A(f"v_add_u32 v{vT}, s{sT1}, v{vOV}")
        poll(X, vT, [WS_Q + i * 1024 for i in range(4)], sT16, 0xffff, X + 16, sleep=opt.get("sleepq", 8))
        A(f"v_lshrrev_b32 v{vT+1}, 5, v{vL}")
        A(f"v_mul_u32_u24 v{vT+1}, 272, v{vT+1}")
        A(f"v_and_b32 v{vT+2}, 31, v{vL}")
        A(f"v_lshl_add_u32 v{vT+1}, v{vT+2}, 3, v{vT+1}")
        for i in range(4):
            A(f"v_perm_b32 v{X+16+2*i}, v{X+4*i+1}, v{X+4*i}, s{sPHI}")
            A(f"v_perm_b32 v{X+16+2*i+1}, v{X+4*i+3}, v{X+4*i+2}, s{sPHI}")
            A(f"ds_write_b64 v{vT+1}, {v2(X+16+2*i)} offset:{L_Q+i*2*272}")
        A("s_waitcnt lgkmcnt(0)")
        lds_setflag(L_FLAGQ)
        stamp(2)

    def stream_with_poll(items, pos, pollfn, name):
        for it in items[:pos]:
            issue(it, D)
        sv = list(A.vm)
        A(f"s_cmp_lg_u32 s{sW}, 0")
        A(f"s_cbranch_scc1 L_{name}_np")
        pollfn()
        A.vm = []
        for it in items[pos:]:
            issue(it, DC)
        A(f"s_branch L_{name}_done")
        A.label(f"L_{name}_np")
        A.vm = sv
        for it in items[pos:]:
            issue(it, D)
        A.label(f"L_{name}_done")

    A(f"s_mov_b32 s{sROLE}, 0")
    A(f"s_lshl_b32 s{sRI}, s{sX_}, 4")
    A(f"s_add_u32 s{sRI}, s{sRI}, s{sA}")
    mk_srd(rW1, 22, 0x800000)
    mk_srd(rW2, 24, 0x800000)
    X = vS
    A(f"v_lshlrev_b32 v{vT}, 5, v{vL}")
    A(f"buffer_load_dwordx4 {v4(vQ)}, v{vT}, {srd(rX)}, 0 offen", "x")
    A(f"buffer_load_dwordx4 {v4(vQ+4)}, v{vT}, {srd(rX)}, 0 offen offset:16", "x")
    A(f"v_lshrrev_b32 v{vT+1}, 2, v{vL}")
    A(f"v_lshlrev_b32 v{vT+1}, 3, v{vT+1}")
    A(f"s_lshl_b32 s{sT0}, s{sW}, 7")
    A(f"v_add_u32 v{vT+1}, s{sT0}, v{vT+1}")
    A(f"v_lshlrev_b32 v{vT+2}, 1, v{vT+1}")
    A(f"buffer_load_dwordx4 {v4(vQ+8)}, v{vT+2}, {srd(rX)}, 0 offen", "x")
    A(f"v_lshlrev_b32 v{vT+2}, 13, v{vT+1}")
    A(f"v_and_b32 v{vT+3}, 3, v{vL}")
    A(f"v_lshl_add_u32 v{vT+2}, v{vT+3}, 4, v{vT+2}")
    A(f"s_lshl_b32 s{sT1}, s{sRI}, 6")
    for i in range(8):
        A(f"s_add_u32 s{sT0}, s{sT1}, {i*8192}")
        A(f"buffer_load_dwordx4 {v4(vW+4*i)}, v{vT+2}, {srd(rW1)}, s{sT0} offen{ntw}", "wq")
    npre = opt.get("kpre", 2)
    for it in k_items[:npre]:
        issue(it, 0)
    A.wait_vm("x")
    F = X
    for i in range(8):
        unpack(F + 2 * i, F + 2 * i + 1, vQ + i)
    MB, RD = X + 16, X + 17
    ln_stats([F + i for i in range(16)], X + 18, X + 19, X + 20, MB, RD)
    XP = vQ + 12
    for p in range(4):
        unpack(X + 22, X + 23, vQ + 8 + p)
        ln_apply_pair(XP + p, X + 22, X + 23, MB, RD)
    A.wait_vm("wq")
    WP = vW + 32
    perm_pairs(WP, vW, 8)
    ACC = X
    dots(ACC, WP, XP, 4)
    red8_rows(ACC)
    for r in (8, 4):
        for c in range(2):
            A(f"v_add_f32_dpp v{ACC+c}, v{ACC+c}, v{ACC+c} row_ror:{r} {DPPALL}")
    A(f"v_and_b32 v{vT+3}, 3, v{vL}")
    A(f"v_lshlrev_b32 v{vT+3}, 5, v{vT+3}")
    A(f"v_lshl_add_u32 v{vT+3}, v{vGq}, 3, v{vT+3}")
    A(f"s_lshl_b32 s{sT0}, s{sW}, 7")
    A(f"v_add_u32 v{vT+3}, s{sT0}, v{vT+3}")
    A(f"ds_write_b64 v{vT+3}, {v2(ACC)} offset:{L_QPART}")
    A("s_waitcnt lgkmcnt(0)")
    tags()
    lds_arrive(L_CNTQ, sT0)
    sv = list(A.vm)
    A(f"s_cmp_lg_u32 s{sT0}, 7")
    A("s_cbranch_scc1 L_qpub_done")
    A("s_mov_b64 exec, 0xff")
    for w in range(8):
        A(f"ds_read_b128 {v4(X+4*w)}, v{vOV} offset:{L_QPART+128*w}")
    A("s_waitcnt lgkmcnt(0)")
    for st in (4, 2, 1):
        for w in range(st):
            for c in range(4):
                A(f"v_add_f32 v{X+4*w+c}, v{X+4*w+c}, v{X+4*(w+st)+c}")
    for c in range(4):
        rbf(X + c, X + c)
        A(f"v_or_b32 v{X+c}, s{sT16}, v{X+c}")
    A(f"s_lshl_b32 s{sT0}, s{sRI}, 7")
    A(f"s_add_u32 s{sT0}, s{sT0}, {WS_Q}")
    A(f"buffer_store_dwordx4 {v4(X)}, v{vOV}, {srd(rWS)}, s{sT0} offen sc1")
    A("s_mov_b64 exec, -1")
    A.label("L_qpub_done")
    A.vm = sv
    stamp(1)
    A(f"v_lshlrev_b32 v{vH}, 19, v{vGq}")
    A(f"v_lshl_add_u32 v{vH}, v{vN}, 4, v{vH}")
    A(f"s_lshl_b32 s{sW1B}, s{sG}, 21")
    A(f"s_and_b32 s{sT2}, s{sRI}, 31")
    A(f"s_lshl_b32 s{sT2}, s{sT2}, 13")
    A(f"s_add_u32 s{sW1B}, s{sW1B}, s{sT2}")
    A(f"s_lshl_b32 s{sT2}, s{sW}, 8")
    A(f"s_add_u32 s{sW1B}, s{sW1B}, s{sT2}")
    for i in range(8):
        A(f"s_add_u32 s{16+i}, s{sW1B}, {(i>>2)*128*2048 + (i&3)*2048}")
    for q in range(4):
        A(f"s_mov_b32 s{rW1+q}, s{rW2+q}")
    stream_with_poll(k_items[npre:], opt.get("qposW", 16), q_gather, "kW")
    A("s_branch L_kdone")

    A.label("L_roleM")
    A.vm = []
    A(f"s_mov_b32 s{sROLE}, 1")
    A(f"s_mul_i32 s{sRI}, s{sX_}, 14")
    A(f"s_add_u32 s{sRI}, s{sRI}, s{sA}")
    A(f"s_sub_u32 s{sRI}, s{sRI}, 16")
    A(f"s_cmp_lt_u32 s{sW}, 4")
    A(f"s_cselect_b32 s{rW1}, s28, s30")
    A(f"s_cselect_b32 s{rW1+1}, s29, s31")
    A(f"s_and_b32 s{rW1+1}, s{rW1+1}, 0xffff")
    A(f"s_mov_b32 s{rW1+3}, 0x20000")
    mk_srd(rW2, 32, 3584 * 1024 * 2)
    A(f"s_cmp_lt_u32 s{sA}, 30")
    A(f"s_cselect_b32 s{rW1+2}, {hex(1024*3584*2)}, 0")
    A(f"v_lshrrev_b32 v{vH}, 2, v{vL}")
    A(f"v_mul_u32_u24 v{vH}, {16*7168}, v{vH}")
    A(f"v_and_b32 v{vT+1}, 3, v{vL}")
    A(f"v_lshl_add_u32 v{vH}, v{vT+1}, 4, v{vH}")
    A(f"s_and_b32 s{sW1B}, s{sW}, 3")
    A(f"s_mul_i32 s{sW1B}, s{sW1B}, {256*7168}")
    A(f"s_lshl_b32 s{sT2}, s{sRI}, 6")
    A(f"s_add_u32 s{sW1B}, s{sW1B}, s{sT2}")
    for i in range(8):
        A(f"s_add_u32 s{16+i}, s{sW1B}, {i*7168}")
        A(f"s_add_u32 s{24+i}, s{sW1B}, {(8+i)*7168}")
    itemsM = []
    gi = 0
    for k, it in enumerate(k_items):
        itemsM.append(it)
        if k % 4 == 1:
            itemsM.append(("w", 8 + gi, 24 + gi, rW1))
            gi += 1
    npreM = 4
    for it in itemsM[:npreM]:
        issue(it, D)
    A("s_waitcnt lgkmcnt(0)")
    tags()
    stream_with_poll(itemsM[npreM:], opt.get("qposM", 22), q_gather, "kM")

    A.label("L_kdone")
    A.vm = [tok(it) for it in k_items]
    stamp(3)
    lds_wait(L_FLAGQ)
    A(f"v_and_b32 v{vT}, 7, v{vN}")
    A(f"v_mul_u32_u24 v{vT}, 272, v{vT}")
    A(f"v_lshl_add_u32 v{vT}, v{vGq}, 4, v{vT}")
    A(f"v_lshrrev_b32 v{vT+1}, 3, v{vN}")
    A(f"v_lshl_add_u32 v{vT}, v{vT+1}, 6, v{vT}")
    for h in range(2):
        A(f"ds_read_b128 {v4(vQ+4*h)}, v{vT} offset:{L_Q+128*h}")
    A("s_waitcnt lgkmcnt(0)")
    stamp(4)
    stream = []
    wpos = opt.get("wpos", "mix")
    gi = 0
    for k, it in enumerate(v_items):
        stream.append(it)
        if wpos == "mix" and k % 4 == 3:
            stream.append(("w", gi, 16 + gi, rW1))
            gi += 1
    while gi < 8:
        stream.append(("w", gi, 16 + gi, rW1))
        gi += 1

    def sprinkle(n=1):
        for _ in range(n):
            issue(stream.pop(0), 0)

    def combine(t):
        d0, d1 = vS + 4 * t, vQ + 8 + 4 * (t & 1)
        for r in range(4):
            A(f"v_permlane32_swap_b32 v{d0+r}, v{d1+r}")
        for r in range(4):
            A(f"v_add_f32_dpp v{d0+r}, v{d1+r}, v{d0+r} row_ror:8 {DPPALL}")

    for t in range(8):
        A.wait_vm(f"k{t}")
        d0, d1 = vS + 4 * t, vQ + 8 + 4 * (t & 1)
        r = vR + t * 16
        A(f"v_mfma_f32_16x16x32_bf16 {v4(d0)}, {v4(r)}, {v4(vQ)}, 0")
        A(f"v_mfma_f32_16x16x32_bf16 {v4(d1)}, {v4(r+8)}, {v4(vQ)}, 0")
        A(f"v_mfma_f32_16x16x32_bf16 {v4(d0)}, {v4(r+4)}, {v4(vQ+4)}, {v4(d0)}")
        A(f"v_mfma_f32_16x16x32_bf16 {v4(d1)}, {v4(r+12)}, {v4(vQ+4)}, {v4(d1)}")
        if t > 0:
            combine(t - 1)
        if t in opt.get("spr_qk", (1, 4, 6)):
            sprinkle()
    combine(7)
    stamp(5)
    for i in range(0, 32, 2):
        a, b = vS + i, vS + i + 1
        A(f"v_cvt_pk_bf16_f32 v{b}, v{a}, v{b}")
        A(f"v_lshlrev_b32 v{a}, 16, v{b}")
        A(f"v_and_b32 v{b}, s{sM16}, v{b}")
        A(f"v_mul_f32 v{a}, s{sSCALE}, v{a}")
        A(f"v_mul_f32 v{b}, s{sSCALE}, v{b}")
        A(f"v_cvt_pk_bf16_f32 v{b}, v{a}, v{b}")
        A(f"v_lshlrev_b32 v{a}, 16, v{b}")
        A(f"v_and_b32 v{b}, s{sM16}, v{b}")
        if i in (16,):
            sprinkle()
    A(f"v_max_f32 v{vM}, v{vS}, v{vS+1}")
    for i in range(2, 32, 2):
        A(f"v_max3_f32 v{vM}, v{vM}, v{vS+i}, v{vS+i+1}")
    for i in range(32):
        A(f"v_sub_f32 v{vS+i}, v{vS+i}, v{vM}")
        A(f"v_mul_f32 v{vS+i}, s{sLOG2E}, v{vS+i}")
        A(f"v_exp_f32 v{vS+i}, v{vS+i}")
        if i in (8, 28):
            sprinkle()
    A(f"v_add_f32 v{vT+2}, v{vS}, v{vS+1}")
    A(f"v_add_f32 v{vT+3}, v{vS+2}, v{vS+3}")
    for i in range(4, 32, 2):
        A(f"v_add_f32 v{vT+2}, v{vT+2}, v{vS+i}")
        A(f"v_add_f32 v{vT+3}, v{vT+3}, v{vS+i+1}")
    A(f"v_add_f32 v{vT+3}, v{vT+2}, v{vT+3}")
    A(f"v_mov_b32 v{vT+2}, v{vM}")
    A(f"v_lshlrev_b32 v{vT+4}, 3, v{vN}")
    A(f"v_lshl_add_u32 v{vT+4}, v{vGq}, 6, v{vT+4}")
    A(f"s_lshl_b32 s{sT0}, s{sW}, 8")
    A(f"v_add_u32 v{vT+4}, s{sT0}, v{vT+4}")
    A("s_mov_b32 exec_lo, 0x00ff00ff")
    A("s_mov_b32 exec_hi, 0x00ff00ff")
    A(f"ds_write_b64 v{vT+4}, {v2(vT+2)} offset:{L_SP}")
    A("s_mov_b64 exec, -1")
    A("s_waitcnt lgkmcnt(0)")
    lds_arrive(L_CNTS, sLAST)
    sv = list(A.vm)
    A(f"s_cmp_lg_u32 s{sLAST}, 7")
    A("s_cbranch_scc1 L_vload")
    stamp(6)
    Y = vQ
    A(f"v_and_b32 v{vT}, 7, v{vL}")
    A(f"v_lshlrev_b32 v{vT}, 3, v{vT}")
    A(f"v_lshrrev_b32 v{vT+1}, 3, v{vL}")
    A(f"v_lshl_add_u32 v{vT}, v{vT+1}, 8, v{vT}")
    for g in range(4):
        A(f"ds_read_b64 {v2(Y+2*g)}, v{vT} offset:{L_SP+64*g}")
    A("s_waitcnt lgkmcnt(0)")
    MM, LL, TT = vT + 2, vT + 3, Y + 10
    A(f"v_max_f32 v{MM}, v{Y}, v{Y+2}")
    A(f"v_max3_f32 v{MM}, v{MM}, v{Y+4}, v{Y+6}")
    row_red("v_max_f32", MM, (8,))
    xrow_red("v_max_f32", MM, TT)
    for g in range(4):
        A(f"v_sub_f32 v{Y+2*g}, v{Y+2*g}, v{MM}")
        A(f"v_mul_f32 v{Y+2*g}, s{sLOG2E}, v{Y+2*g}")
        A(f"v_exp_f32 v{Y+2*g}, v{Y+2*g}")
    A(f"v_mul_f32 v{LL}, v{Y}, v{Y+1}")
    for g in range(1, 4):
        A(f"v_fmac_f32 v{LL}, v{Y+2*g}, v{Y+2*g+1}")
    row_red("v_add_f32", LL, (8,))
    xrow_red("v_add_f32", LL, TT)
    A(f"v_or_b32 v{MM}, s{sT10}, v{MM}")
    tag10(LL)
    A(f"v_lshlrev_b32 v{vT}, 3, v{vL}")
    A(f"s_lshl_b32 s{sT0}, s{sJ}, 6")
    A(f"s_add_u32 s{sT0}, s{sT0}, {WS_S}")
    A("s_mov_b64 exec, 0xff")
    A(f"buffer_store_dwordx2 {v2(MM)}, v{vT}, {srd(rWS)}, s{sT0} offen sc1")
    A("s_mov_b64 exec, -1")
    A.label("L_vload")
    A.vm = sv

    spos = opt.get("spos", 16)
    first_b3 = min(i for i, it in enumerate(stream) if it[0] == "v" and it[1] == 3)
    assert spos <= first_b3

    def s_gather():
        Dd = vQ
        TP = vR + 96
        A(f"s_lshl_b32 s{sT1}, s{sG}, 12")
        A(f"v_add_u32 v{vT}, s{sT1}, v{vOV}")
        poll(Dd, vT, [WS_S + i * 1024 for i in range(4)], sT10, 0x3ff, TP, sleep=opt.get("sleeps", 8))
        for i in range(16):
            A(f"v_and_b32 v{Dd+i}, s{sM10}, v{Dd+i}")
        Yy = TP
        Tt = TP + 4
        M0, M1, L0, L1 = Yy, Yy + 2, Yy + 1, Yy + 3
        for (Mx, o) in ((M0, 0), (M1, 2)):
            A(f"v_max_f32 v{Mx}, v{Dd+o}, v{Dd+4+o}")
            A(f"v_max3_f32 v{Mx}, v{Mx}, v{Dd+8+o}, v{Dd+12+o}")
        for Mx in (M0, M1):
            row_red("v_max_f32", Mx, (8, 4))
            xrow_red("v_max_f32", Mx, Tt)
        for (Mx, Lx, o) in ((M0, L0, 0), (M1, L1, 2)):
            for i in range(4):
                r = Dd + 4 * i + o
                A(f"v_sub_f32 v{r}, v{r}, v{Mx}")
                A(f"v_mul_f32 v{r}, s{sLOG2E}, v{r}")
                A(f"v_exp_f32 v{r}, v{r}")
            A(f"v_mul_f32 v{Lx}, v{Dd+o}, v{Dd+o+1}")
            for i in range(1, 4):
                A(f"v_fmac_f32 v{Lx}, v{Dd+4*i+o}, v{Dd+4*i+o+1}")
        for Lx in (L0, L1):
            row_red("v_add_f32", Lx, (8, 4))
            xrow_red("v_add_f32", Lx, Tt)
            A(f"v_rcp_f32 v{Lx}, v{Lx}")
        A(f"v_and_b32 v{vT}, 3, v{vL}")
        A(f"v_lshlrev_b32 v{vT}, 4, v{vT}")
        A(f"ds_write_b128 v{vT}, {v4(Yy)} offset:{L_SG}")
        A("s_waitcnt lgkmcnt(0)")
        lds_setflag(L_FLAGS)
        stamp(7)

    vm_after = list(A.vm) + [tok(it) for it in stream]
    ntail = opt.get("untail", 0)
    body = stream[:len(stream) - ntail] if ntail else stream
    stream_with_poll(body, spos, s_gather, "v")
    for it in stream[len(body):]:
        issue(it, 0)
    A.vm = vm_after[-min(len(vm_after), max(D, DC) + ntail + 1):]
    stamp(8)
    lds_wait(L_FLAGS)
    A(f"v_and_b32 v{vT}, 7, v{vN}")
    A(f"v_lshlrev_b32 v{vT}, 3, v{vT}")
    A(f"ds_read_b64 {v2(vT+2)}, v{vT} offset:{L_SG}")
    A("s_waitcnt lgkmcnt(0)")
    A(f"v_sub_f32 v{vT+2}, v{vM}, v{vT+2}")
    A(f"v_mul_f32 v{vT+2}, s{sLOG2E}, v{vT+2}")
    A(f"v_exp_f32 v{vT+2}, v{vT+2}")
    A(f"v_mul_f32 v{vT+2}, v{vT+2}, v{vT+3}")
    for i in range(16):
        a, b = vS + 2 * i, vS + 2 * i + 1
        A(f"v_mul_f32 v{a}, v{a}, v{vT+2}")
        A(f"v_mul_f32 v{b}, v{b}, v{vT+2}")
        A(f"v_cvt_pk_bf16_f32 v{vQ+i}, v{a}, v{b}")
    stamp(9)
    for b in range(4):
        A.wait_vm(f"v{b}")
        R = vR + b * 32
        for t in range(4):
            for u in range(4):
                A(f"v_perm_b32 v{vT+u}, v{R+(2*u+1)*4+t}, v{R+(2*u)*4+t}, s{sPLO}")
            for u in range(4):
                A(f"v_perm_b32 v{vT+4+u}, v{R+(2*u+1)*4+t}, v{R+(2*u)*4+t}, s{sPHI}")
            for hh in range(2):
                m = 2 * t + hh
                c = "0" if b == 0 else v4(vS + 4 * m)
                A(f"v_mfma_f32_16x16x32_bf16 {v4(vS+4*m)}, {v4(vQ+4*b)}, {v4(vT+4*hh)}, {c}")
    stamp(10)
    A(f"v_mul_u32_u24 v{vT}, 272, v{vN}")
    A(f"v_lshl_add_u32 v{vT}, v{vGq}, 4, v{vT}")
    A(f"s_mul_i32 s{sT0}, s{sW}, 4352")
    A(f"v_add_u32 v{vT}, s{sT0}, v{vT}")
    A("s_mov_b64 exec, 0xffffffff")
    for m in range(8):
        A(f"ds_write_b128 v{vT}, {v4(vS+4*m)} offset:{L_O+32*m}")
    A("s_mov_b64 exec, -1")
    A(f"s_lshl_b32 s{sT0}, s{sW}, 2")
    A(f"v_add_u32 v{vT+1}, s{sT0}, v{vGq}")
    A(f"v_mul_u32_u24 v{vT+1}, 272, v{vT+1}")
    A(f"v_lshl_add_u32 v{vT+1}, v{vN}, 4, v{vT+1}")
    A(f"s_lshl_b32 s{sT3}, s{sJ}, 12")
    A(f"s_lshl_b32 s{sT1}, s{sW}, 10")
    A(f"s_add_u32 s{sT3}, s{sT3}, s{sT1}")
    A(f"s_add_u32 s{sT3}, s{sT3}, {WS_A}")
    A(f"v_lshlrev_b32 v{vOK}, 5, v{vN}")
    A(f"v_lshl_add_u32 v{vOK}, v{vGq}, 3, v{vOK}")
    A("s_waitcnt lgkmcnt(0)")
    A("s_barrier")
    Z = vS
    sv = list(A.vm)
    A(f"s_cmp_ge_u32 s{sW}, 4")
    A("s_cbranch_scc1 L_apub_done")
    for w in range(8):
        A(f"ds_read_b128 {v4(Z+4*w)}, v{vT+1} offset:{L_O+4352*w}")
    A("s_waitcnt lgkmcnt(0)")
    for st in (4, 2, 1):
        for w in range(st):
            for c in range(4):
                A(f"v_add_f32 v{Z+4*w+c}, v{Z+4*w+c}, v{Z+4*(w+st)+c}")
    for c in range(4):
        tag10(Z + c)
    A(f"buffer_store_dwordx4 {v4(Z)}, v{vOV}, {srd(rWS)}, s{sT3} offen sc1")
    A.label("L_apub_done")
    A.vm = sv
    stamp(11)
    A(f"s_cmp_lg_u32 s{sROLE}, 0")
    A("s_cbranch_scc1 L_tailM")

    sv_tail = list(A.vm)
    PWO = vR
    A.wait_vm("w")
    perm_pairs(PWO, vW, 8)
    A(f"s_lshl_b32 s{sPUB}, s{sRI}, 12")
    A(f"s_lshl_b32 s{sT1}, s{sW}, 9")
    A(f"s_add_u32 s{sPUB}, s{sPUB}, s{sT1}")
    A(f"s_add_u32 s{sPUB}, s{sPUB}, {WS_B}")
    A(f"v_lshrrev_b32 v{vT}, 3, v{vL}")
    A(f"v_lshlrev_b32 v{vT}, 12, v{vT}")
    A(f"v_and_b32 v{vT+1}, 7, v{vL}")
    A(f"v_lshl_add_u32 v{vT}, v{vT+1}, 4, v{vT}")
    A(f"s_lshl_b32 s{sT1}, s{sG}, 18")
    A(f"s_lshl_b32 s{sT2}, s{sW}, 15")
    A(f"s_add_u32 s{sT1}, s{sT1}, s{sT2}")
    A(f"s_and_b32 s{sT2}, s{sRI}, 31")
    A(f"s_lshl_b32 s{sT2}, s{sT2}, 7")
    A(f"s_add_u32 s{sT1}, s{sT1}, s{sT2}")
    A(f"v_add_u32 v{vT}, s{sT1}, v{vT}")
    A(f"v_lshlrev_b32 v{vQ+2}, 4, v{vT+1}")
    A(f"v_lshl_add_u32 v{vQ+2}, v{vGq}, 2, v{vQ+2}")
    A(f"s_lshl_b32 s{sT0}, s{sW}, 7")
    A(f"v_add_u32 v{vQ+2}, s{sT0}, v{vQ+2}")
    A(f"v_and_b32 v{vQ+1}, 3, v{vL}")
    A(f"v_lshlrev_b32 v{vQ+1}, 3, v{vQ+1}")
    A(f"v_lshl_add_u32 v{vQ+1}, v{vGq}, 1, v{vQ+1}")
    A(f"v_bfe_u32 v{vQ+3}, v{vL}, 2, 1")
    A(f"v_add_u32 v{vQ+1}, v{vQ+1}, v{vQ+3}")
    A(f"v_lshlrev_b32 v{vQ+1}, 2, v{vQ+1}")
    A(f"v_add_u32 v{vQ+1}, {L_GP}, v{vQ+1}")

    def red4_to_lds(ldsoff):
        A(f"v_permlane32_swap_b32 v{Z}, v{Z+2}")
        A(f"v_permlane32_swap_b32 v{Z+1}, v{Z+3}")
        A(f"v_add_f32 v{Z}, v{Z}, v{Z+2}")
        A(f"v_add_f32 v{Z+1}, v{Z+1}, v{Z+3}")
        A(f"v_permlane16_swap_b32 v{Z}, v{Z+1}")
        A(f"v_add_f32 v{Z}, v{Z}, v{Z+1}")
        row_red("v_add_f32", Z, (8,))
        A(f"ds_write_b32 v{vQ+2}, v{Z} offset:{L_GP+ldsoff}")
        A("s_waitcnt lgkmcnt(0)")
        A("s_barrier")

    def sum8_from_lds(addr):
        for k in range(4):
            A(f"ds_read2_b32 {v2(Z+2*k)}, v{addr} offset0:{64*k} offset1:{64*k+32}")
        A("s_waitcnt lgkmcnt(0)")
        A(f"v_add_f32 v{Z}, v{Z}, v{Z+1}")
        A(f"v_add_f32 v{Z+2}, v{Z+2}, v{Z+3}")
        A(f"v_add_f32 v{Z+4}, v{Z+4}, v{Z+5}")
        A(f"v_add_f32 v{Z+6}, v{Z+6}, v{Z+7}")
        A(f"v_add_f32 v{Z}, v{Z}, v{Z+2}")
        A(f"v_add_f32 v{Z+4}, v{Z+4}, v{Z+6}")
        A(f"v_add_f32 v{Z}, v{Z}, v{Z+4}")

    def pairs_bcast(src, dst):
        A(f"v_mov_b32_dpp v{Z+9}, v{src} quad_perm:[1,0,3,2] {DPPALL}")
        A(f"v_cvt_pk_bf16_f32 v{Z+9}, v{src}, v{Z+9}")
        for p in range(4):
            A(f"v_mov_b32_dpp v{dst+p}, v{Z+9} row_newbcast:{2*p} {DPPALL}")

    poll(Z, vT, [WS_A], sT10, 0x3ff, Z + 8, sleep=opt.get("sleepA", 0))
    for i in range(4):
        A(f"v_and_b32 v{Z+i}, s{sM10}, v{Z+i}")
    red4_to_lds(0)
    stamp(12)
    sum8_from_lds(vQ + 1)
    pairs_bcast(Z, vT + 4)
    dots(Z, PWO, vT + 4, 4)
    red8_rows(Z)
    tag10(Z)
    tag10(Z + 1)
    A(f"buffer_store_dwordx2 {v2(Z)}, v{vOK}, {srd(rWS)}, s{sPUB} offen sc1")
    A(f"s_cmp_ge_u32 s{sA}, 4")
    A("s_cbranch_scc1 L_end")
    sRID = sRI
    A(f"s_lshl_b32 s{sRID}, s{sX_}, 2")
    A(f"s_add_u32 s{sRID}, s{sRID}, s{sA}")
    A(f"v_and_b32 v{vT}, 31, v{vL}")
    A(f"v_lshlrev_b32 v{vT+1}, 1, v{vT}")
    A(f"s_lshl_b32 s{sT0}, s{sRID}, 6")
    A(f"buffer_load_ushort v{vH}, v{vT+1}, {srd(rX)}, s{sT0} offen")
    A(f"v_lshlrev_b32 v{vQ}, 2, v{vT}")
    A(f"v_add_u32 v{vQ+1}, {L_GP+1024}, v{vQ}")
    A(f"v_lshrrev_b32 v{vM}, 3, v{vL}")
    A(f"v_lshlrev_b32 v{vM}, 12, v{vM}")
    A(f"v_and_b32 v{vT}, 7, v{vL}")
    A(f"v_lshl_add_u32 v{vM}, v{vT}, 4, v{vM}")
    A(f"s_lshl_b32 s{sT0}, s{sW}, 16")
    A(f"s_lshl_b32 s{sT1}, s{sRID}, 7")
    A(f"s_add_u32 s{sT0}, s{sT0}, s{sT1}")
    A(f"v_add_u32 v{vM}, s{sT0}, v{vM}")
    A(f"s_lshl_b32 s{sT3}, s{sW}, 12")
    A(f"s_add_u32 s{sT3}, s{sT3}, s{sT1}")
    A(f"s_add_u32 s{sT3}, s{sT3}, {WS_H}")

    def reduce32(base, last_exec, ldsoff):
        poll(Z, vM, [base, base + 32768], sT10, 0x3ff, Z + 8, last_exec)
        for i in range(8):
            A(f"v_and_b32 v{Z+i}, s{sM10}, v{Z+i}")
        for c in range(4):
            A(f"v_add_f32 v{Z+c}, v{Z+c}, v{Z+4+c}")
        red4_to_lds(ldsoff)
        sum8_from_lds(vQ + 1)
        rbf(Z, Z)
        A(f"v_add_f32 v{vH}, v{vH}, v{Z}")
        rbf(vH, vH)

    A("s_waitcnt vmcnt(0)")
    A(f"v_lshlrev_b32 v{vH}, 16, v{vH}")
    reduce32(WS_B, None, 1024)
    A(f"v_or_b32 v{Z}, s{sT16}, v{vH}")
    A("s_mov_b64 exec, 0xffffffff")
    A(f"buffer_store_dword v{Z}, v{vQ}, {srd(rWS)}, s{sT3} offen sc1")
    A("s_mov_b64 exec, -1")
    stamp(13)
    A(f"v_add_u32 v{vQ+1}, {L_GP}, v{vQ}")
    reduce32(WS_D, 0x0000ffff, 0)
    A(f"s_cmp_lg_u32 s{sW}, 0")
    A("s_cbranch_scc1 L_end")
    A(f"v_lshrrev_b32 v{Z}, 16, v{vH}")
    A(f"v_lshrrev_b32 v{vT}, 1, v{vQ}")
    A(f"s_lshl_b32 s{sT0}, s{sRID}, 6")
    A("s_mov_b64 exec, 0xffffffff")
    A(f"buffer_store_short v{Z}, v{vT}, {srd(rOUT)}, s{sT0} offen")
    A("s_mov_b64 exec, -1")
    stamp(15)
    A(f"s_cmp_lg_u32 s{sRID}, 0")
    A("s_cbranch_scc1 L_end")
    A(f"v_mov_b32 v{Z}, s{sE}")
    A("s_mov_b64 exec, 1")
    A(f"buffer_store_dword v{Z}, v{vZ}, {srd(rWS)}, 0 offen offset:{WS_EPOCH}")
    A("s_mov_b64 exec, -1")
    A("s_branch L_end")

    A.label("L_tailM")
    A.vm = sv_tail
    A(f"s_cmp_ge_u32 s{sA}, 30")
    A("s_cbranch_scc1 L_end")
    PGU, WD, PWD = vR, vR + 64, vR + 96
    A(f"v_lshlrev_b32 v{vT}, 14, v{vGq}")
    A(f"v_lshl_add_u32 v{vT}, v{vN}, 4, v{vT}")
    A(f"s_lshl_b32 s{sT1}, s{sRI}, 16")
    A(f"s_lshl_b32 s{sT2}, s{sW}, 8")
    A(f"s_add_u32 s{sT1}, s{sT1}, s{sT2}")
    for i in range(8):
        if i % 2 == 0:
            A(f"s_add_u32 s{sT0}, s{sT1}, {i*2048}")
        A(f"buffer_load_dwordx4 {v4(WD+4*i)}, v{vT}, {srd(rW2)}, s{sT0} offen offset:{(i&1)*2048}{ntw}", "wd")
    A.wait_vm("w")
    perm_pairs(PGU, vW, 16)
    A(f"s_lshl_b32 s{sPUB}, s{sX_}, 4")
    A(f"s_add_u32 s{sPUB}, s{sPUB}, s{sA}")
    A(f"s_sub_u32 s{sPUB}, s{sPUB}, 16")
    A(f"s_lshl_b32 s{sPUB}, s{sPUB}, 12")
    A(f"s_lshl_b32 s{sT1}, s{sW}, 9")
    A(f"s_add_u32 s{sPUB}, s{sPUB}, s{sT1}")
    A(f"s_add_u32 s{sPUB}, s{sPUB}, {WS_D}")
    A.wait_vm("wd")
    perm_pairs(PWD, WD, 8)
    A(f"s_cmp_lg_u32 s{sW}, 0")
    A("s_cbranch_scc1 L_hopC_done")
    A(f"s_lshl_b32 s{sT1}, s{sX_}, 12")
    A(f"v_add_u32 v{vM}, s{sT1}, v{vOV}")
    poll(Z, vM, [WS_H + i * 1024 for i in range(4)], sT16, 0xffff, Z + 16, sleep=opt.get("sleepC", 0))
    stamp(13)
    for i in range(16):
        A(f"v_and_b32 v{Z+i}, s{sM16}, v{Z+i}")
    ln_stats([Z + i for i in range(16)], Z + 16, Z + 17, Z + 18, Z + 19, Z + 20)
    A(f"v_lshlrev_b32 v{vT}, 3, v{vL}")
    for i in range(4):
        ln_apply_pair(Z + 22 + 2 * i, Z + 4 * i, Z + 4 * i + 1, Z + 19, Z + 20)
        ln_apply_pair(Z + 22 + 2 * i + 1, Z + 4 * i + 2, Z + 4 * i + 3, Z + 19, Z + 20)
        A(f"ds_write_b64 v{vT}, {v2(Z+22+2*i)} offset:{L_HN+512*i}")
    A("s_waitcnt lgkmcnt(0)")
    stamp(14)
    A.label("L_hopC_done")
    A(f"v_lshrrev_b32 v{vT}, 2, v{vL}")
    A(f"v_lshlrev_b32 v{vT}, 5, v{vT}")
    A(f"s_and_b32 s{sT0}, s{sW}, 3")
    A(f"s_lshl_b32 s{sT0}, s{sT0}, 9")
    A(f"v_add_u32 v{vT}, s{sT0}, v{vT}")
    A(f"v_and_b32 v{vT+1}, 3, v{vL}")
    A(f"v_lshlrev_b32 v{vT+1}, 5, v{vT+1}")
    A(f"v_lshl_add_u32 v{vT+1}, v{vGq}, 3, v{vT+1}")
    A(f"s_lshl_b32 s{sT0}, s{sW}, 7")
    A(f"v_add_u32 v{vT+1}, s{sT0}, v{vT+1}")
    A(f"v_and_b32 v{vT+2}, 7, v{vL}")
    A(f"v_lshlrev_b32 v{vT+2}, 2, v{vT+2}")
    A(f"v_lshl_add_u32 v{vT+2}, v{vGq}, 5, v{vT+2}")
    A(f"v_add_u32 v{vT+2}, {L_GP}, v{vT+2}")
    A("s_barrier")
    A(f"ds_read_b128 {v4(vQ)}, v{vT} offset:{L_HN}")
    A(f"ds_read_b128 {v4(vQ+4)}, v{vT} offset:{L_HN+16}")
    A("s_waitcnt lgkmcnt(0)")
    dots(Z, PGU, vQ, 8)
    red8_rows(Z)
    for r in (8, 4):
        for c in range(2):
            A(f"v_add_f32_dpp v{Z+c}, v{Z+c}, v{Z+c} row_ror:{r} {DPPALL}")
    A(f"ds_write_b64 v{vT+1}, {v2(Z)} offset:{L_GP}")
    A("s_waitcnt lgkmcnt(0)")
    A("s_barrier")
    for k in range(4):
        A(f"ds_read2_b32 {v2(Z+2*k)}, v{vT+2} offset0:{64*k} offset1:{64*k+32}")
    A("s_waitcnt lgkmcnt(0)")
    Gv, Uv = Z, Z + 4
    A(f"v_add_f32 v{Z}, v{Z}, v{Z+1}")
    A(f"v_add_f32 v{Z+2}, v{Z+2}, v{Z+3}")
    A(f"v_add_f32 v{Z+4}, v{Z+4}, v{Z+5}")
    A(f"v_add_f32 v{Z+6}, v{Z+6}, v{Z+7}")
    A(f"v_add_f32 v{Gv}, v{Z}, v{Z+2}")
    A(f"v_add_f32 v{Uv}, v{Z+4}, v{Z+6}")
    rbf(Gv, Gv)
    rbf(Uv, Uv)
    T1, T2 = Z + 1, Z + 2
    A(f"v_mul_f32 v{T1}, v{Gv}, v{Gv}")
    A(f"v_mul_f32 v{T1}, v{T1}, v{Gv}")
    A(f"v_mov_b32 v{T2}, v{Gv}")
    A(f"v_fmac_f32 v{T2}, 0x3d372713, v{T1}")
    A(f"v_mul_f32 v{T2}, 0xc0135761, v{T2}")
    A(f"v_exp_f32 v{T2}, v{T2}")
    A(f"v_add_f32 v{T2}, 1.0, v{T2}")
    A(f"v_rcp_f32 v{T2}, v{T2}")
    A(f"v_mul_f32 v{Gv}, v{Gv}, v{T2}")
    rbf(Gv, Gv)
    A(f"v_mul_f32 v{Gv}, v{Gv}, v{Uv}")
    pairs_bcast(Gv, vT + 4)
    dots(Z, PWD, vT + 4, 4)
    red8_rows(Z)
    tag10(Z)
    tag10(Z + 1)
    A(f"buffer_store_dwordx2 {v2(Z)}, v{vOK}, {srd(rWS)}, s{sPUB} offen sc1")
    stamp(15)

    A.label("L_end")
    if stamps:
        A("s_mov_b64 exec, 1")
        A(f"s_lshl_b32 s{sT0}, s2, 3")
        A(f"s_add_u32 s{sT0}, s{sT0}, s{sW}")
        A(f"s_lshl_b32 s{sT0}, s{sT0}, 6")
        A(f"s_add_u32 s{sT0}, s{sT0}, {WS_STAMP}")
        for q in range(4):
            for k in range(4):
                A(f"v_mov_b32 v{vT+k}, s{sSTAMP+4*q+k}")
            A(f"buffer_store_dwordx4 {v4(vT)}, v{vZ}, {srd(rWS)}, s{sT0} offen offset:{16*q}")
            A("s_nop 2")
    A.label("L_exit")
    A("s_endpgm")
    A.raw('.section .rodata,"a"')
    A.raw(".p2align 6")
    A.raw(f".amdhsa_kernel {NAME}_kernel")
    A.raw("  .amdhsa_next_free_vgpr 256")
    A.raw("  .amdhsa_next_free_sgpr 102")
    A.raw("  .amdhsa_accum_offset 256")
    A.raw("  .amdhsa_group_segment_fixed_size 0")
    A.raw("  .amdhsa_kernarg_size 96")
    A.raw("  .amdhsa_user_sgpr_count 2")
    A.raw("  .amdhsa_user_sgpr_kernarg_segment_ptr 1")
    A.raw("  .amdhsa_system_sgpr_workgroup_id_x 1")
    A.raw("  .amdhsa_float_denorm_mode_32 3")
    A.raw(".end_amdhsa_kernel")
    return A.text()


if __name__ == "__main__":
    import json
    opt = json.loads(sys.argv[2]) if len(sys.argv) > 2 else {}
    out = sys.argv[1] if len(sys.argv) > 1 else "k.s"
    open(out, "w").write(gen(opt))
```

```python
import sys
from asmlib import Asm

NAME = "sequential_preLN__gqa_block_cached__glu_gated_geglu__decode"

HEADER = """; Kernarg layout for this problem (96 bytes, ptrs only, base s[0:1]):
"""

STAMP_NAMES = ["start", "qpub", "qgath", "kiss", "qrdy", "qk", "wland", "s_glob", "viss", "prdy", "pv", "apub",
               "hopA", "h", "hopC", "end"]

WS_EPOCH = 0x0
WS_Q = 0x1000
WS_S = 0x8000
WS_H = 0x10000
WS_A = 0x100000
WS_B = 0x200000
WS_D = 0x300000
WS_E = 0x380000
WS_STAMP = 0x400000
WS_SIZE = 0x500000

L_CNTQ, L_FLAGQ, L_CNTS, L_FLAGS = 0, 4, 8, 12
L_FLAGW = 16
L_CNTO = 20
L_CNTB = 24
L_CNTP = 28
L_PRGK, L_PRGV, L_FLAGG = 32, 36, 40
L_LVL = 44
L_CK = 48
L_Q = 0x200
L_SP = 0xC00
L_SG = 0x1400
L_LN = 0x1800
L_GP = 0x2000
L_QPART = 0x2C00
L_O = 0x3000
L_KV = 0x8000
NLDS = 3
LDS_BYTES = L_KV + 4 * NLDS * 8192

sW = 3
sX_, sA, sJ, sRI, sG, sC = 4, 5, 6, 7, 8, 9
sT16, sT10 = 10, 11
sPLO, sPHI = 12, 13
sM10, sM16 = 14, 15
rX, rK, rV, rW1, rW2, rW3, rOUT, rWS = 40, 44, 48, 52, 56, 60, 68, 72
sTO, sKB, sE, sLOG2E = 76, 77, 78, 79
sSTAMP = 80
sT0, sT1, sT2, sT3 = 96, 97, 98, 99
sP0, sP1 = 100, 101
sSCALE, sLDSB, sPUB, sHW = 64, 65, 66, 67

vL, vN, vGq, vOK, vOV, vM, vH, vZ = 0, 1, 2, 3, 4, 5, 6, 7
vT = 8
vQ = 16
vS = 32
vR = 96


def srd(r):
    return f"s[{r}:{r+3}]"


def v4(r):
    return f"v[{r}:{r+3}]"


def v2(r):
    return f"v[{r}:{r+1}]"


DPPALL = "row_mask:0xf bank_mask:0xf"


def gen(opt):
    A = Asm()
    stamps = opt.get("stamps", False)
    nt = " nt" if opt.get("nt", True) else ""
    ntw = " nt" if opt.get("ntw", True) else ""
    D = opt.get("D", 5)
    DC = opt.get("DC", 7)
    DG = opt.get("DG", 1)

    def stamp(k):
        if not stamps:
            return
        A(f"s_memrealtime s[{sP0}:{sP1}]")
        A("s_waitcnt lgkmcnt(0)")
        A(f"s_mov_b32 s{sSTAMP+k}, s{sP0}")

    def mk_srd(r, ptr, size):
        A(f"s_mov_b32 s{r}, s{ptr}")
        A(f"s_and_b32 s{r+1}, s{ptr+1}, 0xffff")
        A(f"s_mov_b32 s{r+2}, {hex(size)}")
        A(f"s_mov_b32 s{r+3}, 0x20000")

    def rbf(dst, src):
        A(f"v_cvt_pk_bf16_f32 v{dst}, v{src}, v{src}")
        A(f"v_and_b32 v{dst}, s{sM16}, v{dst}")

    def row_red(op, x, rors):
        for r in rors:
            A(f"{op}_dpp v{x}, v{x}, v{x} row_ror:{r} {DPPALL}")

    def xrow_red(op, x, t):
        A(f"v_mov_b32 v{t}, v{x}")
        A(f"v_permlane16_swap_b32 v{t}, v{x}")
        A(f"{op} v{x}, v{x}, v{t}")
        A(f"v_mov_b32 v{t}, v{x}")
        A(f"v_permlane32_swap_b32 v{t}, v{x}")
        A(f"{op} v{x}, v{x}, v{t}")

    def wave_sum(x, t):
        row_red("v_add_f32", x, (8, 4, 2, 1))
        xrow_red("v_add_f32", x, t)

    def ln_finish(mean, var, out_mb, out_r):
        rbf(out_mb, mean)
        rbf(var, var)
        A(f"v_add_f32 v{var}, 0x3727c5ac, v{var}")
        rbf(var, var)
        A(f"v_sqrt_f32 v{var}, v{var}")
        rbf(var, var)
        A(f"v_rcp_f32 v{out_r}, v{var}")

    def ln_stats(vals, t0, t1, t2, out_mb, out_r):
        A(f"v_add_f32 v{t0}, v{vals[0]}, v{vals[1]}")
        A(f"v_add_f32 v{t1}, v{vals[2]}, v{vals[3]}")
        for i in range(4, 16, 2):
            A(f"v_add_f32 v{t0}, v{t0}, v{vals[i]}")
            A(f"v_add_f32 v{t1}, v{t1}, v{vals[i+1]}")
        A(f"v_add_f32 v{t0}, v{t0}, v{t1}")
        wave_sum(t0, t1)
        A(f"v_mul_f32 v{t0}, 0x3a800000, v{t0}")
        A(f"v_sub_f32 v{t1}, v{vals[0]}, v{t0}")
        A(f"v_mul_f32 v{t2}, v{t1}, v{t1}")
        for i in range(1, 16):
            A(f"v_sub_f32 v{t1}, v{vals[i]}, v{t0}")
            A(f"v_fmac_f32 v{t2}, v{t1}, v{t1}")
        wave_sum(t2, t1)
        A(f"v_mul_f32 v{t2}, 0x3a800000, v{t2}")
        ln_finish(t0, t2, out_mb, out_r)

    def ln_apply_pair(dst, a, b, mb, r):
        A(f"v_sub_f32 v{a}, v{a}, v{mb}")
        A(f"v_sub_f32 v{b}, v{b}, v{mb}")
        A(f"v_cvt_pk_bf16_f32 v{b}, v{a}, v{b}")
        A(f"v_lshlrev_b32 v{a}, 16, v{b}")
        A(f"v_and_b32 v{b}, s{sM16}, v{b}")
        A(f"v_mul_f32 v{a}, v{a}, v{r}")
        A(f"v_mul_f32 v{b}, v{b}, v{r}")
        A(f"v_cvt_pk_bf16_f32 v{dst}, v{a}, v{b}")

    def unpack(dlo, dhi, src):
        A(f"v_lshlrev_b32 v{dlo}, 16, v{src}")
        A(f"v_and_b32 v{dhi}, s{sM16}, v{src}")

    def perm_inplace(src, nrows, tmp):
        for p in range(nrows // 2):
            for t in range(4):
                a = src + (2 * p) * 4 + t
                b = src + (2 * p + 1) * 4 + t
                A(f"v_perm_b32 v{tmp+t}, v{b}, v{a}, s{sPHI}")
                A(f"v_perm_b32 v{a}, v{b}, v{a}, s{sPLO}")
            for t in range(4):
                A(f"v_mov_b32 v{src+(2*p+1)*4+t}, v{tmp+t}")

    def dots(acc, wp, xp, npairs):
        for p in range(npairs):
            for c in range(8):
                src = "0" if p == 0 else f"v{acc+c}"
                w = wp + (2 * p + (c & 1)) * 4 + (c >> 1)
                A(f"v_dot2_f32_bf16 v{acc+c}, v{w}, v{xp+p}, {src}")

    def red8_rows(acc):
        for c in range(4):
            A(f"v_permlane32_swap_b32 v{acc+c}, v{acc+c+4}")
        for c in range(4):
            A(f"v_add_f32 v{acc+c}, v{acc+c}, v{acc+c+4}")
        for c in range(2):
            A(f"v_permlane16_swap_b32 v{acc+c}, v{acc+c+2}")
        for c in range(2):
            A(f"v_add_f32 v{acc+c}, v{acc+c}, v{acc+c+2}")

    def tag10(r):
        A(f"v_add_u32 v{r}, 0x200, v{r}")
        A(f"v_and_or_b32 v{r}, v{r}, s{sM10}, v{vTAG}")

    def lds_wait(off, sl=2, atleast=1):
        lp = A.newlabel("ldsw")
        dn = A.newlabel("ldsd")
        A.label(lp)
        A(f"ds_read_b32 v{vT}, v{vZ} offset:{off}")
        A("s_waitcnt lgkmcnt(0)")
        A(f"v_readfirstlane_b32 s{sT0}, v{vT}")
        A(f"s_cmp_ge_u32 s{sT0}, {atleast}")
        A(f"s_cbranch_scc1 {dn}")
        A(f"s_sleep {sl}")
        A(f"s_sub_u32 s{sTO}, s{sTO}, 1")
        A(f"s_cmp_lg_u32 s{sTO}, 0")
        A(f"s_cbranch_scc1 {lp}")
        A("s_branch L_end")
        A.label(dn)

    def lds_arrive(off, dst_s):
        A(f"v_mov_b32 v{vT+1}, 1")
        A("s_mov_b64 exec, 1")
        A(f"ds_add_rtn_u32 v{vT}, v{vZ}, v{vT+1} offset:{off}")
        A("s_waitcnt lgkmcnt(0)")
        A(f"v_readfirstlane_b32 s{dst_s}, v{vT}")
        A("s_mov_b64 exec, -1")

    def lds_inc(off):
        A(f"v_mov_b32 v{vT+1}, 1")
        A("s_mov_b64 exec, 1")
        A(f"ds_add_u32 v{vZ}, v{vT+1} offset:{off}")
        A("s_mov_b64 exec, -1")

    def lds_setflag(off):
        A(f"v_mov_b32 v{vT+1}, 1")
        A(f"ds_write_b32 v{vZ}, v{vT+1} offset:{off}")

    def poll(dst, voff, soffs, tagreg, mask, t, execs=None, sleep=0):
        n = len(soffs)
        execs = execs or {}
        lp = A.newlabel("poll")
        dn = A.newlabel("polld")
        A(f"v_mov_b32 v{t+2*n}, s{tagreg}")
        for i in execs:
            for c in range(4):
                A(f"v_mov_b32 v{dst+4*i+c}, s{tagreg}")
        A.label(lp)
        for i in range(n):
            A(f"s_mov_b32 s{sT0}, {hex(soffs[i])}")
            if i in execs:
                A(f"s_mov_b32 exec_hi, {hex(execs[i])}")
            vo = voff[i] if isinstance(voff, (list, tuple)) else voff
            A(f"buffer_load_dwordx4 {v4(dst+4*i)}, v{vo}, {srd(rWS)}, s{sT0} offen sc1")
            if i in execs:
                A("s_mov_b64 exec, -1")
        A("s_waitcnt vmcnt(0)")
        for i in range(2 * n):
            A(f"v_bitop3_b32 v{t+i}, v{dst+2*i}, v{dst+2*i+1}, v{t+2*n} bitop3:0x7e")
        regs = [t + i for i in range(2 * n)]
        while len(regs) > 1:
            nxt = []
            k = 0
            while k < len(regs):
                grp = regs[k:k + 3]
                if len(grp) == 3:
                    A(f"v_or3_b32 v{grp[0]}, v{grp[0]}, v{grp[1]}, v{grp[2]}")
                elif len(grp) == 2:
                    A(f"v_or_b32 v{grp[0]}, v{grp[0]}, v{grp[1]}")
                nxt.append(grp[0])
                k += 3
            regs = nxt
        A(f"v_and_b32 v{t}, {hex(mask)}, v{t}")
        A(f"v_cmp_ne_u32 s[{sP0}:{sP1}], 0, v{t}")
        A(f"s_cmp_eq_u64 s[{sP0}:{sP1}], 0")
        A(f"s_cbranch_scc1 {dn}")
        if sleep:
            A(f"s_sleep {sleep}")
        A(f"s_sub_u32 s{sTO}, s{sTO}, 1")
        A(f"s_cmp_lg_u32 s{sTO}, 0")
        A(f"s_cbranch_scc1 {lp}")
        A("s_branch L_end")
        A.label(dn)

    def throttle(d):
        if d and len(A.vm) >= d:
            A(f"s_waitcnt vmcnt({d-1})")

    LV = opt.get("LV", [5, 6, 7, 8])
    sLVL, sCLS = 36, 37

    def throttle2(on):
        if not on:
            return
        if on < 0:
            throttle(-on)
            return
        if len(A.vm) >= LV[-1]:
            A(f"s_waitcnt vmcnt({LV[-1]-1})")
        sv = list(A.vm)
        lab = None
        for lv in range(len(LV) - 2, -1, -1):
            if len(sv) >= LV[lv] and LV[lv] < LV[lv + 1]:
                lab = lab or A.newlabel("th")
                A(f"s_cmp_gt_u32 s{sLVL}, {lv}")
                A(f"s_cbranch_scc1 {lab}")
                A(f"s_waitcnt vmcnt({LV[lv]-1})")
        if lab:
            A.label(lab)
        A.vm = sv

    def tok(item):
        return f"{item[0]}{item[1]}"

    st = {}

    def blk_reg(b):
        return vR + (b - NLDS) * 32

    def issue(item, d):
        kind, b, i = item
        ps = {("k", 1, 0): 1, ("k", 2, 0): 12, ("k", 4, 0): 13, ("k", 6, 0): 14, ("v", 2, 0): 6, ("v", 4, 0): 15}
        if item in ps and opt.get("pstamps", False):
            stamp(ps[item])
        cks = opt.get("cks", [])
        idx = (0 if kind == "k" else 64) + 8 * b + i
        if cks and idx in cks:
            lds_inc(L_CK + 4 * cks.index(idx))
        if cks and idx > cks[0] and d:
            if i % 4 == 0:
                A(f"ds_read_b32 v{vT+7}, v{vZ} offset:{L_LVL}")
                st["pend"] = True
            elif st.get("pend"):
                A("s_waitcnt lgkmcnt(0)")
                A(f"v_readfirstlane_b32 s{sT1}, v{vT+7}")
                A(f"s_sub_u32 s{sT1}, s{sT1}, 1")
                A(f"s_cselect_b32 s{sLVL}, s{sLVL}, s{sT1}")
                st["pend"] = False
        if kind == "k":
            off = (i >> 2) * 4096 + ((i >> 1) & 1) * 512 + (i & 1) * 128
            va, rs = vOK, rK
        else:
            off = i * 1024
            va, rs = vOV, rV
        if b < NLDS:
            A(f"s_add_u32 s{sT0}, s{sKB}, {hex((b<<21) + off)}")
            A(f"s_add_u32 m0, s{sLDSB}, {hex(b*8192 + i*1024)}")
            throttle2(d)
            A(f"buffer_load_dwordx4 v{va}, {srd(rs)}, s{sT0} offen{nt} lds", tok(item))
        else:
            A(f"s_add_u32 s{sT0}, s{sKB}, {hex((b<<21) + (off & ~4095))}")
            throttle2(d)
            A(f"buffer_load_dwordx4 {v4(blk_reg(b)+4*i)}, v{va}, {srd(rs)}, s{sT0} offen offset:{off & 4095}{nt}",
              tok(item))

    vTAG = vH

    def tags():
        A(f"s_add_u32 s{sE}, s{sE}, 1")
        A(f"s_and_b32 s{sT16}, s{sE}, 0xffff")
        A(f"s_and_b32 s{sT10}, s{sE}, 0x3ff")
        A(f"v_mov_b32 v{vTAG}, s{sT10}")

    A.raw(HEADER.rstrip("\n"))
    A.raw(f"; @launch grid=(256,1,1) block=(512,1,1) lds={LDS_BYTES}")
    A.raw('.amdgcn_target "amdgcn-amd-amdhsa--gfx950"')
    A.raw(".text")
    A.raw(f".globl {NAME}_kernel")
    A.raw(".p2align 8")
    A.raw(f".type {NAME}_kernel,@function")
    A.raw(f"{NAME}_kernel:")
    A("s_cmp_ge_u32 s2, 256")
    A("s_cbranch_scc1 L_exit")
    A("s_load_dwordx16 s[16:31], s[0:1], 0")
    A("s_load_dwordx8 s[32:39], s[0:1], 64")
    if stamps:
        A(f"s_memrealtime s[{sP0}:{sP1}]")
        for k in range(16):
            A(f"s_mov_b32 s{sSTAMP+k}, 0")
    A(f"v_lshrrev_b32 v{vT}, 6, v0")
    A(f"v_and_b32 v{vL}, 63, v0")
    A(f"v_readfirstlane_b32 s{sW}, v{vT}")
    A(f"v_mov_b32 v{vZ}, 0")
    A(f"v_and_b32 v{vN}, 15, v{vL}")
    A(f"v_lshrrev_b32 v{vGq}, 4, v{vL}")
    for i in range(4):
        A(f"v_mov_b32 v{vT+i}, 0")
    A(f"s_cmp_lg_u32 s{sW}, 0")
    A("s_cbranch_scc1 L_nozero")
    A(f"ds_write_b128 v{vZ}, {v4(vT)}")
    A(f"ds_write_b128 v{vZ}, {v4(vT)} offset:16")
    A(f"ds_write_b128 v{vZ}, {v4(vT)} offset:32")
    A(f"ds_write_b128 v{vZ}, {v4(vT)} offset:48")
    A.label("L_nozero")
    A(f"s_and_b32 s{sX_}, s2, 7")
    A(f"s_lshr_b32 s{sA}, s2, 3")
    sWL = 35
    gmap = opt.get("gmap", "x")
    if gmap == "a2":
        A(f"s_and_b32 s{sG}, s{sA}, 3")
        A(f"s_lshr_b32 s{sT0}, s{sA}, 2")
        A(f"s_lshl_b32 s{sC}, s{sT0}, 3")
        A(f"s_add_u32 s{sC}, s{sC}, s{sX_}")
        A(f"s_lshl_b32 s{sRI}, s{sX_}, 2")
        A(f"s_add_u32 s{sRI}, s{sRI}, s{sT0}")
    else:
        A(f"s_lshr_b32 s{sG}, s{sX_}, 1")
        A(f"s_and_b32 s{sC}, s{sX_}, 1")
        A(f"s_lshl_b32 s{sRI}, s{sC}, 4")
        A(f"s_add_u32 s{sRI}, s{sRI}, s{sA}")
        A(f"s_lshl_b32 s{sC}, s{sC}, 5")
        A(f"s_add_u32 s{sC}, s{sC}, s{sA}")
    A(f"s_lshl_b32 s{sJ}, s{sG}, 6")
    A(f"s_add_u32 s{sJ}, s{sJ}, s{sC}")
    A(f"s_and_b32 s{sHW}, s{sW}, 3")
    A(f"s_mov_b32 s{sPLO}, 0x05040100")
    A(f"s_mov_b32 s{sPHI}, 0x07060302")
    A(f"s_mov_b32 s{sM10}, 0xfffffc00")
    A(f"s_mov_b32 s{sM16}, 0xffff0000")
    A(f"s_mov_b32 s{sTO}, 200000")
    A(f"s_mov_b32 s{sLOG2E}, 0x3fb8aa3b")
    A(f"s_mov_b32 s{sSCALE}, 0x3db504f3")
    A(f"s_lshl_b32 s{sKB}, s{sG}, 24")
    A(f"s_lshl_b32 s{sT0}, s{sC}, 2")
    A(f"s_add_u32 s{sT0}, s{sT0}, s{sHW}")
    A(f"s_lshl_b32 s{sT0}, s{sT0}, 13")
    A(f"s_add_u32 s{sKB}, s{sKB}, s{sT0}")
    A(f"s_mul_i32 s{sLDSB}, s{sHW}, {NLDS*8192}")
    A(f"s_add_u32 s{sLDSB}, s{sLDSB}, {L_KV}")
    A(f"v_and_b32 v{vT+4}, 3, v{vN}")
    A(f"v_lshlrev_b32 v{vT+4}, 10, v{vT+4}")
    A(f"v_bfe_u32 v{vT+5}, v{vN}, 2, 1")
    A(f"v_lshl_add_u32 v{vT+4}, v{vT+5}, 8, v{vT+4}")
    A(f"v_lshrrev_b32 v{vT+5}, 3, v{vN}")
    A(f"v_lshl_add_u32 v{vT+4}, v{vT+5}, 6, v{vT+4}")
    A(f"v_lshl_add_u32 v{vOK}, v{vGq}, 4, v{vT+4}")
    A(f"v_lshlrev_b32 v{vOV}, 4, v{vL}")
    A("s_waitcnt lgkmcnt(0)")
    if stamps:
        A(f"s_mov_b32 s{sSTAMP}, s{sP0}")
    A(f"s_load_dword s{sE}, s[38:39], {WS_EPOCH}")
    mk_srd(rWS, 38, WS_SIZE)
    A(f"s_cmp_ge_u32 s{sW}, 4")
    A("s_cbranch_scc1 L_helper")

    mk_srd(rK, 18, 0x4000000)
    mk_srd(rV, 20, 0x4000000)
    k_items = [("k", b, i) for b in range(8) for i in range(8)]
    v_items = [("v", b, i) for b in range(8) for i in range(8)]
    lvS, lvW, lvM, lvWs = opt.get("lv", [0, 1, 0, 2])
    A(f"s_and_b32 s{sT0}, s{sRI}, 14")
    A(f"s_cmp_eq_u32 s{sT0}, 6")
    A(f"s_cselect_b32 s{sCLS}, {lvWs}, {lvW}")
    A(f"s_cmp_ge_u32 s{sA}, 16")
    A(f"s_cselect_b32 s{sCLS}, {lvM}, s{sCLS}")
    A(f"s_cmp_ge_u32 s{sA}, 30")
    A(f"s_cselect_b32 s{sCLS}, {lvS}, s{sCLS}")
    A(f"s_mov_b32 s{sLVL}, s{sCLS}")
    npre = min(4, opt.get("D0", 4))
    n0 = opt.get("n0", 0)
    for it in k_items[:npre]:
        issue(it, 1)
    A("s_barrier")
    if opt.get("waitburst", False):
        lab = A.newlabel("nb")
        A(f"s_cmp_ge_u32 s{sA}, 16")
        A(f"s_cbranch_scc1 {lab}")
        lds_wait(L_CNTB, 2, 4)
        A.label(lab)
    for k, it in enumerate(k_items[:16]):
        if k >= npre:
            issue(it, -opt.get("D0", 4) if k < n0 else 1)
    npre = 16
    A("s_waitcnt lgkmcnt(0)")
    tags()

    qpos = opt.get("qpos", 40)
    for k, it in enumerate(k_items):
        if k >= npre:
            issue(it, 1)
            if k + 1 == qpos:
                lds_inc(L_PRGK)
    stamp(3)
    lds_wait(L_FLAGQ)
    A(f"v_and_b32 v{vT}, 7, v{vN}")
    A(f"v_mul_u32_u24 v{vT}, 272, v{vT}")
    A(f"v_lshl_add_u32 v{vT}, v{vGq}, 4, v{vT}")
    A(f"v_lshrrev_b32 v{vT+1}, 3, v{vN}")
    A(f"v_lshl_add_u32 v{vT}, v{vT+1}, 6, v{vT}")
    for h in range(2):
        A(f"ds_read_b128 {v4(vQ+4*h)}, v{vT} offset:{L_Q+128*h}")
    A(f"v_add_u32 v{vM}, s{sLDSB}, v{vOV}")
    A("s_waitcnt lgkmcnt(0)")
    stamp(4)
    stream = list(v_items)

    def sprinkle(n=1):
        for _ in range(n):
            if stream:
                issue(stream.pop(0), 0)

    def score_round(a, b):
        A(f"v_cvt_pk_bf16_f32 v{b}, v{a}, v{b}")
        A(f"v_lshlrev_b32 v{a}, 16, v{b}")
        A(f"v_and_b32 v{b}, s{sM16}, v{b}")
        A(f"v_mul_f32 v{a}, s{sSCALE}, v{a}")
        A(f"v_mul_f32 v{b}, s{sSCALE}, v{b}")
        A(f"v_cvt_pk_bf16_f32 v{b}, v{a}, v{b}")
        A(f"v_lshlrev_b32 v{a}, 16, v{b}")
        A(f"v_and_b32 v{b}, s{sM16}, v{b}")

    def combine(t):
        d0, d1 = vS + 4 * t, vQ + 8 + 4 * (t & 1)
        for r in range(4):
            A(f"v_permlane32_swap_b32 v{d0+r}, v{d1+r}")
        for r in range(4):
            A(f"v_add_f32_dpp v{d0+r}, v{d1+r}, v{d0+r} row_ror:8 {DPPALL}")
        score_round(d0, d0 + 1)
        score_round(d0 + 2, d0 + 3)

    STG = vS + 32
    for b in range(8):
        A.wait_vm(f"k{b}")
        if b < NLDS:
            for i in range(8):
                A(f"ds_read_b128 {v4(STG+4*i)}, v{vM} offset:{b*8192+i*1024}")
            A("s_waitcnt lgkmcnt(0)")
            base = STG
        else:
            base = blk_reg(b)
        for tt in range(2):
            t = 2 * b + tt
            d0, d1 = vS + 4 * t, vQ + 8 + 4 * (t & 1)
            r = base + tt * 16
            A(f"v_mfma_f32_16x16x32_bf16 {v4(d0)}, {v4(r)}, {v4(vQ)}, 0")
            A(f"v_mfma_f32_16x16x32_bf16 {v4(d1)}, {v4(r+8)}, {v4(vQ)}, 0")
            A(f"v_mfma_f32_16x16x32_bf16 {v4(d0)}, {v4(r+4)}, {v4(vQ+4)}, {v4(d0)}")
            A(f"v_mfma_f32_16x16x32_bf16 {v4(d1)}, {v4(r+12)}, {v4(vQ+4)}, {v4(d1)}")
            if t > 0:
                combine(t - 1)
        sprinkle(opt.get("spr_qk", 2))
    combine(15)
    stamp(5)
    vLA = vQ
    A(f"v_mov_b32 v{vLA}, v{vM}")
    A(f"v_max_f32 v{vM}, v{vS}, v{vS+1}")
    for i in range(2, 64, 2):
        A(f"v_max3_f32 v{vM}, v{vM}, v{vS+i}, v{vS+i+1}")
    sprinkle()
    for i in range(64):
        A(f"v_sub_f32 v{vS+i}, v{vS+i}, v{vM}")
        A(f"v_mul_f32 v{vS+i}, s{sLOG2E}, v{vS+i}")
        A(f"v_exp_f32 v{vS+i}, v{vS+i}")
        if i % 16 == 15:
            sprinkle()
    A(f"v_add_f32 v{vT+2}, v{vS}, v{vS+1}")
    A(f"v_add_f32 v{vT+3}, v{vS+2}, v{vS+3}")
    for i in range(4, 64, 2):
        A(f"v_add_f32 v{vT+2}, v{vT+2}, v{vS+i}")
        A(f"v_add_f32 v{vT+3}, v{vT+3}, v{vS+i+1}")
    A(f"v_add_f32 v{vT+3}, v{vT+2}, v{vT+3}")
    A(f"v_mov_b32 v{vT+2}, v{vM}")
    sprinkle()
    A(f"v_lshlrev_b32 v{vT+4}, 3, v{vN}")
    A(f"v_lshl_add_u32 v{vT+4}, v{vGq}, 6, v{vT+4}")
    A(f"s_lshl_b32 s{sT0}, s{sW}, 8")
    A(f"v_add_u32 v{vT+4}, s{sT0}, v{vT+4}")
    A("s_mov_b32 exec_lo, 0x00ff00ff")
    A("s_mov_b32 exec_hi, 0x00ff00ff")
    A(f"ds_write_b64 v{vT+4}, {v2(vT+2)} offset:{L_SP}")
    A("s_mov_b64 exec, -1")
    lds_inc(L_CNTS)
    if "lvV" in opt:
        A(f"s_mov_b32 s{sLVL}, {opt['lvV']}")

    done = 64 - len(stream)
    spos = opt.get("spos", 40)
    ppos = opt.get("ppos", 56)
    wpos = opt.get("wpos", 64)
    assert done < spos <= ppos <= 56 and ppos < wpos <= 64
    part1 = stream[:ppos - done]
    part2 = stream[ppos - done:]
    for k, it in enumerate(part1):
        issue(it, 1)
        if done + k + 1 == spos:
            lds_inc(L_PRGV)
    lds_wait(L_FLAGS)
    A(f"v_and_b32 v{vT}, 7, v{vN}")
    A(f"v_lshlrev_b32 v{vT}, 3, v{vT}")
    A(f"ds_read_b64 {v2(vT+2)}, v{vT} offset:{L_SG}")
    A("s_waitcnt lgkmcnt(0)")
    A(f"v_sub_f32 v{vT+2}, v{vM}, v{vT+2}")
    A(f"v_mul_f32 v{vT+2}, s{sLOG2E}, v{vT+2}")
    A(f"v_exp_f32 v{vT+2}, v{vT+2}")
    A(f"v_mul_f32 v{vT+2}, v{vT+2}, v{vT+3}")
    cnt = [ppos]

    def feed(n=1):
        for _ in range(n):
            if part2:
                issue(part2.pop(0), 1)
                cnt[0] += 1
                if cnt[0] == wpos:
                    lds_inc(L_FLAGW)

    vP = vS
    vO = vS + 32
    for i in range(32):
        a, b = vS + 2 * i, vS + 2 * i + 1
        A(f"v_mul_f32 v{a}, v{a}, v{vT+2}")
        A(f"v_mul_f32 v{b}, v{b}, v{vT+2}")
        A(f"v_cvt_pk_bf16_f32 v{vP+i}, v{a}, v{b}")
        if i == 16:
            feed()
    stamp(9)

    def pv_block(b, R, first):
        for t in range(4):
            for u in range(4):
                A(f"v_perm_b32 v{vQ+8+u}, v{R+(2*u+1)*4+t}, v{R+(2*u)*4+t}, s{sPLO}")
            for u in range(4):
                A(f"v_perm_b32 v{vQ+12+u}, v{R+(2*u+1)*4+t}, v{R+(2*u)*4+t}, s{sPHI}")
            for hh in range(2):
                m = 2 * t + hh
                c = "0" if first else v4(vO + 4 * m)
                A(f"v_mfma_f32_16x16x32_bf16 {v4(vO+4*m)}, {v4(vP+4*b)}, {v4(vQ+8+4*hh)}, {c}")

    order = [3, 0, 1, 2, 4, 5, 6, 7]
    for k, b in enumerate(order):
        while part2 and (b >= opt.get("feedall", 5) or any(it[1] <= b for it in part2)):
            feed()
        A.wait_vm(f"v{b}")
        if b < NLDS:
            for i in range(8):
                A(f"ds_read_b128 {v4(blk_reg(3)+4*i)}, v{vLA} offset:{b*8192+i*1024}")
            feed()
            A("s_waitcnt lgkmcnt(0)")
            R = blk_reg(3)
        else:
            R = blk_reg(b)
        if b == 7:
            stamp(8)
        pv_block(b, R, k == 0)
        feed()
    stamp(10)
    A(f"v_mul_u32_u24 v{vT}, 272, v{vN}")
    A(f"v_lshl_add_u32 v{vT}, v{vGq}, 4, v{vT}")
    A(f"s_mul_i32 s{sT0}, s{sW}, 4352")
    A(f"v_add_u32 v{vT}, s{sT0}, v{vT}")
    A(f"s_lshl_b32 s{sT0}, s{sW}, 2")
    A(f"v_add_u32 v{vT+2}, s{sT0}, v{vGq}")
    A(f"v_mul_u32_u24 v{vT+2}, 272, v{vT+2}")
    A(f"v_lshl_add_u32 v{vT+2}, v{vN}, 4, v{vT+2}")
    A(f"s_lshl_b32 s{sT3}, s{sJ}, 12")
    A(f"s_lshl_b32 s{sT1}, s{sW}, 10")
    A(f"s_add_u32 s{sT3}, s{sT3}, s{sT1}")
    A(f"s_add_u32 s{sT3}, s{sT3}, {WS_A}")
    A("s_mov_b64 exec, 0xffffffff")
    for m in range(8):
        A(f"ds_write_b128 v{vT}, {v4(vO+4*m)} offset:{L_O+32*m}")
    A("s_mov_b64 exec, 1")
    A(f"v_mov_b32 v{vT+1}, 1")
    A(f"ds_add_u32 v{vZ}, v{vT+1} offset:{L_CNTO}")
    A("s_mov_b64 exec, -1")
    A.label("L_owait")
    A(f"ds_read_b32 v{vT}, v{vZ} offset:{L_CNTO}")
    A("s_waitcnt lgkmcnt(0)")
    A(f"v_readfirstlane_b32 s{sT0}, v{vT}")
    A(f"s_cmp_eq_u32 s{sT0}, 4")
    A("s_cbranch_scc1 L_oready")
    A(f"s_sub_u32 s{sTO}, s{sTO}, 1")
    A(f"s_cmp_lg_u32 s{sTO}, 0")
    A("s_cbranch_scc1 L_owait")
    A("s_branch L_end")
    A.label("L_oready")
    Z = vS
    for w in range(4):
        A(f"ds_read_b128 {v4(Z+4*w)}, v{vT+2} offset:{L_O+4352*w}")
    A("s_waitcnt lgkmcnt(0)")
    for st in (2, 1):
        for w in range(st):
            for c in range(4):
                A(f"v_add_f32 v{Z+4*w+c}, v{Z+4*w+c}, v{Z+4*(w+st)+c}")
    for c in range(4):
        tag10(Z + c)
    A(f"buffer_store_dwordx4 {v4(Z)}, v{vOV}, {srd(rWS)}, s{sT3} offen sc1")
    if opt.get("pubwait", False):
        A("s_waitcnt vmcnt(0)")
    lds_inc(L_CNTP)
    stamp(11)
    A("s_branch L_end")

    A.label("L_helper")
    A.vm = []
    vTAG = vM
    Z = 16
    ACC = 48
    vA1, vA2, vA3 = vOK, vH, 15
    vWa = 64
    vWb = 192
    vGA, vLW, vLR, vX0, vC4, vGE, vLE = 56, 57, 58, 59, 60, 61, 62
    sRID = sLDSB
    mk_srd(rX, 16, 2048)
    mk_srd(rOUT, 34, 2048)

    def rowsplit_loads(dst, rs, sbase, row_off, rng, d, token):
        for i in rng:
            off = row_off(i)
            A(f"s_add_u32 s{sT0}, s{sbase}, {off & ~4095}")
            throttle(d)
            A(f"buffer_load_dwordx4 {v4(dst+4*i)}, v{vA2}, {srd(rs)}, s{sT0} offen offset:{off & 4095}{ntw}",
              token or f"r{i//2}")

    def perm_to(dst, src, nrows):
        for p in range(nrows // 2):
            A.wait_vm(f"r{p}")
            for t in range(4):
                a = src + (2 * p) * 4 + t
                b = src + (2 * p + 1) * 4 + t
                A(f"v_perm_b32 v{dst+(2*p)*4+t}, v{b}, v{a}, s{sPLO}")
                A(f"v_perm_b32 v{dst+(2*p+1)*4+t}, v{b}, v{a}, s{sPHI}")

    def zero_acc():
        for c in range(8):
            A(f"v_mov_b32 v{ACC+c}, 0")

    def gemv_publish(wp, npairs, xsrc):
        for p in range(npairs):
            xr, ln = xsrc(p)
            for c in range(8):
                w = wp + (2 * p + (c & 1)) * 4 + (c >> 1)
                A(f"v_dot2c_f32_bf16_dpp v{ACC+c}, v{xr}, v{w} row_newbcast:{ln} {DPPALL}")
        for c in range(4):
            A(f"v_permlane32_swap_b32 v{ACC+c}, v{ACC+c+4}")
        for c in range(4):
            A(f"v_add_f32 v{ACC+c}, v{ACC+c}, v{ACC+c+4}")
        for c in range(4):
            tag10(ACC + c)
        A(f"buffer_store_dwordx4 {v4(ACC)}, v{vA3}, {srd(rWS)}, s{sPUB} offen sc1")

    def pack_pairs(src, dst):
        A(f"v_mov_b32_dpp v{dst}, v{src} quad_perm:[1,0,3,2] {DPPALL}")
        A(f"v_cvt_pk_bf16_f32 v{dst}, v{src}, v{dst}")

    def red4_to_lds(waddr, ldsoff):
        A(f"v_permlane32_swap_b32 v{Z}, v{Z+2}")
        A(f"v_permlane32_swap_b32 v{Z+1}, v{Z+3}")
        A(f"v_add_f32 v{Z}, v{Z}, v{Z+2}")
        A(f"v_add_f32 v{Z+1}, v{Z+1}, v{Z+3}")
        A(f"v_permlane16_swap_b32 v{Z}, v{Z+1}")
        A(f"v_add_f32 v{Z}, v{Z}, v{Z+1}")
        row_red("v_add_f32", Z, (8,))
        A(f"ds_write_b32 v{waddr}, v{Z} offset:{L_GP+ldsoff}")
        A("s_waitcnt lgkmcnt(0)")
        A("s_barrier")

    def read4_from_lds(addr):
        for k in range(2):
            A(f"ds_read2_b32 {v2(Z+2*k)}, v{addr} offset0:{64*k} offset1:{64*k+32}")
        A("s_waitcnt lgkmcnt(0)")
        A(f"v_add_f32 v{Z}, v{Z}, v{Z+1}")
        A(f"v_add_f32 v{Z+2}, v{Z+2}, v{Z+3}")

    def common_addr():
        A(f"v_and_b32 v{vA3}, 31, v{vL}")
        A(f"v_lshlrev_b32 v{vC4}, 2, v{vA3}")
        A(f"v_lshlrev_b32 v{vA3}, 5, v{vA3}")
        A(f"v_lshrrev_b32 v{vT}, 5, v{vL}")
        A(f"v_lshl_add_u32 v{vA3}, v{vT}, 4, v{vA3}")
        A(f"v_lshrrev_b32 v{vA1}, 3, v{vL}")
        A(f"v_lshlrev_b32 v{vA1}, 12, v{vA1}")
        A(f"v_and_b32 v{vT+1}, 7, v{vL}")
        A(f"v_lshl_add_u32 v{vA1}, v{vT+1}, 4, v{vA1}")
        A(f"v_lshlrev_b32 v{vLW}, 4, v{vT+1}")
        A(f"v_lshl_add_u32 v{vLW}, v{vGq}, 2, v{vLW}")
        A(f"s_lshl_b32 s{sT0}, s{sHW}, 7")
        A(f"v_add_u32 v{vLW}, s{sT0}, v{vLW}")

    def pretouch(items):
        if not opt.get("pretouch", False):
            return
        lds_wait(L_PRGV, 8)
        A("s_mov_b32 exec_lo, 1")
        A("s_mov_b32 exec_hi, 1")
        for k, (va, rs, so) in enumerate(items):
            if isinstance(so, tuple):
                A(f"s_add_u32 s{sT0}, s{so[0]}, {so[1]}")
            else:
                A(f"s_mov_b32 s{sT0}, {hex(so)}")
            A(f"buffer_load_dword v{Z+k}, v{va}, {srd(rs)}, s{sT0} offen")
        A("s_mov_b64 exec, -1")
        A("s_waitcnt vmcnt(0)")

    WS_PT = [(vZ, rWS, 0x1f0000 - 0x1000 + 0x100000), (vZ, rWS, 0x3f8000), (vZ, rWS, 0x20000)]

    def service(name):
        cks = opt.get("cks", [])
        if cks:
            A(f"s_cmp_lg_u32 s{sHW}, 1")
            A(f"s_cbranch_scc1 L_pace_{name}")
            mk_srd(rK, 36, 256)
            thr = opt.get("thr", [64, 160, 224])
            for k in range(len(cks)):
                lds_wait(L_CK + 4 * k, 8, opt.get("ckn", 2))
                A(f"v_mov_b32 v{Z}, 1")
                A("s_mov_b64 exec, 1")
                A(f"buffer_atomic_add v{Z}, v{vZ}, {srd(rK)}, 0 offen offset:{64*k} sc0 sc1")
                A("s_waitcnt vmcnt(0)")
                A(f"v_readfirstlane_b32 s{sT1}, v{Z}")
                A(f"s_mov_b32 s{sT2}, 1")
                for q, t in enumerate(thr):
                    A(f"s_cmp_ge_u32 s{sT1}, {t}")
                    A(f"s_cselect_b32 s{sT2}, {q+2}, s{sT2}")
                A(f"v_mov_b32 v{Z}, s{sT2}")
                A(f"ds_write_b32 v{vZ}, v{Z} offset:{L_LVL}")
                A("s_mov_b64 exec, -1")
            A.label(f"L_pace_{name}")
        A(f"s_cmp_lg_u32 s{sHW}, 0")
        A(f"s_cbranch_scc1 L_svc_{name}")
        X = Z
        lds_wait(L_PRGK, 8)
        A(f"s_lshl_b32 s{sT1}, s{sG}, 12")
        A(f"v_add_u32 v{vT+4}, s{sT1}, v{vOV}")
        poll(X, vT + 4, [WS_Q + i * 1024 for i in range(4)], sT16, 0xffff, X + 16, sleep=opt.get("sleepq", 8))
        A(f"v_lshrrev_b32 v{vT+1}, 5, v{vL}")
        A(f"v_mul_u32_u24 v{vT+1}, 272, v{vT+1}")
        A(f"v_and_b32 v{vT+2}, 31, v{vL}")
        A(f"v_lshl_add_u32 v{vT+1}, v{vT+2}, 3, v{vT+1}")
        for i in range(4):
            A(f"v_perm_b32 v{X+16+2*i}, v{X+4*i+1}, v{X+4*i}, s{sPHI}")
            A(f"v_perm_b32 v{X+16+2*i+1}, v{X+4*i+3}, v{X+4*i+2}, s{sPHI}")
            A(f"ds_write_b64 v{vT+1}, {v2(X+16+2*i)} offset:{L_Q+i*2*272}")
        lds_setflag(L_FLAGQ)
        stamp(2)
        lds_wait(L_CNTS, 4, 4)
        Y = Z
        A(f"v_and_b32 v{vT}, 7, v{vL}")
        A(f"v_lshlrev_b32 v{vT}, 3, v{vT}")
        A(f"v_lshrrev_b32 v{vT+1}, 3, v{vL}")
        A(f"v_lshl_add_u32 v{vT}, v{vT+1}, 7, v{vT}")
        for g in range(2):
            A(f"ds_read_b64 {v2(Y+2*g)}, v{vT} offset:{L_SP+64*g}")
        A("s_waitcnt lgkmcnt(0)")
        MM, LL, TT = vT + 2, vT + 3, Y + 6
        A(f"v_max_f32 v{MM}, v{Y}, v{Y+2}")
        row_red("v_max_f32", MM, (8,))
        xrow_red("v_max_f32", MM, TT)
        for g in range(2):
            A(f"v_sub_f32 v{Y+2*g}, v{Y+2*g}, v{MM}")
            A(f"v_mul_f32 v{Y+2*g}, s{sLOG2E}, v{Y+2*g}")
            A(f"v_exp_f32 v{Y+2*g}, v{Y+2*g}")
        A(f"v_mul_f32 v{LL}, v{Y}, v{Y+1}")
        A(f"v_fmac_f32 v{LL}, v{Y+2}, v{Y+3}")
        row_red("v_add_f32", LL, (8,))
        xrow_red("v_add_f32", LL, TT)
        A(f"v_or_b32 v{MM}, s{sT10}, v{MM}")
        tag10(LL)
        A(f"v_lshlrev_b32 v{vT}, 3, v{vL}")
        A(f"s_lshl_b32 s{sT0}, s{sJ}, 6")
        A(f"s_add_u32 s{sT0}, s{sT0}, {WS_S}")
        A("s_mov_b64 exec, 0xff")
        A(f"buffer_store_dwordx2 {v2(MM)}, v{vT}, {srd(rWS)}, s{sT0} offen sc1")
        A("s_mov_b64 exec, -1")
        lds_wait(L_PRGV, 8)
        Dd = Z
        TP = Z + 16
        poll(Dd, vT + 4, [WS_S + i * 1024 for i in range(4)], sT10, 0x3ff, TP, sleep=opt.get("sleeps", 8))
        for i in range(16):
            A(f"v_and_b32 v{Dd+i}, s{sM10}, v{Dd+i}")
        Yy = TP
        Tt = TP + 4
        M0, M1, L0, L1 = Yy, Yy + 2, Yy + 1, Yy + 3
        for (Mx, o) in ((M0, 0), (M1, 2)):
            A(f"v_max_f32 v{Mx}, v{Dd+o}, v{Dd+4+o}")
            A(f"v_max3_f32 v{Mx}, v{Mx}, v{Dd+8+o}, v{Dd+12+o}")
        for Mx in (M0, M1):
            row_red("v_max_f32", Mx, (8, 4))
            xrow_red("v_max_f32", Mx, Tt)
        for (Mx, Lx, o) in ((M0, L0, 0), (M1, L1, 2)):
            for i in range(4):
                r = Dd + 4 * i + o
                A(f"v_sub_f32 v{r}, v{r}, v{Mx}")
                A(f"v_mul_f32 v{r}, s{sLOG2E}, v{r}")
                A(f"v_exp_f32 v{r}, v{r}")
            A(f"v_mul_f32 v{Lx}, v{Dd+o}, v{Dd+o+1}")
            for i in range(1, 4):
                A(f"v_fmac_f32 v{Lx}, v{Dd+4*i+o}, v{Dd+4*i+o+1}")
        for Lx in (L0, L1):
            row_red("v_add_f32", Lx, (8, 4))
            xrow_red("v_add_f32", Lx, Tt)
            A(f"v_rcp_f32 v{Lx}, v{Lx}")
        A(f"v_and_b32 v{vT}, 3, v{vL}")
        A(f"v_lshlrev_b32 v{vT}, 4, v{vT}")
        A(f"ds_write_b128 v{vT}, {v4(Yy)} offset:{L_SG}")
        lds_setflag(L_FLAGS)
        stamp(7)
        A.label(f"L_svc_{name}")
        A.vm = []

    A(f"s_cmp_ge_u32 s{sA}, 30")
    A("s_cbranch_scc1 L_roleR")
    A(f"s_cmp_ge_u32 s{sA}, 16")
    A("s_cbranch_scc1 L_roleM")

    A("s_setprio 3")
    A(f"s_lshl_b32 s{sT0}, s{sG}, 5")
    A(f"s_add_u32 s{sRI}, s{sRI}, s{sT0}")
    mk_srd(rW1, 22, 0x800000)
    XR = vWa + 64
    A(f"v_lshlrev_b32 v{vT}, 5, v{vL}")
    A(f"buffer_load_dwordx4 {v4(XR)}, v{vT}, {srd(rX)}, 0 offen", "x")
    A(f"buffer_load_dwordx4 {v4(XR+4)}, v{vT}, {srd(rX)}, 0 offen offset:16", "x")
    A(f"v_lshrrev_b32 v{vT+1}, 2, v{vL}")
    A(f"v_lshlrev_b32 v{vT+1}, 4, v{vT+1}")
    A(f"s_lshl_b32 s{sT0}, s{sHW}, 8")
    A(f"v_add_u32 v{vT+1}, s{sT0}, v{vT+1}")
    A(f"v_lshlrev_b32 v{vT+2}, 1, v{vT+1}")
    stq = 8 if opt.get("stagq", True) else 0
    A(f"s_and_b32 s{sT2}, s{sRI}, 1")
    A(f"s_mul_i32 s{sT3}, s{sT2}, {2*stq}")
    A(f"s_sub_u32 s{sT0}, 16, s{sT3}")
    A(f"buffer_load_dwordx4 {v4(XR+8)}, v{vT+2}, {srd(rX)}, s{sT3} offen", "x")
    A(f"buffer_load_dwordx4 {v4(XR+12)}, v{vT+2}, {srd(rX)}, s{sT0} offen", "x")
    A(f"v_lshlrev_b32 v{vT+2}, 13, v{vT+1}")
    A(f"v_and_b32 v{vT+3}, 3, v{vL}")
    A(f"v_lshl_add_u32 v{vT+2}, v{vT+3}, 4, v{vT+2}")
    A(f"s_lshl_b32 s{sT1}, s{sRI}, 6")
    A(f"s_mul_i32 s{sT2}, s{sT2}, {stq*8192}")
    A(f"s_sub_u32 s{sT3}, s{sT1}, s{sT2}")
    A(f"s_add_u32 s{sT1}, s{sT1}, s{sT2}")
    for i in range(16):
        A(f"s_add_u32 s{sT0}, s{sT3 if (i & 8) else sT1}, {i*8192}")
        A(f"buffer_load_dwordx4 {v4(vWa+4*i)}, v{vT+2}, {srd(rW1)}, s{sT0} offen{ntw}", f"wq{i//2}")
        if i == 3:
            A("s_barrier")
    lds_inc(L_CNTB)
    mk_srd(rW2, 24, 0x800000)
    mk_srd(rW3, 32, 3584 * 1024 * 2)
    A.wait_vm("x")
    F = XR + 16
    for i in range(8):
        unpack(F + 2 * i, F + 2 * i + 1, XR + i)
    MB, RD = XR + 32, XR + 33
    ln_stats([F + i for i in range(16)], XR + 34, XR + 35, XR + 36, MB, RD)
    XP = XR + 40
    for p in range(8):
        unpack(XR + 38, XR + 39, XR + 8 + p)
        ln_apply_pair(XP + p, XR + 38, XR + 39, MB, RD)
    for p in range(8):
        A.wait_vm(f"wq{p}")
        for t in range(4):
            a = vWa + (2 * p) * 4 + t
            b = vWa + (2 * p + 1) * 4 + t
            A(f"v_perm_b32 v{Z+8+2*t}, v{b}, v{a}, s{sPLO}")
            A(f"v_perm_b32 v{Z+8+2*t+1}, v{b}, v{a}, s{sPHI}")
        for c in range(8):
            src = "0" if p == 0 else f"v{Z+c}"
            A(f"v_dot2_f32_bf16 v{Z+c}, v{Z+8+c}, v{XP+p}, {src}")
    red8_rows(Z)
    for r in (8, 4):
        for c in range(2):
            A(f"v_add_f32_dpp v{Z+c}, v{Z+c}, v{Z+c} row_ror:{r} {DPPALL}")
    A(f"v_and_b32 v{vT+3}, 3, v{vL}")
    A(f"v_lshlrev_b32 v{vT+3}, 5, v{vT+3}")
    A(f"v_lshl_add_u32 v{vT+3}, v{vGq}, 3, v{vT+3}")
    A(f"s_lshl_b32 s{sT0}, s{sHW}, 7")
    A(f"v_add_u32 v{vT+3}, s{sT0}, v{vT+3}")
    A(f"ds_write_b64 v{vT+3}, {v2(Z)} offset:{L_QPART}")
    A("s_waitcnt lgkmcnt(0)")
    tags()
    lds_arrive(L_CNTQ, sT0)
    A(f"s_cmp_lg_u32 s{sT0}, 3")
    A("s_cbranch_scc1 L_qpub_done")
    A("s_mov_b64 exec, 0xff")
    for w in range(4):
        A(f"ds_read_b128 {v4(Z+4*w)}, v{vOV} offset:{L_QPART+128*w}")
    A("s_waitcnt lgkmcnt(0)")
    for st in (2, 1):
        for w in range(st):
            for c in range(4):
                A(f"v_add_f32 v{Z+4*w+c}, v{Z+4*w+c}, v{Z+4*(w+st)+c}")
    for c in range(4):
        rbf(Z + c, Z + c)
        A(f"v_or_b32 v{Z+c}, s{sT16}, v{Z+c}")
    A(f"s_lshl_b32 s{sT0}, s{sRI}, 7")
    A(f"s_add_u32 s{sT0}, s{sT0}, {WS_Q}")
    A(f"buffer_store_dwordx4 {v4(Z)}, v{vOV}, {srd(rWS)}, s{sT0} offen sc1")
    A("s_mov_b64 exec, -1")
    A.label("L_qpub_done")
    A.vm = []
    stamp(1)
    A("s_setprio 0")
    common_addr()
    A(f"v_lshrrev_b32 v{vA2}, 5, v{vL}")
    A(f"v_lshlrev_b32 v{vA2}, 20, v{vA2}")
    A(f"v_lshl_add_u32 v{vA2}, v{vC4}, 2, v{vA2}")
    A(f"s_lshl_b32 s{sKB}, s{sG}, 21")
    A(f"s_and_b32 s{sT2}, s{sRI}, 31")
    A(f"s_lshl_b32 s{sT2}, s{sT2}, 13")
    A(f"s_add_u32 s{sKB}, s{sKB}, s{sT2}")
    A(f"s_lshl_b32 s{sT2}, s{sHW}, 9")
    A(f"s_add_u32 s{sKB}, s{sKB}, s{sT2}")
    A(f"s_lshl_b32 s{sPUB}, s{sX_}, 4")
    A(f"s_add_u32 s{sPUB}, s{sPUB}, s{sA}")
    A(f"s_lshl_b32 s{sPUB}, s{sPUB}, 12")
    A(f"s_lshl_b32 s{sT1}, s{sHW}, 10")
    A(f"s_add_u32 s{sPUB}, s{sPUB}, s{sT1}")
    A(f"s_add_u32 s{sPUB}, s{sPUB}, {WS_B}")
    A(f"s_lshl_b32 s{sT1}, s{sG}, 18")
    A(f"s_lshl_b32 s{sT2}, s{sHW}, 16")
    A(f"s_add_u32 s{sT1}, s{sT1}, s{sT2}")
    A(f"s_and_b32 s{sT2}, s{sRI}, 31")
    A(f"s_lshl_b32 s{sT2}, s{sT2}, 7")
    A(f"s_add_u32 s{sT1}, s{sT1}, s{sT2}")
    A(f"v_add_u32 v{vGA}, s{sT1}, v{vA1}")
    A(f"v_and_b32 v{vLR}, 3, v{vN}")
    A(f"v_lshlrev_b32 v{vLR}, 3, v{vLR}")
    A(f"v_lshrrev_b32 v{vT}, 5, v{vL}")
    A(f"v_lshl_add_u32 v{vLR}, v{vT}, 2, v{vLR}")
    A(f"v_lshrrev_b32 v{vT+1}, 2, v{vN}")
    A(f"v_add_u32 v{vLR}, v{vLR}, v{vT+1}")
    A(f"v_lshlrev_b32 v{vLR}, 2, v{vLR}")
    A(f"v_add_u32 v{vLR}, {L_GP}, v{vLR}")
    A(f"v_lshl_add_u32 v{vLE}, v{vT}, 4, v{vN}")
    A(f"v_lshlrev_b32 v{vLE}, 2, v{vLE}")
    A(f"v_add_u32 v{vLE}, {L_GP+1024}, v{vLE}")
    sDI = 16
    A(f"s_mul_i32 s{sDI}, s{sX_}, 14")
    A(f"s_add_u32 s{sDI}, s{sDI}, s{sA}")
    A(f"v_lshrrev_b32 v{vGE}, 3, v{vL}")
    A(f"v_mul_u32_u24 v{vGE}, 28672, v{vGE}")
    A(f"v_and_b32 v{vT+1}, 7, v{vL}")
    A(f"v_lshl_add_u32 v{vGE}, v{vT+1}, 4, v{vGE}")
    A(f"s_and_b32 s{sT0}, s{sHW}, 1")
    A(f"s_mul_i32 s{sT0}, s{sT0}, {8*28672}")
    A(f"s_lshr_b32 s{sT1}, s{sHW}, 1")
    A(f"s_mul_i32 s{sT1}, s{sT1}, 14336")
    A(f"s_add_u32 s{sT0}, s{sT0}, s{sT1}")
    A(f"s_lshl_b32 s{sT1}, s{sDI}, 7")
    A(f"s_add_u32 s{sT0}, s{sT0}, s{sT1}")
    A(f"v_add_u32 v{vGE}, s{sT0}, v{vGE}")
    zero_acc()
    service("W")
    A(f"s_lshl_b32 s{sT3}, s{sDI}, 16")
    pretouch(WS_PT + [(vA2, rW2, (sKB, h * 128 * 2048)) for h in range(4)] + [(vZ, rW3, (sT3, 0)), (vZ, rOUT, 0)])
    lw = opt.get("late_wo", "flag")
    if lw == "flag":
        lds_wait(L_FLAGW, 4, opt.get("wcnt", 4))
    elif lw == "p":
        lds_wait(L_CNTP, 2, 4)
    rowsplit_loads(vWb, rW2, sKB, lambda i: (i >> 2) * 128 * 2048 + (i & 3) * 2048, range(16), opt.get("DL", 6), None)
    A(f"v_lshrrev_b32 v{vA2}, 5, v{vL}")
    A(f"v_lshlrev_b32 v{vA2}, 15, v{vA2}")
    A(f"v_lshl_add_u32 v{vA2}, v{vC4}, 2, v{vA2}")
    A(f"s_lshl_b32 s{sKB}, s{sDI}, 16")
    A(f"s_lshl_b32 s{sT2}, s{sHW}, 9")
    A(f"s_add_u32 s{sKB}, s{sKB}, s{sT2}")
    perm_to(vWa, vWb, 16)
    stamp(6)
    lds_wait(L_CNTO, 2)
    poll(Z, vGA, [WS_A, WS_A + 32768], sT10, 0x3ff, Z + 8, sleep=opt.get("sleepA", 0))
    for i in range(8):
        A(f"v_and_b32 v{Z+i}, s{sM10}, v{Z+i}")
    for c in range(4):
        A(f"v_add_f32 v{Z+c}, v{Z+c}, v{Z+4+c}")
    red4_to_lds(vLW, 0)
    stamp(12)
    read4_from_lds(vLR)
    A(f"v_add_f32 v{Z}, v{Z}, v{Z+2}")
    pack_pairs(Z, Z + 4)
    gemv_publish(vWa, 8, lambda p: (Z + 4, 2 * p))
    A(f"s_cmp_ge_u32 s{sA}, 14")
    A("s_cbranch_scc1 L_reduce")
    vWd = vWa + 64
    rowsplit_loads(vWb, rW3, sKB, lambda i: i * 2048, range(16), opt.get("DLD", 0), None)
    A(f"s_add_u32 s{sPUB}, s{sPUB}, {WS_D - WS_B}")
    zero_acc()
    perm_to(vWd, vWb, 16)
    stamp(9)
    poll(Z, vGE, [WS_E], sT10, 0x3ff, Z + 8, sleep=opt.get("sleepE", 0))
    for i in range(4):
        A(f"v_and_b32 v{Z+i}, s{sM10}, v{Z+i}")
    red4_to_lds(vLW, 1024)
    stamp(10)
    read4_from_lds(vLE)
    Gv, Uv = Z, Z + 2
    rbf(Gv, Gv)
    rbf(Uv, Uv)
    T1, T2 = Z + 1, Z + 3
    A(f"v_mul_f32 v{T1}, v{Gv}, v{Gv}")
    A(f"v_mul_f32 v{T1}, v{T1}, v{Gv}")
    A(f"v_mov_b32 v{T2}, v{Gv}")
    A(f"v_fmac_f32 v{T2}, 0x3d372713, v{T1}")
    A(f"v_mul_f32 v{T2}, 0xc0135761, v{T2}")
    A(f"v_exp_f32 v{T2}, v{T2}")
    A(f"v_add_f32 v{T2}, 1.0, v{T2}")
    A(f"v_rcp_f32 v{T2}, v{T2}")
    A(f"v_mul_f32 v{Gv}, v{Gv}, v{T2}")
    rbf(Gv, Gv)
    A(f"v_mul_f32 v{Gv}, v{Gv}, v{Uv}")
    pack_pairs(Gv, Z + 4)
    gemv_publish(vWd, 8, lambda p: (Z + 4, 2 * p))
    stamp(14)
    A("s_branch L_end")

    A.label("L_roleR")
    A.vm = []
    A("s_barrier")
    A("s_waitcnt lgkmcnt(0)")
    tags()
    common_addr()
    service("R")
    pretouch(WS_PT + [(vZ, rOUT, 0), (vZ, rX, 0)])
    lds_wait(L_CNTO, 8)
    A.label("L_reduce")
    A.vm = []
    A(f"s_lshl_b32 s{sRID}, s{sX_}, 2")
    A(f"s_and_b32 s{sT0}, s{sA}, 1")
    A(f"s_add_u32 s{sRID}, s{sRID}, s{sT0}")
    A(f"s_lshr_b32 s{sT0}, s{sA}, 4")
    A(f"s_lshl_b32 s{sT0}, s{sT0}, 1")
    A(f"s_add_u32 s{sRID}, s{sRID}, s{sT0}")
    A(f"v_lshrrev_b32 v{vT+3}, 1, v{vC4}")
    A(f"s_lshl_b32 s{sT0}, s{sRID}, 6")
    A(f"buffer_load_ushort v{vX0}, v{vT+3}, {srd(rX)}, s{sT0} offen")
    A(f"s_lshl_b32 s{sT0}, s{sHW}, 17")
    A(f"s_lshl_b32 s{sT1}, s{sRID}, 7")
    A(f"s_add_u32 s{sT0}, s{sT0}, s{sT1}")
    A(f"v_add_u32 v{vA1}, s{sT0}, v{vA1}")
    A(f"v_lshrrev_b32 v{vT}, 5, v{vL}")
    A(f"v_lshl_add_u32 v{vT+2}, v{vT}, 12, v{vC4}")
    A(f"s_lshl_b32 s{sT3}, s{sHW}, 13")
    A(f"s_add_u32 s{sT3}, s{sT3}, s{sT1}")
    A(f"s_add_u32 s{sT3}, s{sT3}, {WS_H}")

    def reduce32(base, execs, ldsoff, first, sl):
        A(f"v_add_u32 v{vLR}, {L_GP+ldsoff}, v{vC4}")
        poll(Z, vA1, [base + i * 32768 for i in range(4)], sT10, 0x3ff, Z + 16, execs, sleep=sl)
        if first:
            A(f"v_lshlrev_b32 v{vX0}, 16, v{vX0}")
        for i in range(16):
            A(f"v_and_b32 v{Z+i}, s{sM10}, v{Z+i}")
        for c in range(4):
            A(f"v_add_f32 v{Z+c}, v{Z+c}, v{Z+4+c}")
            A(f"v_add_f32 v{Z+8+c}, v{Z+8+c}, v{Z+12+c}")
        for c in range(4):
            A(f"v_add_f32 v{Z+c}, v{Z+c}, v{Z+8+c}")
        red4_to_lds(vLW, ldsoff)
        read4_from_lds(vLR)
        A(f"v_add_f32 v{Z}, v{Z}, v{Z+2}")
        rbf(Z, Z)
        A(f"v_add_f32 v{vX0}, v{vX0}, v{Z}")
        rbf(vX0, vX0)

    reduce32(WS_B, None, 1024, True, opt.get("sleepB", 0))
    A(f"v_or_b32 v{Z}, s{sT16}, v{vX0}")
    A(f"buffer_store_dword v{Z}, v{vT+2}, {srd(rWS)}, s{sT3} offen sc1")
    stamp(13)
    reduce32(WS_D, {1: 0xffff, 3: 0xffff}, 2048, False, opt.get("sleepD", 0))
    A(f"s_cmp_lg_u32 s{sHW}, 0")
    A("s_cbranch_scc1 L_end")
    A(f"v_lshrrev_b32 v{Z}, 16, v{vX0}")
    A(f"s_lshl_b32 s{sT0}, s{sRID}, 6")
    A("s_mov_b64 exec, 0xffffffff")
    A(f"buffer_store_short v{Z}, v{vT+3}, {srd(rOUT)}, s{sT0} offen")
    A("s_mov_b64 exec, -1")
    stamp(15)
    A(f"s_cmp_lg_u32 s{sRID}, 0")
    A("s_cbranch_scc1 L_end")
    A(f"v_mov_b32 v{Z}, s{sE}")
    A("s_mov_b64 exec, 1")
    A(f"buffer_store_dword v{Z}, v{vZ}, {srd(rWS)}, 0 offen offset:{WS_EPOCH}")
    A("s_mov_b64 exec, -1")
    A("s_branch L_end")

    A.label("L_roleM")
    A.vm = []
    A(f"s_mul_i32 s{sRI}, s{sX_}, 14")
    A(f"s_add_u32 s{sRI}, s{sRI}, s{sA}")
    A(f"s_sub_u32 s{sRI}, s{sRI}, 16")
    A(f"s_cmp_lt_u32 s{sHW}, 2")
    A(f"s_cselect_b32 s{rW1}, s28, s30")
    A(f"s_cselect_b32 s{rW1+1}, s29, s31")
    A(f"s_and_b32 s{rW1+1}, s{rW1+1}, 0xffff")
    A(f"s_mov_b32 s{rW1+2}, {hex(1024*3584*2)}")
    A(f"s_mov_b32 s{rW1+3}, 0x20000")
    A("s_barrier")
    common_addr()
    sKC, sCG = 16, 17
    if opt.get("mmap", 1) == 0:
        A(f"s_and_b32 s{sKC}, s{sRI}, 15")
        A(f"s_lshr_b32 s{sCG}, s{sRI}, 4")
    else:
        A(f"s_sub_u32 s{sCG}, s{sA}, 16")
        A(f"s_lshl_b32 s{sKC}, s{sX_}, 1")
        A(f"s_cmp_ge_u32 s{sCG}, 7")
        A(f"s_cselect_b32 s{sT0}, 7, 0")
        A(f"s_cselect_b32 s{sT1}, 1, 0")
        A(f"s_sub_u32 s{sCG}, s{sCG}, s{sT0}")
        A(f"s_add_u32 s{sKC}, s{sKC}, s{sT1}")
    A(f"v_lshrrev_b32 v{vA2}, 5, v{vL}")
    A(f"v_mul_u32_u24 v{vA2}, {32*7168}, v{vA2}")
    A(f"v_lshl_add_u32 v{vA2}, v{vC4}, 2, v{vA2}")
    A(f"s_mul_i32 s{sKB}, s{sKC}, {64*7168}")
    A(f"s_lshl_b32 s{sT2}, s{sCG}, 10")
    A(f"s_add_u32 s{sKB}, s{sKB}, s{sT2}")
    A(f"s_and_b32 s{sT3}, s{sHW}, 1")
    A(f"s_lshl_b32 s{sT2}, s{sT3}, 9")
    A(f"s_add_u32 s{sKB}, s{sKB}, s{sT2}")
    gu1 = opt.get("gu1", 0)

    def gu_loads(rng, d):
        for i in rng:
            A(f"s_add_u32 s{sT0}, s{sKB}, {i*7168}")
            throttle(d)
            A(f"buffer_load_dwordx4 {v4(vWa+4*i)}, v{vA2}, {srd(rW1)}, s{sT0} offen{ntw}", f"gu{i//8}")

    gu_loads(range(gu1), opt.get("DG1", 2))
    A(f"s_mul_i32 s{sPUB}, s{sKC}, 28672")
    A(f"s_lshr_b32 s{sT1}, s{sHW}, 1")
    A(f"s_mul_i32 s{sT1}, s{sT1}, 14336")
    A(f"s_add_u32 s{sPUB}, s{sPUB}, s{sT1}")
    A(f"s_lshl_b32 s{sT1}, s{sCG}, 11")
    A(f"s_add_u32 s{sPUB}, s{sPUB}, s{sT1}")
    A(f"s_lshl_b32 s{sT1}, s{sT3}, 10")
    A(f"s_add_u32 s{sPUB}, s{sPUB}, s{sT1}")
    A(f"s_add_u32 s{sPUB}, s{sPUB}, {WS_E}")
    A(f"s_lshl_b32 s{sT1}, s{sX_}, 12")
    A(f"s_lshl_b32 s{sT2}, s{sHW}, 10")
    A(f"s_add_u32 s{sT2}, s{sT1}, s{sT2}")
    A(f"v_add_u32 v{vGA}, s{sT2}, v{vOV}")
    A(f"v_and_b32 v{vGE}, 7, v{vL}")
    A(f"v_lshlrev_b32 v{vGE}, 4, v{vGE}")
    A(f"v_lshrrev_b32 v{vT}, 5, v{vL}")
    A(f"v_lshl_add_u32 v{vGE}, v{vT}, 7, v{vGE}")
    A(f"s_lshl_b32 s{sT2}, s{sKC}, 8")
    A(f"s_add_u32 s{sT2}, s{sT1}, s{sT2}")
    A(f"v_add_u32 v{vGE}, s{sT2}, v{vGE}")
    A(f"s_lshl_b32 s{sT0}, s{sHW}, 3")
    A(f"v_mov_b32 v{vLW}, s{sT0}")
    zero_acc()
    A("s_waitcnt vmcnt(0) lgkmcnt(0)")
    stamp(1)
    tags()
    if gu1:
        perm_inplace(vWa, gu1, Z)
    service("M")
    pretouch(WS_PT + [(vA2, rW1, (sKB, i * 7168)) for i in (0, 8, 16, 24, 31)])
    ga = opt.get("gu_after", "p")
    if ga == "flag":
        lds_wait(L_FLAGW, 4, opt.get("wcnt", 4))
    elif ga == "o":
        lds_wait(L_CNTO, 4, 4)
    else:
        lds_wait(L_CNTP, 4, 4)
    gu2 = gu1
    if ga == "g":
        gu2 = opt.get("gu2", gu1)
        gu_loads(range(gu1, gu2), opt.get("DLG", 0))
        A(f"s_cmp_lg_u32 s{sHW}, 0")
        A("s_cbranch_scc1 L_gwait")
        svm = list(A.vm)
        A(f"v_lshlrev_b32 v{vT+4}, 12, v{vL}")
        A(f"s_lshl_b32 s{sT1}, s{sG}, 18")
        A(f"s_lshl_b32 s{sT2}, s{sC}, 6")
        A(f"s_add_u32 s{sT1}, s{sT1}, s{sT2}")
        A(f"v_add_u32 v{vT+4}, s{sT1}, v{vT+4}")
        poll(Z, vT + 4, [WS_A], sT10, 0x3ff, Z + 8, sleep=opt.get("sleepG", 6))
        lds_setflag(L_FLAGG)
        A.label("L_gwait")
        A.vm = svm
        lds_wait(L_FLAGG, 2)
    gu_loads(range(gu2, 32), opt.get("DLG", 0))
    for q in range(gu1 // 8, 4):
        A.wait_vm(f"gu{q}")
        lo = max(gu1, 8 * q)
        perm_inplace(vWa + 4 * lo, 8 * q + 8 - lo, Z)
    stamp(6)
    poll(Z, [vGA, vGE], [WS_H, WS_H], sT16, 0xffff, Z + 8, sleep=opt.get("sleepC", 0))
    stamp(13)
    for i in range(8):
        A(f"v_and_b32 v{Z+i}, s{sM16}, v{Z+i}")
    A(f"v_readfirstlane_b32 s{sT1}, v{Z}")
    S1, S2, TT = Z + 8, Z + 9, Z + 10
    for i in range(4):
        A(f"v_subrev_f32 v{Z+i}, s{sT1}, v{Z+i}")
    A(f"v_add_f32 v{S1}, v{Z}, v{Z+1}")
    A(f"v_mul_f32 v{S2}, v{Z}, v{Z}")
    A(f"v_add_f32 v{TT}, v{Z+2}, v{Z+3}")
    A(f"v_fmac_f32 v{S2}, v{Z+1}, v{Z+1}")
    A(f"v_add_f32 v{S1}, v{S1}, v{TT}")
    A(f"v_fmac_f32 v{S2}, v{Z+2}, v{Z+2}")
    A(f"v_fmac_f32 v{S2}, v{Z+3}, v{Z+3}")
    A(f"v_permlane32_swap_b32 v{S1}, v{S2}")
    A(f"v_add_f32 v{S1}, v{S1}, v{S2}")
    row_red("v_add_f32", S1, (8, 4, 2, 1))
    A(f"v_mov_b32 v{TT}, v{S1}")
    A(f"v_permlane16_swap_b32 v{TT}, v{S1}")
    A(f"v_add_f32 v{S1}, v{S1}, v{TT}")
    A(f"v_mov_b32 v{S2}, v{S1}")
    A(f"v_permlane32_swap_b32 v{S1}, v{S2}")
    A(f"v_mul_f32 v{TT}, 0x3b800000, v{S1}")
    A(f"v_fma_f32 v{S2}, -v{TT}, v{S1}, v{S2}")
    A(f"v_add_f32 v{S1}, s{sT1}, v{TT}")
    A(f"ds_write_b64 v{vLW}, {v2(S1)} offset:{L_LN}")
    A("s_waitcnt lgkmcnt(0)")
    A("s_barrier")
    A(f"ds_read_b128 {v4(Z+12)}, v{vZ} offset:{L_LN}")
    A(f"ds_read_b128 {v4(Z+16)}, v{vZ} offset:{L_LN+16}")
    A("s_waitcnt lgkmcnt(0)")
    MEAN, VAR = Z + 8, Z + 9
    A(f"v_add_f32 v{MEAN}, v{Z+12}, v{Z+14}")
    A(f"v_add_f32 v{TT}, v{Z+16}, v{Z+18}")
    A(f"v_add_f32 v{VAR}, v{Z+13}, v{Z+15}")
    A(f"v_add_f32 v{MEAN}, v{MEAN}, v{TT}")
    A(f"v_add_f32 v{Z+11}, v{Z+17}, v{Z+19}")
    A(f"v_mul_f32 v{MEAN}, 0x3e800000, v{MEAN}")
    A(f"v_add_f32 v{VAR}, v{VAR}, v{Z+11}")
    for k in range(4):
        A(f"v_sub_f32 v{Z+12+2*k}, v{Z+12+2*k}, v{MEAN}")
    A(f"v_mul_f32 v{TT}, v{Z+12}, v{Z+12}")
    for k in range(1, 4):
        A(f"v_fmac_f32 v{TT}, v{Z+12+2*k}, v{Z+12+2*k}")
    A(f"v_mul_f32 v{VAR}, 0x3a800000, v{VAR}")
    A(f"v_fmac_f32 v{VAR}, 0x3e800000, v{TT}")
    ln_finish(MEAN, VAR, Z + 10, Z + 11)
    ln_apply_pair(Z + 12, Z + 4, Z + 5, Z + 10, Z + 11)
    ln_apply_pair(Z + 13, Z + 6, Z + 7, Z + 10, Z + 11)
    stamp(14)
    gemv_publish(vWa, 16, lambda p: (Z + 12 + (p & 1), p >> 1))
    stamp(15)

    A.label("L_end")
    if stamps:
        A("s_mov_b64 exec, 1")
        A(f"s_lshl_b32 s{sT0}, s2, 3")
        A(f"s_add_u32 s{sT0}, s{sT0}, s{sW}")
        A(f"s_lshl_b32 s{sT0}, s{sT0}, 6")
        A(f"s_add_u32 s{sT0}, s{sT0}, {WS_STAMP}")
        for q in range(4):
            for k in range(4):
                A(f"v_mov_b32 v{vT+k}, s{sSTAMP+4*q+k}")
            A(f"buffer_store_dwordx4 {v4(vT)}, v{vZ}, {srd(rWS)}, s{sT0} offen offset:{16*q}")
            A("s_nop 2")
    A.label("L_exit")
    A("s_endpgm")
    A.raw('.section .rodata,"a"')
    A.raw(".p2align 6")
    A.raw(f".amdhsa_kernel {NAME}_kernel")
    A.raw("  .amdhsa_next_free_vgpr 256")
    A.raw("  .amdhsa_next_free_sgpr 102")
    A.raw("  .amdhsa_accum_offset 256")
    A.raw("  .amdhsa_group_segment_fixed_size 0")
    A.raw("  .amdhsa_kernarg_size 96")
    A.raw("  .amdhsa_user_sgpr_count 2")
    A.raw("  .amdhsa_user_sgpr_kernarg_segment_ptr 1")
    A.raw("  .amdhsa_system_sgpr_workgroup_id_x 1")
    A.raw("  .amdhsa_float_denorm_mode_32 3")
    A.raw(".end_amdhsa_kernel")
    return A.text()


if __name__ == "__main__":
    import json
    opt = json.loads(sys.argv[2]) if len(sys.argv) > 2 else {}
    out = sys.argv[1] if len(sys.argv) > 1 else "k.s"
    open(out, "w").write(gen(opt))
```

```python
import sys
from asmlib import Asm

NAME = "sequential_preLN__gqa_block_cached__glu_gated_geglu__decode"

HEADER = """; Kernarg layout for this problem (96 bytes, ptrs only, base s[0:1]):
"""

STAMP_NAMES = ["start", "qpub", "qgath", "kiss", "qrdy", "qk", "wland", "s_glob", "viss", "prdy", "pv", "apub",
               "hopA", "h", "hopC", "end"]

WS_EPOCH = 0x0
WS_Q = 0x1000
WS_S = 0x8000
WS_H = 0x10000
WS_A = 0x100000
WS_B = 0x200000
WS_D = 0x300000
WS_E = 0x380000
WS_STAMP = 0x400000
WS_SIZE = 0x500000

L_CNTQ, L_FLAGQ, L_CNTS, L_FLAGS = 0, 4, 8, 12
L_FLAGW = 16
L_CNTO = 20
L_CNTB = 24
L_CNTP = 28
L_PRGK, L_PRGV, L_FLAGG = 32, 36, 40
L_LVL = 44
L_CK = 48
L_Q = 0x200
L_SP = 0xC00
L_SG = 0x1400
L_LN = 0x1800
L_GP = 0x2000
L_QPART = 0x2C00
L_O = 0x3000
L_KV = 0x8000
NLDS = 3
LDS_BYTES = L_KV + 4 * NLDS * 8192

sW = 3
sX_, sA, sJ, sRI, sG, sC = 4, 5, 6, 7, 8, 9
sT16, sT10 = 10, 11
sPLO, sPHI = 12, 13
sM10, sM16 = 14, 15
rX, rK, rV, rW1, rW2, rW3, rOUT, rWS = 40, 44, 48, 52, 56, 60, 68, 72
sTO, sKB, sE, sLOG2E = 76, 77, 78, 79
sSTAMP = 80
sT0, sT1, sT2, sT3 = 96, 97, 98, 99
sP0, sP1 = 100, 101
sSCALE, sLDSB, sPUB, sHW = 64, 65, 66, 67

vL, vN, vGq, vOK, vOV, vM, vH, vZ = 0, 1, 2, 3, 4, 5, 6, 7
vT = 8
vQ = 16
vS = 32
vR = 96


def srd(r):
    return f"s[{r}:{r+3}]"


def v4(r):
    return f"v[{r}:{r+3}]"


def v2(r):
    return f"v[{r}:{r+1}]"


DPPALL = "row_mask:0xf bank_mask:0xf"


def gen(opt):
    A = Asm()
    stamps = opt.get("stamps", False)
    pol = lambda k, d: (" " + opt.get(k, d)).rstrip()
    ntq, nto, ntg, ntd = pol("pq", ""), pol("po", "nt"), pol("pg", "nt"), pol("pd", "nt")
    ntk, ntv = pol("pk", "nt"), pol("pv", "nt")
    D = opt.get("D", 5)
    DC = opt.get("DC", 7)
    DG = opt.get("DG", 1)

    def stamp(k):
        if not stamps:
            return
        A(f"s_memrealtime s[{sP0}:{sP1}]")
        A("s_waitcnt lgkmcnt(0)")
        A(f"s_mov_b32 s{sSTAMP+k}, s{sP0}")

    def mk_srd(r, ptr, size):
        A(f"s_mov_b32 s{r}, s{ptr}")
        A(f"s_and_b32 s{r+1}, s{ptr+1}, 0xffff")
        A(f"s_mov_b32 s{r+2}, {hex(size)}")
        A(f"s_mov_b32 s{r+3}, 0x20000")

    def rbf(dst, src):
        A(f"v_cvt_pk_bf16_f32 v{dst}, v{src}, v{src}")
        A(f"v_and_b32 v{dst}, s{sM16}, v{dst}")

    def row_red(op, x, rors):
        for r in rors:
            A(f"{op}_dpp v{x}, v{x}, v{x} row_ror:{r} {DPPALL}")

    def xrow_red(op, x, t):
        A(f"v_mov_b32 v{t}, v{x}")
        A(f"v_permlane16_swap_b32 v{t}, v{x}")
        A(f"{op} v{x}, v{x}, v{t}")
        A(f"v_mov_b32 v{t}, v{x}")
        A(f"v_permlane32_swap_b32 v{t}, v{x}")
        A(f"{op} v{x}, v{x}, v{t}")

    def wave_sum(x, t):
        row_red("v_add_f32", x, (8, 4, 2, 1))
        xrow_red("v_add_f32", x, t)

    def ln_finish(mean, var, out_mb, out_r):
        rbf(out_mb, mean)
        rbf(var, var)
        A(f"v_add_f32 v{var}, 0x3727c5ac, v{var}")
        rbf(var, var)
        A(f"v_sqrt_f32 v{var}, v{var}")
        rbf(var, var)
        A(f"v_rcp_f32 v{out_r}, v{var}")

    def ln_stats(vals, t0, t1, t2, out_mb, out_r):
        A(f"v_add_f32 v{t0}, v{vals[0]}, v{vals[1]}")
        A(f"v_add_f32 v{t1}, v{vals[2]}, v{vals[3]}")
        for i in range(4, 16, 2):
            A(f"v_add_f32 v{t0}, v{t0}, v{vals[i]}")
            A(f"v_add_f32 v{t1}, v{t1}, v{vals[i+1]}")
        A(f"v_add_f32 v{t0}, v{t0}, v{t1}")
        wave_sum(t0, t1)
        A(f"v_mul_f32 v{t0}, 0x3a800000, v{t0}")
        A(f"v_sub_f32 v{t1}, v{vals[0]}, v{t0}")
        A(f"v_mul_f32 v{t2}, v{t1}, v{t1}")
        for i in range(1, 16):
            A(f"v_sub_f32 v{t1}, v{vals[i]}, v{t0}")
            A(f"v_fmac_f32 v{t2}, v{t1}, v{t1}")
        wave_sum(t2, t1)
        A(f"v_mul_f32 v{t2}, 0x3a800000, v{t2}")
        ln_finish(t0, t2, out_mb, out_r)

    def ln_apply_pair(dst, a, b, mb, r):
        A(f"v_sub_f32 v{a}, v{a}, v{mb}")
        A(f"v_sub_f32 v{b}, v{b}, v{mb}")
        A(f"v_cvt_pk_bf16_f32 v{b}, v{a}, v{b}")
        A(f"v_lshlrev_b32 v{a}, 16, v{b}")
        A(f"v_and_b32 v{b}, s{sM16}, v{b}")
        A(f"v_mul_f32 v{a}, v{a}, v{r}")
        A(f"v_mul_f32 v{b}, v{b}, v{r}")
        A(f"v_cvt_pk_bf16_f32 v{dst}, v{a}, v{b}")

    def unpack(dlo, dhi, src):
        A(f"v_lshlrev_b32 v{dlo}, 16, v{src}")
        A(f"v_and_b32 v{dhi}, s{sM16}, v{src}")

    def perm_inplace(src, nrows, tmp):
        for p in range(nrows // 2):
            for t in range(4):
                a = src + (2 * p) * 4 + t
                b = src + (2 * p + 1) * 4 + t
                A(f"v_perm_b32 v{tmp+t}, v{b}, v{a}, s{sPHI}")
                A(f"v_perm_b32 v{a}, v{b}, v{a}, s{sPLO}")
            for t in range(4):
                A(f"v_mov_b32 v{src+(2*p+1)*4+t}, v{tmp+t}")

    def dots(acc, wp, xp, npairs):
        for p in range(npairs):
            for c in range(8):
                src = "0" if p == 0 else f"v{acc+c}"
                w = wp + (2 * p + (c & 1)) * 4 + (c >> 1)
                A(f"v_dot2_f32_bf16 v{acc+c}, v{w}, v{xp+p}, {src}")

    def red8_rows(acc):
        for c in range(4):
            A(f"v_permlane32_swap_b32 v{acc+c}, v{acc+c+4}")
        for c in range(4):
            A(f"v_add_f32 v{acc+c}, v{acc+c}, v{acc+c+4}")
        for c in range(2):
            A(f"v_permlane16_swap_b32 v{acc+c}, v{acc+c+2}")
        for c in range(2):
            A(f"v_add_f32 v{acc+c}, v{acc+c}, v{acc+c+2}")

    def tag10(r):
        A(f"v_add_u32 v{r}, 0x200, v{r}")
        A(f"v_and_or_b32 v{r}, v{r}, s{sM10}, v{vTAG}")

    def lds_wait(off, sl=2, atleast=1):
        lp = A.newlabel("ldsw")
        dn = A.newlabel("ldsd")
        A.label(lp)
        A(f"ds_read_b32 v{vT}, v{vZ} offset:{off}")
        A("s_waitcnt lgkmcnt(0)")
        A(f"v_readfirstlane_b32 s{sT0}, v{vT}")
        A(f"s_cmp_ge_u32 s{sT0}, {atleast}")
        A(f"s_cbranch_scc1 {dn}")
        A(f"s_sleep {sl}")
        A(f"s_sub_u32 s{sTO}, s{sTO}, 1")
        A(f"s_cmp_lg_u32 s{sTO}, 0")
        A(f"s_cbranch_scc1 {lp}")
        A("s_branch L_end")
        A.label(dn)

    def lds_arrive(off, dst_s):
        A(f"v_mov_b32 v{vT+1}, 1")
        A("s_mov_b64 exec, 1")
        A(f"ds_add_rtn_u32 v{vT}, v{vZ}, v{vT+1} offset:{off}")
        A("s_waitcnt lgkmcnt(0)")
        A(f"v_readfirstlane_b32 s{dst_s}, v{vT}")
        A("s_mov_b64 exec, -1")

    def lds_inc(off):
        A(f"v_mov_b32 v{vT+1}, 1")
        A("s_mov_b64 exec, 1")
        A(f"ds_add_u32 v{vZ}, v{vT+1} offset:{off}")
        A("s_mov_b64 exec, -1")

    def lds_setflag(off):
        A(f"v_mov_b32 v{vT+1}, 1")
        A(f"ds_write_b32 v{vZ}, v{vT+1} offset:{off}")

    def poll(dst, voff, soffs, tagreg, mask, t, execs=None, sleep=0):
        n = len(soffs)
        execs = execs or {}
        lp = A.newlabel("poll")
        dn = A.newlabel("polld")
        A(f"v_mov_b32 v{t+2*n}, s{tagreg}")
        for i in execs:
            for c in range(4):
                A(f"v_mov_b32 v{dst+4*i+c}, s{tagreg}")
        A.label(lp)
        for i in range(n):
            A(f"s_mov_b32 s{sT0}, {hex(soffs[i])}")
            if i in execs:
                A(f"s_mov_b32 exec_hi, {hex(execs[i])}")
            vo = voff[i] if isinstance(voff, (list, tuple)) else voff
            A(f"buffer_load_dwordx4 {v4(dst+4*i)}, v{vo}, {srd(rWS)}, s{sT0} offen sc1")
            if i in execs:
                A("s_mov_b64 exec, -1")
        A("s_waitcnt vmcnt(0)")
        for i in range(2 * n):
            A(f"v_bitop3_b32 v{t+i}, v{dst+2*i}, v{dst+2*i+1}, v{t+2*n} bitop3:0x7e")
        regs = [t + i for i in range(2 * n)]
        while len(regs) > 1:
            nxt = []
            k = 0
            while k < len(regs):
                grp = regs[k:k + 3]
                if len(grp) == 3:
                    A(f"v_or3_b32 v{grp[0]}, v{grp[0]}, v{grp[1]}, v{grp[2]}")
                elif len(grp) == 2:
                    A(f"v_or_b32 v{grp[0]}, v{grp[0]}, v{grp[1]}")
                nxt.append(grp[0])
                k += 3
            regs = nxt
        A(f"v_and_b32 v{t}, {hex(mask)}, v{t}")
        A(f"v_cmp_ne_u32 s[{sP0}:{sP1}], 0, v{t}")
        A(f"s_cmp_eq_u64 s[{sP0}:{sP1}], 0")
        A(f"s_cbranch_scc1 {dn}")
        if sleep:
            A(f"s_sleep {sleep}")
        A(f"s_sub_u32 s{sTO}, s{sTO}, 1")
        A(f"s_cmp_lg_u32 s{sTO}, 0")
        A(f"s_cbranch_scc1 {lp}")
        A("s_branch L_end")
        A.label(dn)

    def throttle(d):
        if d and len(A.vm) >= d:
            A(f"s_waitcnt vmcnt({d-1})")

    LV = opt.get("LV", [5, 6, 7, 8])
    sLVL, sCLS = 36, 37

    def throttle2(on):
        if not on:
            return
        if on < 0:
            throttle(-on)
            return
        if len(A.vm) >= LV[-1]:
            A(f"s_waitcnt vmcnt({LV[-1]-1})")
        sv = list(A.vm)
        lab = None
        for lv in range(len(LV) - 2, -1, -1):
            if len(sv) >= LV[lv] and LV[lv] < LV[lv + 1]:
                lab = lab or A.newlabel("th")
                A(f"s_cmp_gt_u32 s{sLVL}, {lv}")
                A(f"s_cbranch_scc1 {lab}")
                A(f"s_waitcnt vmcnt({LV[lv]-1})")
        if lab:
            A.label(lab)
        A.vm = sv

    def tok(item):
        return f"{item[0]}{item[1]}"

    st = {}

    def blk_reg(b):
        return vR + (b - NLDS) * 32

    def issue(item, d):
        kind, b, i = item
        ps = {("k", 1, 0): 1, ("k", 2, 0): 12, ("k", 4, 0): 13, ("k", 6, 0): 14, ("v", 2, 0): 6, ("v", 4, 0): 15}
        if item in ps and opt.get("pstamps", False):
            stamp(ps[item])
        idx = (0 if kind == "k" else 64) + 8 * b + i
        if opt.get("rank") and idx > 64 and idx < 64 + opt.get("rank_end", 64) and d:
            if i % 4 == 0:
                A(f"ds_read_b32 v{vT+7}, v{vZ} offset:{L_LVL}")
                st["pend"] = True
            elif st.get("pend"):
                A("s_waitcnt lgkmcnt(0)")
                A(f"v_readfirstlane_b32 s{sT1}, v{vT+7}")
                A(f"s_sub_u32 s{sT1}, s{sT1}, 1")
                A(f"s_cselect_b32 s{sLVL}, s{sLVL}, s{sT1}")
                st["pend"] = False
        if opt.get("rank") and idx == 64 + opt.get("rank_end", 64):
            A(f"s_mov_b32 s{sLVL}, {opt.get('rank_base', 1)}")
        if kind == "k":
            off = (i >> 2) * 4096 + ((i >> 1) & 1) * 512 + (i & 1) * 128
            va, rs, nt = vOK, rK, ntk
        else:
            off = i * 1024
            va, rs, nt = vOV, rV, ntv
        if b < NLDS:
            A(f"s_add_u32 s{sT0}, s{sKB}, {hex((b<<21) + off)}")
            A(f"s_add_u32 m0, s{sLDSB}, {hex(b*8192 + i*1024)}")
            throttle2(d)
            A(f"buffer_load_dwordx4 v{va}, {srd(rs)}, s{sT0} offen{nt} lds", tok(item))
        else:
            A(f"s_add_u32 s{sT0}, s{sKB}, {hex((b<<21) + (off & ~4095))}")
            throttle2(d)
            A(f"buffer_load_dwordx4 {v4(blk_reg(b)+4*i)}, v{va}, {srd(rs)}, s{sT0} offen offset:{off & 4095}{nt}",
              tok(item))

    vTAG = vH

    def tags():
        A(f"s_add_u32 s{sE}, s{sE}, 1")
        A(f"s_and_b32 s{sT16}, s{sE}, 0xffff")
        A(f"s_and_b32 s{sT10}, s{sE}, 0x3ff")
        A(f"v_mov_b32 v{vTAG}, s{sT10}")

    A.raw(HEADER.rstrip("\n"))
    A.raw(f"; @launch grid=(256,1,1) block=(512,1,1) lds={LDS_BYTES}")
    A.raw('.amdgcn_target "amdgcn-amd-amdhsa--gfx950"')
    A.raw(".text")
    A.raw(f".globl {NAME}_kernel")
    A.raw(".p2align 8")
    A.raw(f".type {NAME}_kernel,@function")
    A.raw(f"{NAME}_kernel:")
    A("s_cmp_ge_u32 s2, 256")
    A("s_cbranch_scc1 L_exit")
    A("s_load_dwordx16 s[16:31], s[0:1], 0")
    A("s_load_dwordx8 s[32:39], s[0:1], 64")
    if stamps:
        A(f"s_memrealtime s[{sP0}:{sP1}]")
        for k in range(16):
            A(f"s_mov_b32 s{sSTAMP+k}, 0")
    A(f"v_lshrrev_b32 v{vT}, 6, v0")
    A(f"v_and_b32 v{vL}, 63, v0")
    A(f"v_readfirstlane_b32 s{sW}, v{vT}")
    A(f"v_mov_b32 v{vZ}, 0")
    A(f"v_and_b32 v{vN}, 15, v{vL}")
    A(f"v_lshrrev_b32 v{vGq}, 4, v{vL}")
    for i in range(4):
        A(f"v_mov_b32 v{vT+i}, 0")
    A(f"s_cmp_lg_u32 s{sW}, 0")
    A("s_cbranch_scc1 L_nozero")
    A(f"ds_write_b128 v{vZ}, {v4(vT)}")
    A(f"ds_write_b128 v{vZ}, {v4(vT)} offset:16")
    A(f"ds_write_b128 v{vZ}, {v4(vT)} offset:32")
    A(f"ds_write_b128 v{vZ}, {v4(vT)} offset:48")
    A.label("L_nozero")
    A(f"s_and_b32 s{sX_}, s2, 7")
    A(f"s_lshr_b32 s{sA}, s2, 3")
    sWL = 35
    gmap = opt.get("gmap", "x")
    if gmap == "a2":
        A(f"s_and_b32 s{sG}, s{sA}, 3")
        A(f"s_lshr_b32 s{sT0}, s{sA}, 2")
        A(f"s_lshl_b32 s{sC}, s{sT0}, 3")
        A(f"s_add_u32 s{sC}, s{sC}, s{sX_}")
        A(f"s_lshl_b32 s{sRI}, s{sX_}, 2")
        A(f"s_add_u32 s{sRI}, s{sRI}, s{sT0}")
    else:
        A(f"s_lshr_b32 s{sG}, s{sX_}, 1")
        A(f"s_and_b32 s{sC}, s{sX_}, 1")
        A(f"s_lshl_b32 s{sRI}, s{sC}, 4")
        A(f"s_add_u32 s{sRI}, s{sRI}, s{sA}")
        A(f"s_lshl_b32 s{sC}, s{sC}, 5")
        A(f"s_add_u32 s{sC}, s{sC}, s{sA}")
    A(f"s_lshl_b32 s{sJ}, s{sG}, 6")
    A(f"s_add_u32 s{sJ}, s{sJ}, s{sC}")
    A(f"s_and_b32 s{sHW}, s{sW}, 3")
    A(f"s_mov_b32 s{sPLO}, 0x05040100")
    A(f"s_mov_b32 s{sPHI}, 0x07060302")
    A(f"s_mov_b32 s{sM10}, 0xfffffc00")
    A(f"s_mov_b32 s{sM16}, 0xffff0000")
    A(f"s_mov_b32 s{sTO}, 200000")
    A(f"s_mov_b32 s{sLOG2E}, 0x3fb8aa3b")
    A(f"s_mov_b32 s{sSCALE}, 0x3db504f3")
    A(f"s_lshl_b32 s{sKB}, s{sG}, 24")
    A(f"s_lshl_b32 s{sT0}, s{sC}, 2")
    A(f"s_add_u32 s{sT0}, s{sT0}, s{sHW}")
    A(f"s_lshl_b32 s{sT0}, s{sT0}, 13")
    A(f"s_add_u32 s{sKB}, s{sKB}, s{sT0}")
    A(f"s_mul_i32 s{sLDSB}, s{sHW}, {NLDS*8192}")
    A(f"s_add_u32 s{sLDSB}, s{sLDSB}, {L_KV}")
    A(f"v_and_b32 v{vT+4}, 3, v{vN}")
    A(f"v_lshlrev_b32 v{vT+4}, 10, v{vT+4}")
    A(f"v_bfe_u32 v{vT+5}, v{vN}, 2, 1")
    A(f"v_lshl_add_u32 v{vT+4}, v{vT+5}, 8, v{vT+4}")
    A(f"v_lshrrev_b32 v{vT+5}, 3, v{vN}")
    A(f"v_lshl_add_u32 v{vT+4}, v{vT+5}, 6, v{vT+4}")
    A(f"v_lshl_add_u32 v{vOK}, v{vGq}, 4, v{vT+4}")
    A(f"v_lshlrev_b32 v{vOV}, 4, v{vL}")
    A("s_waitcnt lgkmcnt(0)")
    if stamps:
        A(f"s_mov_b32 s{sSTAMP}, s{sP0}")
    A(f"s_load_dword s{sE}, s[38:39], {WS_EPOCH}")
    mk_srd(rWS, 38, WS_SIZE)
    A(f"s_cmp_ge_u32 s{sW}, 4")
    A("s_cbranch_scc1 L_helper")

    mk_srd(rK, 18, 0x4000000)
    mk_srd(rV, 20, 0x4000000)
    k_items = [("k", b, i) for b in range(8) for i in range(8)]
    v_items = [("v", b, i) for b in range(8) for i in range(8)]
    lvS, lvW, lvM, lvWs = opt.get("lv", [0, 1, 0, 2])
    A(f"s_and_b32 s{sT0}, s{sRI}, 14")
    A(f"s_cmp_eq_u32 s{sT0}, 6")
    A(f"s_cselect_b32 s{sCLS}, {lvWs}, {lvW}")
    A(f"s_cmp_ge_u32 s{sA}, 16")
    A(f"s_cselect_b32 s{sCLS}, {lvM}, s{sCLS}")
    A(f"s_cmp_ge_u32 s{sA}, 30")
    A(f"s_cselect_b32 s{sCLS}, {lvS}, s{sCLS}")
    A(f"s_mov_b32 s{sLVL}, s{sCLS}")
    npre = min(4, opt.get("D0", 4))
    n0 = opt.get("n0", 0)
    for it in k_items[:npre]:
        issue(it, 1)
    A("s_barrier")
    if opt.get("waitburst", False):
        lab = A.newlabel("nb")
        A(f"s_cmp_ge_u32 s{sA}, 16")
        A(f"s_cbranch_scc1 {lab}")
        lds_wait(L_CNTB, 2, 4)
        A.label(lab)
    for k, it in enumerate(k_items[:16]):
        if k >= npre:
            issue(it, -opt.get("D0", 4) if k < n0 else 1)
    npre = 16
    A("s_waitcnt lgkmcnt(0)")
    tags()

    qpos = opt.get("qpos", 40)
    for k, it in enumerate(k_items):
        if k >= npre:
            issue(it, 1)
            if k + 1 == qpos:
                lds_inc(L_PRGK)
    stamp(3)
    lds_wait(L_FLAGQ)
    A(f"v_and_b32 v{vT}, 7, v{vN}")
    A(f"v_mul_u32_u24 v{vT}, 272, v{vT}")
    A(f"v_lshl_add_u32 v{vT}, v{vGq}, 4, v{vT}")
    A(f"v_lshrrev_b32 v{vT+1}, 3, v{vN}")
    A(f"v_lshl_add_u32 v{vT}, v{vT+1}, 6, v{vT}")
    for h in range(2):
        A(f"ds_read_b128 {v4(vQ+4*h)}, v{vT} offset:{L_Q+128*h}")
    A(f"v_add_u32 v{vM}, s{sLDSB}, v{vOV}")
    A("s_waitcnt lgkmcnt(0)")
    stamp(4)
    stream = list(v_items)

    def sprinkle(n=1):
        for _ in range(n):
            if stream:
                issue(stream.pop(0), 0)

    def score_round(a, b):
        A(f"v_cvt_pk_bf16_f32 v{b}, v{a}, v{b}")
        A(f"v_lshlrev_b32 v{a}, 16, v{b}")
        A(f"v_and_b32 v{b}, s{sM16}, v{b}")
        A(f"v_mul_f32 v{a}, s{sSCALE}, v{a}")
        A(f"v_mul_f32 v{b}, s{sSCALE}, v{b}")
        A(f"v_cvt_pk_bf16_f32 v{b}, v{a}, v{b}")
        A(f"v_lshlrev_b32 v{a}, 16, v{b}")
        A(f"v_and_b32 v{b}, s{sM16}, v{b}")

    def combine(t):
        d0, d1 = vS + 4 * t, vQ + 8 + 4 * (t & 1)
        for r in range(4):
            A(f"v_permlane32_swap_b32 v{d0+r}, v{d1+r}")
        for r in range(4):
            A(f"v_add_f32_dpp v{d0+r}, v{d1+r}, v{d0+r} row_ror:8 {DPPALL}")
        score_round(d0, d0 + 1)
        score_round(d0 + 2, d0 + 3)

    STG = vS + 32
    for b in range(8):
        A.wait_vm(f"k{b}")
        if b < NLDS:
            for i in range(8):
                A(f"ds_read_b128 {v4(STG+4*i)}, v{vM} offset:{b*8192+i*1024}")
            A("s_waitcnt lgkmcnt(0)")
            base = STG
        else:
            base = blk_reg(b)
        for tt in range(2):
            t = 2 * b + tt
            d0, d1 = vS + 4 * t, vQ + 8 + 4 * (t & 1)
            r = base + tt * 16
            A(f"v_mfma_f32_16x16x32_bf16 {v4(d0)}, {v4(r)}, {v4(vQ)}, 0")
            A(f"v_mfma_f32_16x16x32_bf16 {v4(d1)}, {v4(r+8)}, {v4(vQ)}, 0")
            A(f"v_mfma_f32_16x16x32_bf16 {v4(d0)}, {v4(r+4)}, {v4(vQ+4)}, {v4(d0)}")
            A(f"v_mfma_f32_16x16x32_bf16 {v4(d1)}, {v4(r+12)}, {v4(vQ+4)}, {v4(d1)}")
            if t > 0:
                combine(t - 1)
        sprinkle(opt.get("spr_qk", 2))
    combine(15)
    stamp(5)
    vLA = vQ
    A(f"v_mov_b32 v{vLA}, v{vM}")
    A(f"v_max_f32 v{vM}, v{vS}, v{vS+1}")
    for i in range(2, 64, 2):
        A(f"v_max3_f32 v{vM}, v{vM}, v{vS+i}, v{vS+i+1}")
    sprinkle()
    for i in range(64):
        A(f"v_sub_f32 v{vS+i}, v{vS+i}, v{vM}")
        A(f"v_mul_f32 v{vS+i}, s{sLOG2E}, v{vS+i}")
        A(f"v_exp_f32 v{vS+i}, v{vS+i}")
        if i % 16 == 15:
            sprinkle()
    A(f"v_add_f32 v{vT+2}, v{vS}, v{vS+1}")
    A(f"v_add_f32 v{vT+3}, v{vS+2}, v{vS+3}")
    for i in range(4, 64, 2):
        A(f"v_add_f32 v{vT+2}, v{vT+2}, v{vS+i}")
        A(f"v_add_f32 v{vT+3}, v{vT+3}, v{vS+i+1}")
    A(f"v_add_f32 v{vT+3}, v{vT+2}, v{vT+3}")
    A(f"v_mov_b32 v{vT+2}, v{vM}")
    sprinkle()
    A(f"v_lshlrev_b32 v{vT+4}, 3, v{vN}")
    A(f"v_lshl_add_u32 v{vT+4}, v{vGq}, 6, v{vT+4}")
    A(f"s_lshl_b32 s{sT0}, s{sW}, 8")
    A(f"v_add_u32 v{vT+4}, s{sT0}, v{vT+4}")
    A("s_mov_b32 exec_lo, 0x00ff00ff")
    A("s_mov_b32 exec_hi, 0x00ff00ff")
    A(f"ds_write_b64 v{vT+4}, {v2(vT+2)} offset:{L_SP}")
    A("s_mov_b64 exec, -1")
    lds_inc(L_CNTS)
    if "lvV" in opt:
        A(f"s_mov_b32 s{sLVL}, {opt['lvV']}")

    done = 64 - len(stream)
    spos = opt.get("spos", 40)
    ppos = opt.get("ppos", 56)
    wpos = opt.get("wpos", 64)
    assert done < spos <= ppos <= 56 and ppos < wpos <= 64
    part1 = stream[:ppos - done]
    part2 = stream[ppos - done:]
    for k, it in enumerate(part1):
        issue(it, 1)
        if done + k + 1 == spos:
            lds_inc(L_PRGV)
    lds_wait(L_FLAGS)
    A(f"v_and_b32 v{vT}, 7, v{vN}")
    A(f"v_lshlrev_b32 v{vT}, 3, v{vT}")
    A(f"ds_read_b64 {v2(vT+2)}, v{vT} offset:{L_SG}")
    A("s_waitcnt lgkmcnt(0)")
    A(f"v_sub_f32 v{vT+2}, v{vM}, v{vT+2}")
    A(f"v_mul_f32 v{vT+2}, s{sLOG2E}, v{vT+2}")
    A(f"v_exp_f32 v{vT+2}, v{vT+2}")
    A(f"v_mul_f32 v{vT+2}, v{vT+2}, v{vT+3}")
    cnt = [ppos]

    def feed(n=1):
        for _ in range(n):
            if part2:
                issue(part2.pop(0), 1)
                cnt[0] += 1
                if cnt[0] == wpos:
                    lds_inc(L_FLAGW)

    vP = vS
    vO = vS + 32
    for i in range(32):
        a, b = vS + 2 * i, vS + 2 * i + 1
        A(f"v_mul_f32 v{a}, v{a}, v{vT+2}")
        A(f"v_mul_f32 v{b}, v{b}, v{vT+2}")
        A(f"v_cvt_pk_bf16_f32 v{vP+i}, v{a}, v{b}")
        if i == 16:
            feed()
    stamp(9)

    def pv_block(b, R, first):
        for t in range(4):
            for u in range(4):
                A(f"v_perm_b32 v{vQ+8+u}, v{R+(2*u+1)*4+t}, v{R+(2*u)*4+t}, s{sPLO}")
            for u in range(4):
                A(f"v_perm_b32 v{vQ+12+u}, v{R+(2*u+1)*4+t}, v{R+(2*u)*4+t}, s{sPHI}")
            for hh in range(2):
                m = 2 * t + hh
                c = "0" if first else v4(vO + 4 * m)
                A(f"v_mfma_f32_16x16x32_bf16 {v4(vO+4*m)}, {v4(vP+4*b)}, {v4(vQ+8+4*hh)}, {c}")

    order = [3, 0, 1, 2, 4, 5, 6, 7]
    for k, b in enumerate(order):
        while part2 and (b >= opt.get("feedall", 5) or any(it[1] <= b for it in part2)):
            feed()
        A.wait_vm(f"v{b}")
        if b < NLDS:
            for i in range(8):
                A(f"ds_read_b128 {v4(blk_reg(3)+4*i)}, v{vLA} offset:{b*8192+i*1024}")
            feed()
            A("s_waitcnt lgkmcnt(0)")
            R = blk_reg(3)
        else:
            R = blk_reg(b)
        if b == 7:
            stamp(8)
        pv_block(b, R, k == 0)
        feed()
    stamp(10)
    A(f"v_mul_u32_u24 v{vT}, 272, v{vN}")
    A(f"v_lshl_add_u32 v{vT}, v{vGq}, 4, v{vT}")
    A(f"s_mul_i32 s{sT0}, s{sW}, 4352")
    A(f"v_add_u32 v{vT}, s{sT0}, v{vT}")
    A(f"s_lshl_b32 s{sT0}, s{sW}, 2")
    A(f"v_add_u32 v{vT+2}, s{sT0}, v{vGq}")
    A(f"v_mul_u32_u24 v{vT+2}, 272, v{vT+2}")
    A(f"v_lshl_add_u32 v{vT+2}, v{vN}, 4, v{vT+2}")
    A(f"s_lshl_b32 s{sT3}, s{sJ}, 12")
    A(f"s_lshl_b32 s{sT1}, s{sW}, 10")
    A(f"s_add_u32 s{sT3}, s{sT3}, s{sT1}")
    A(f"s_add_u32 s{sT3}, s{sT3}, {WS_A}")
    A("s_mov_b64 exec, 0xffffffff")
    for m in range(8):
        A(f"ds_write_b128 v{vT}, {v4(vO+4*m)} offset:{L_O+32*m}")
    A("s_mov_b64 exec, 1")
    A(f"v_mov_b32 v{vT+1}, 1")
    A(f"ds_add_u32 v{vZ}, v{vT+1} offset:{L_CNTO}")
    A("s_mov_b64 exec, -1")
    A.label("L_owait")
    A(f"ds_read_b32 v{vT}, v{vZ} offset:{L_CNTO}")
    A("s_waitcnt lgkmcnt(0)")
    A(f"v_readfirstlane_b32 s{sT0}, v{vT}")
    A(f"s_cmp_eq_u32 s{sT0}, 4")
    A("s_cbranch_scc1 L_oready")
    A(f"s_sub_u32 s{sTO}, s{sTO}, 1")
    A(f"s_cmp_lg_u32 s{sTO}, 0")
    A("s_cbranch_scc1 L_owait")
    A("s_branch L_end")
    A.label("L_oready")
    Z = vS
    for w in range(4):
        A(f"ds_read_b128 {v4(Z+4*w)}, v{vT+2} offset:{L_O+4352*w}")
    A("s_waitcnt lgkmcnt(0)")
    for st in (2, 1):
        for w in range(st):
            for c in range(4):
                A(f"v_add_f32 v{Z+4*w+c}, v{Z+4*w+c}, v{Z+4*(w+st)+c}")
    for c in range(4):
        tag10(Z + c)
    A(f"buffer_store_dwordx4 {v4(Z)}, v{vOV}, {srd(rWS)}, s{sT3} offen sc1")
    if opt.get("pubwait", False):
        A("s_waitcnt vmcnt(0)")
    lds_inc(L_CNTP)
    stamp(11)
    A("s_branch L_end")

    A.label("L_helper")
    A.vm = []
    vTAG = vM
    Z = 16
    ACC = 48
    vA1, vA2, vA3 = vOK, vH, 15
    vWa = 64
    vWb = 192
    vGA, vLW, vLR, vX0, vC4, vGE, vLE = 56, 57, 58, 59, 60, 61, 62
    sRID = sLDSB
    mk_srd(rX, 16, 2048)
    mk_srd(rOUT, 34, 2048)

    def rowsplit_loads(dst, rs, sbase, row_off, rng, d, token, ntw):
        for i in rng:
            off = row_off(i)
            A(f"s_add_u32 s{sT0}, s{sbase}, {off & ~4095}")
            throttle(d)
            A(f"buffer_load_dwordx4 {v4(dst+4*i)}, v{vA2}, {srd(rs)}, s{sT0} offen offset:{off & 4095}{ntw}",
              token or f"r{i//2}")

    def perm_to(dst, src, nrows):
        for p in range(nrows // 2):
            A.wait_vm(f"r{p}")
            for t in range(4):
                a = src + (2 * p) * 4 + t
                b = src + (2 * p + 1) * 4 + t
                A(f"v_perm_b32 v{dst+(2*p)*4+t}, v{b}, v{a}, s{sPLO}")
                A(f"v_perm_b32 v{dst+(2*p+1)*4+t}, v{b}, v{a}, s{sPHI}")

    def zero_acc():
        for c in range(8):
            A(f"v_mov_b32 v{ACC+c}, 0")

    def gemv_publish(wp, npairs, xsrc):
        for p in range(npairs):
            xr, ln = xsrc(p)
            for c in range(8):
                w = wp + (2 * p + (c & 1)) * 4 + (c >> 1)
                A(f"v_dot2c_f32_bf16_dpp v{ACC+c}, v{xr}, v{w} row_newbcast:{ln} {DPPALL}")
        for c in range(4):
            A(f"v_permlane32_swap_b32 v{ACC+c}, v{ACC+c+4}")
        for c in range(4):
            A(f"v_add_f32 v{ACC+c}, v{ACC+c}, v{ACC+c+4}")
        for c in range(4):
            tag10(ACC + c)
        A(f"buffer_store_dwordx4 {v4(ACC)}, v{vA3}, {srd(rWS)}, s{sPUB} offen sc1")

    def pack_pairs(src, dst):
        A(f"v_mov_b32_dpp v{dst}, v{src} quad_perm:[1,0,3,2] {DPPALL}")
        A(f"v_cvt_pk_bf16_f32 v{dst}, v{src}, v{dst}")

    def red4_to_lds(waddr, ldsoff):
        A(f"v_permlane32_swap_b32 v{Z}, v{Z+2}")
        A(f"v_permlane32_swap_b32 v{Z+1}, v{Z+3}")
        A(f"v_add_f32 v{Z}, v{Z}, v{Z+2}")
        A(f"v_add_f32 v{Z+1}, v{Z+1}, v{Z+3}")
        A(f"v_permlane16_swap_b32 v{Z}, v{Z+1}")
        A(f"v_add_f32 v{Z}, v{Z}, v{Z+1}")
        row_red("v_add_f32", Z, (8,))
        A(f"ds_write_b32 v{waddr}, v{Z} offset:{L_GP+ldsoff}")
        A("s_waitcnt lgkmcnt(0)")
        A("s_barrier")

    def read4_from_lds(addr):
        for k in range(2):
            A(f"ds_read2_b32 {v2(Z+2*k)}, v{addr} offset0:{64*k} offset1:{64*k+32}")
        A("s_waitcnt lgkmcnt(0)")
        A(f"v_add_f32 v{Z}, v{Z}, v{Z+1}")
        A(f"v_add_f32 v{Z+2}, v{Z+2}, v{Z+3}")

    def common_addr():
        A(f"v_and_b32 v{vA3}, 31, v{vL}")
        A(f"v_lshlrev_b32 v{vC4}, 2, v{vA3}")
        A(f"v_lshlrev_b32 v{vA3}, 5, v{vA3}")
        A(f"v_lshrrev_b32 v{vT}, 5, v{vL}")
        A(f"v_lshl_add_u32 v{vA3}, v{vT}, 4, v{vA3}")
        A(f"v_lshrrev_b32 v{vA1}, 3, v{vL}")
        A(f"v_lshlrev_b32 v{vA1}, 12, v{vA1}")
        A(f"v_and_b32 v{vT+1}, 7, v{vL}")
        A(f"v_lshl_add_u32 v{vA1}, v{vT+1}, 4, v{vA1}")
        A(f"v_lshlrev_b32 v{vLW}, 4, v{vT+1}")
        A(f"v_lshl_add_u32 v{vLW}, v{vGq}, 2, v{vLW}")
        A(f"s_lshl_b32 s{sT0}, s{sHW}, 7")
        A(f"v_add_u32 v{vLW}, s{sT0}, v{vLW}")

    def pretouch(items):
        if not opt.get("pretouch", False):
            return
        lds_wait(L_PRGV, 8)
        A("s_mov_b32 exec_lo, 1")
        A("s_mov_b32 exec_hi, 1")
        for k, (va, rs, so) in enumerate(items):
            if isinstance(so, tuple):
                A(f"s_add_u32 s{sT0}, s{so[0]}, {so[1]}")
            else:
                A(f"s_mov_b32 s{sT0}, {hex(so)}")
            A(f"buffer_load_dword v{Z+k}, v{va}, {srd(rs)}, s{sT0} offen")
        A("s_mov_b64 exec, -1")
        A("s_waitcnt vmcnt(0)")

    WS_PT = [(vZ, rWS, 0x1f0000 - 0x1000 + 0x100000), (vZ, rWS, 0x3f8000), (vZ, rWS, 0x20000)]

    def service(name):
        A(f"s_cmp_lg_u32 s{sHW}, 0")
        A(f"s_cbranch_scc1 L_svc_{name}")
        X = Z
        lds_wait(L_PRGK, 8)
        A(f"s_lshl_b32 s{sT1}, s{sG}, 12")
        A(f"v_add_u32 v{vT+4}, s{sT1}, v{vOV}")
        poll(X, vT + 4, [WS_Q + i * 1024 for i in range(4)], sT16, 0xffff, X + 16, sleep=opt.get("sleepq", 8))
        A(f"v_lshrrev_b32 v{vT+1}, 5, v{vL}")
        A(f"v_mul_u32_u24 v{vT+1}, 272, v{vT+1}")
        A(f"v_and_b32 v{vT+2}, 31, v{vL}")
        A(f"v_lshl_add_u32 v{vT+1}, v{vT+2}, 3, v{vT+1}")
        for i in range(4):
            A(f"v_perm_b32 v{X+16+2*i}, v{X+4*i+1}, v{X+4*i}, s{sPHI}")
            A(f"v_perm_b32 v{X+16+2*i+1}, v{X+4*i+3}, v{X+4*i+2}, s{sPHI}")
            A(f"ds_write_b64 v{vT+1}, {v2(X+16+2*i)} offset:{L_Q+i*2*272}")
        lds_setflag(L_FLAGQ)
        stamp(2)
        lds_wait(L_CNTS, 4, 4)
        Y = Z
        A(f"v_and_b32 v{vT}, 7, v{vL}")
        A(f"v_lshlrev_b32 v{vT}, 3, v{vT}")
        A(f"v_lshrrev_b32 v{vT+1}, 3, v{vL}")
        A(f"v_lshl_add_u32 v{vT}, v{vT+1}, 7, v{vT}")
        for g in range(2):
            A(f"ds_read_b64 {v2(Y+2*g)}, v{vT} offset:{L_SP+64*g}")
        A("s_waitcnt lgkmcnt(0)")
        MM, LL, TT = vT + 2, vT + 3, Y + 6
        A(f"v_max_f32 v{MM}, v{Y}, v{Y+2}")
        row_red("v_max_f32", MM, (8,))
        xrow_red("v_max_f32", MM, TT)
        for g in range(2):
            A(f"v_sub_f32 v{Y+2*g}, v{Y+2*g}, v{MM}")
            A(f"v_mul_f32 v{Y+2*g}, s{sLOG2E}, v{Y+2*g}")
            A(f"v_exp_f32 v{Y+2*g}, v{Y+2*g}")
        A(f"v_mul_f32 v{LL}, v{Y}, v{Y+1}")
        A(f"v_fmac_f32 v{LL}, v{Y+2}, v{Y+3}")
        row_red("v_add_f32", LL, (8,))
        xrow_red("v_add_f32", LL, TT)
        A(f"v_or_b32 v{MM}, s{sT10}, v{MM}")
        tag10(LL)
        A(f"v_lshlrev_b32 v{vT}, 3, v{vL}")
        sfull = opt.get("sfull", True)
        A(f"s_lshl_b32 s{sT0}, s{sJ}, {7 if sfull else 6}")
        A(f"s_add_u32 s{sT0}, s{sT0}, {WS_S}")
        A(f"s_mov_b64 exec, {'0xffff' if sfull else '0xff'}")
        A(f"buffer_store_dwordx2 {v2(MM)}, v{vT}, {srd(rWS)}, s{sT0} offen sc1")
        A("s_mov_b64 exec, -1")
        if opt.get("rank"):
            A(f"v_lshlrev_b32 v{vT}, 8, v{vL}")
            A(f"s_and_b32 s{sT0}, s{sJ}, 3")
            A(f"s_lshl_b32 s{sT0}, s{sT0}, 6")
            A(f"s_add_u32 s{sT0}, s{sT0}, {WS_S}")
            A(f"buffer_load_dwordx2 {v2(Z)}, v{vT}, {srd(rWS)}, s{sT0} offen sc1")
            A("s_waitcnt vmcnt(0)")
            A(f"v_bitop3_b32 v{Z}, v{Z}, v{Z+1}, v{vTAG} bitop3:0x7e")
            A(f"v_and_b32 v{Z}, 0x3ff, v{Z}")
            A(f"v_cmp_eq_u32 s[{sP0}:{sP1}], 0, v{Z}")
            A(f"s_bcnt1_i32_b64 s{sT1}, s[{sP0}:{sP1}]")
            A(f"s_mov_b32 s{sT2}, 1")
            for q, t in enumerate(opt["rank"]):
                A(f"s_cmp_ge_u32 s{sT1}, {t}")
                A(f"s_cselect_b32 s{sT2}, {q+2}, s{sT2}")
            A(f"v_mov_b32 v{Z}, s{sT2}")
            A(f"ds_write_b32 v{vZ}, v{Z} offset:{L_LVL}")
            if stamps:
                A(f"s_add_u32 s{sSTAMP+8}, s{sSTAMP}, s{sT1}")
        lds_wait(L_PRGV, 8)
        Dd = Z
        TP = Z + 16
        if sfull:
            A(f"v_lshrrev_b32 v{vT+4}, 2, v{vL}")
            A(f"v_lshlrev_b32 v{vT+4}, 7, v{vT+4}")
            A(f"v_and_b32 v{vT+5}, 3, v{vL}")
            A(f"v_lshl_add_u32 v{vT+4}, v{vT+5}, 4, v{vT+4}")
            A(f"s_lshl_b32 s{sT1}, s{sG}, 13")
            A(f"v_add_u32 v{vT+4}, s{sT1}, v{vT+4}")
        poll(Dd, vT + 4, [WS_S + i * (2048 if sfull else 1024) for i in range(4)], sT10, 0x3ff, TP,
             sleep=opt.get("sleeps", 8))
        for i in range(16):
            A(f"v_and_b32 v{Dd+i}, s{sM10}, v{Dd+i}")
        Yy = TP
        Tt = TP + 4
        M0, M1, L0, L1 = Yy, Yy + 2, Yy + 1, Yy + 3
        for (Mx, o) in ((M0, 0), (M1, 2)):
            A(f"v_max_f32 v{Mx}, v{Dd+o}, v{Dd+4+o}")
            A(f"v_max3_f32 v{Mx}, v{Mx}, v{Dd+8+o}, v{Dd+12+o}")
        for Mx in (M0, M1):
            row_red("v_max_f32", Mx, (8, 4))
            xrow_red("v_max_f32", Mx, Tt)
        for (Mx, Lx, o) in ((M0, L0, 0), (M1, L1, 2)):
            for i in range(4):
                r = Dd + 4 * i + o
                A(f"v_sub_f32 v{r}, v{r}, v{Mx}")
                A(f"v_mul_f32 v{r}, s{sLOG2E}, v{r}")
                A(f"v_exp_f32 v{r}, v{r}")
            A(f"v_mul_f32 v{Lx}, v{Dd+o}, v{Dd+o+1}")
            for i in range(1, 4):
                A(f"v_fmac_f32 v{Lx}, v{Dd+4*i+o}, v{Dd+4*i+o+1}")
        for Lx in (L0, L1):
            row_red("v_add_f32", Lx, (8, 4))
            xrow_red("v_add_f32", Lx, Tt)
            A(f"v_rcp_f32 v{Lx}, v{Lx}")
        A(f"v_and_b32 v{vT}, 3, v{vL}")
        A(f"v_lshlrev_b32 v{vT}, 4, v{vT}")
        A(f"ds_write_b128 v{vT}, {v4(Yy)} offset:{L_SG}")
        lds_setflag(L_FLAGS)
        stamp(7)
        A.label(f"L_svc_{name}")
        A.vm = []

    A(f"s_cmp_ge_u32 s{sA}, 30")
    A("s_cbranch_scc1 L_roleR")
    A(f"s_cmp_ge_u32 s{sA}, 16")
    A("s_cbranch_scc1 L_roleM")

    A("s_setprio 3")
    A(f"s_lshl_b32 s{sT0}, s{sG}, 5")
    A(f"s_add_u32 s{sRI}, s{sRI}, s{sT0}")
    mk_srd(rW1, 22, 0x800000)
    XR = vWa + 64
    A(f"v_lshlrev_b32 v{vT}, 5, v{vL}")
    A(f"buffer_load_dwordx4 {v4(XR)}, v{vT}, {srd(rX)}, 0 offen", "x")
    A(f"buffer_load_dwordx4 {v4(XR+4)}, v{vT}, {srd(rX)}, 0 offen offset:16", "x")
    A(f"v_lshrrev_b32 v{vT+1}, 2, v{vL}")
    A(f"v_lshlrev_b32 v{vT+1}, 4, v{vT+1}")
    A(f"s_lshl_b32 s{sT0}, s{sHW}, 8")
    A(f"v_add_u32 v{vT+1}, s{sT0}, v{vT+1}")
    A(f"v_lshlrev_b32 v{vT+2}, 1, v{vT+1}")
    stq = 8 if opt.get("stagq", True) else 0
    A(f"s_and_b32 s{sT2}, s{sRI}, 1")
    A(f"s_mul_i32 s{sT3}, s{sT2}, {2*stq}")
    A(f"s_sub_u32 s{sT0}, 16, s{sT3}")
    A(f"buffer_load_dwordx4 {v4(XR+8)}, v{vT+2}, {srd(rX)}, s{sT3} offen", "x")
    A(f"buffer_load_dwordx4 {v4(XR+12)}, v{vT+2}, {srd(rX)}, s{sT0} offen", "x")
    A(f"v_lshlrev_b32 v{vT+2}, 13, v{vT+1}")
    A(f"v_and_b32 v{vT+3}, 3, v{vL}")
    A(f"v_lshl_add_u32 v{vT+2}, v{vT+3}, 4, v{vT+2}")
    A(f"s_lshl_b32 s{sT1}, s{sRI}, 6")
    A(f"s_mul_i32 s{sT2}, s{sT2}, {stq*8192}")
    A(f"s_sub_u32 s{sT3}, s{sT1}, s{sT2}")
    A(f"s_add_u32 s{sT1}, s{sT1}, s{sT2}")
    for i in range(16):
        A(f"s_add_u32 s{sT0}, s{sT3 if (i & 8) else sT1}, {i*8192}")
        A(f"buffer_load_dwordx4 {v4(vWa+4*i)}, v{vT+2}, {srd(rW1)}, s{sT0} offen{ntq}", f"wq{i//2}")
        if i == 3:
            A("s_barrier")
    lds_inc(L_CNTB)
    mk_srd(rW2, 24, 0x800000)
    mk_srd(rW3, 32, 3584 * 1024 * 2)
    A.wait_vm("x")
    F = XR + 16
    for i in range(8):
        unpack(F + 2 * i, F + 2 * i + 1, XR + i)
    MB, RD = XR + 32, XR + 33
    ln_stats([F + i for i in range(16)], XR + 34, XR + 35, XR + 36, MB, RD)
    XP = XR + 40
    for p in range(8):
        unpack(XR + 38, XR + 39, XR + 8 + p)
        ln_apply_pair(XP + p, XR + 38, XR + 39, MB, RD)
    for p in range(8):
        A.wait_vm(f"wq{p}")
        for t in range(4):
            a = vWa + (2 * p) * 4 + t
            b = vWa + (2 * p + 1) * 4 + t
            A(f"v_perm_b32 v{Z+8+2*t}, v{b}, v{a}, s{sPLO}")
            A(f"v_perm_b32 v{Z+8+2*t+1}, v{b}, v{a}, s{sPHI}")
        for c in range(8):
            src = "0" if p == 0 else f"v{Z+c}"
            A(f"v_dot2_f32_bf16 v{Z+c}, v{Z+8+c}, v{XP+p}, {src}")
    red8_rows(Z)
    for r in (8, 4):
        for c in range(2):
            A(f"v_add_f32_dpp v{Z+c}, v{Z+c}, v{Z+c} row_ror:{r} {DPPALL}")
    A(f"v_and_b32 v{vT+3}, 3, v{vL}")
    A(f"v_lshlrev_b32 v{vT+3}, 5, v{vT+3}")
    A(f"v_lshl_add_u32 v{vT+3}, v{vGq}, 3, v{vT+3}")
    A(f"s_lshl_b32 s{sT0}, s{sHW}, 7")
    A(f"v_add_u32 v{vT+3}, s{sT0}, v{vT+3}")
    A(f"ds_write_b64 v{vT+3}, {v2(Z)} offset:{L_QPART}")
    A("s_waitcnt lgkmcnt(0)")
    tags()
    lds_arrive(L_CNTQ, sT0)
    A(f"s_cmp_lg_u32 s{sT0}, 3")
    A("s_cbranch_scc1 L_qpub_done")
    A("s_mov_b64 exec, 0xff")
    for w in range(4):
        A(f"ds_read_b128 {v4(Z+4*w)}, v{vOV} offset:{L_QPART+128*w}")
    A("s_waitcnt lgkmcnt(0)")
    for st in (2, 1):
        for w in range(st):
            for c in range(4):
                A(f"v_add_f32 v{Z+4*w+c}, v{Z+4*w+c}, v{Z+4*(w+st)+c}")
    for c in range(4):
        rbf(Z + c, Z + c)
        A(f"v_or_b32 v{Z+c}, s{sT16}, v{Z+c}")
    A(f"s_lshl_b32 s{sT0}, s{sRI}, 7")
    A(f"s_add_u32 s{sT0}, s{sT0}, {WS_Q}")
    A(f"buffer_store_dwordx4 {v4(Z)}, v{vOV}, {srd(rWS)}, s{sT0} offen sc1")
    A("s_mov_b64 exec, -1")
    A.label("L_qpub_done")
    A.vm = []
    stamp(1)
    A("s_setprio 0")
    common_addr()
    A(f"v_lshrrev_b32 v{vA2}, 5, v{vL}")
    A(f"v_lshlrev_b32 v{vA2}, 20, v{vA2}")
    A(f"v_lshl_add_u32 v{vA2}, v{vC4}, 2, v{vA2}")
    A(f"s_lshl_b32 s{sKB}, s{sG}, 21")
    A(f"s_and_b32 s{sT2}, s{sRI}, 31")
    A(f"s_lshl_b32 s{sT2}, s{sT2}, 13")
    A(f"s_add_u32 s{sKB}, s{sKB}, s{sT2}")
    A(f"s_lshl_b32 s{sT2}, s{sHW}, 9")
    A(f"s_add_u32 s{sKB}, s{sKB}, s{sT2}")
    A(f"s_lshl_b32 s{sPUB}, s{sX_}, 4")
    A(f"s_add_u32 s{sPUB}, s{sPUB}, s{sA}")
    A(f"s_lshl_b32 s{sPUB}, s{sPUB}, 12")
    A(f"s_lshl_b32 s{sT1}, s{sHW}, 10")
    A(f"s_add_u32 s{sPUB}, s{sPUB}, s{sT1}")
    A(f"s_add_u32 s{sPUB}, s{sPUB}, {WS_B}")
    A(f"s_lshl_b32 s{sT1}, s{sG}, 18")
    A(f"s_lshl_b32 s{sT2}, s{sHW}, 16")
    A(f"s_add_u32 s{sT1}, s{sT1}, s{sT2}")
    A(f"s_and_b32 s{sT2}, s{sRI}, 31")
    A(f"s_lshl_b32 s{sT2}, s{sT2}, 7")
    A(f"s_add_u32 s{sT1}, s{sT1}, s{sT2}")
    A(f"v_add_u32 v{vGA}, s{sT1}, v{vA1}")
    A(f"v_and_b32 v{vLR}, 3, v{vN}")
    A(f"v_lshlrev_b32 v{vLR}, 3, v{vLR}")
    A(f"v_lshrrev_b32 v{vT}, 5, v{vL}")
    A(f"v_lshl_add_u32 v{vLR}, v{vT}, 2, v{vLR}")
    A(f"v_lshrrev_b32 v{vT+1}, 2, v{vN}")
    A(f"v_add_u32 v{vLR}, v{vLR}, v{vT+1}")
    A(f"v_lshlrev_b32 v{vLR}, 2, v{vLR}")
    A(f"v_add_u32 v{vLR}, {L_GP}, v{vLR}")
    A(f"v_lshl_add_u32 v{vLE}, v{vT}, 4, v{vN}")
    A(f"v_lshlrev_b32 v{vLE}, 2, v{vLE}")
    A(f"v_add_u32 v{vLE}, {L_GP+1024}, v{vLE}")
    sDI = 16
    A(f"s_mul_i32 s{sDI}, s{sX_}, 14")
    A(f"s_add_u32 s{sDI}, s{sDI}, s{sA}")
    A(f"v_lshrrev_b32 v{vGE}, 3, v{vL}")
    A(f"v_mul_u32_u24 v{vGE}, 28672, v{vGE}")
    A(f"v_and_b32 v{vT+1}, 7, v{vL}")
    A(f"v_lshl_add_u32 v{vGE}, v{vT+1}, 4, v{vGE}")
    A(f"s_and_b32 s{sT0}, s{sHW}, 1")
    A(f"s_mul_i32 s{sT0}, s{sT0}, {8*28672}")
    A(f"s_lshr_b32 s{sT1}, s{sHW}, 1")
    A(f"s_mul_i32 s{sT1}, s{sT1}, 14336")
    A(f"s_add_u32 s{sT0}, s{sT0}, s{sT1}")
    A(f"s_lshl_b32 s{sT1}, s{sDI}, 7")
    A(f"s_add_u32 s{sT0}, s{sT0}, s{sT1}")
    A(f"v_add_u32 v{vGE}, s{sT0}, v{vGE}")
    zero_acc()
    service("W")
    A(f"s_lshl_b32 s{sT3}, s{sDI}, 16")
    pretouch(WS_PT + [(vA2, rW2, (sKB, h * 128 * 2048)) for h in range(4)] + [(vZ, rW3, (sT3, 0)), (vZ, rOUT, 0)])
    lw = opt.get("late_wo", "flag")
    if lw == "flag":
        lds_wait(L_FLAGW, 4, opt.get("wcnt", 4))
    elif lw == "p":
        lds_wait(L_CNTP, 2, 4)
    rowsplit_loads(vWb, rW2, sKB, lambda i: (i >> 2) * 128 * 2048 + (i & 3) * 2048, range(16), opt.get("DL", 6), None, nto)
    A(f"v_lshrrev_b32 v{vA2}, 5, v{vL}")
    A(f"v_lshlrev_b32 v{vA2}, 15, v{vA2}")
    A(f"v_lshl_add_u32 v{vA2}, v{vC4}, 2, v{vA2}")
    A(f"s_lshl_b32 s{sKB}, s{sDI}, 16")
    A(f"s_lshl_b32 s{sT2}, s{sHW}, 9")
    A(f"s_add_u32 s{sKB}, s{sKB}, s{sT2}")
    perm_to(vWa, vWb, 16)
    stamp(6)
    lds_wait(L_CNTO, 2)
    poll(Z, vGA, [WS_A, WS_A + 32768], sT10, 0x3ff, Z + 8, sleep=opt.get("sleepA", 0))
    for i in range(8):
        A(f"v_and_b32 v{Z+i}, s{sM10}, v{Z+i}")
    for c in range(4):
        A(f"v_add_f32 v{Z+c}, v{Z+c}, v{Z+4+c}")
    red4_to_lds(vLW, 0)
    stamp(12)
    read4_from_lds(vLR)
    A(f"v_add_f32 v{Z}, v{Z}, v{Z+2}")
    pack_pairs(Z, Z + 4)
    gemv_publish(vWa, 8, lambda p: (Z + 4, 2 * p))
    A(f"s_cmp_ge_u32 s{sA}, 14")
    A("s_cbranch_scc1 L_reduce")
    vWd = vWa + 64
    rowsplit_loads(vWb, rW3, sKB, lambda i: i * 2048, range(16), opt.get("DLD", 4), None, ntd)
    A(f"s_add_u32 s{sPUB}, s{sPUB}, {WS_D - WS_B}")
    zero_acc()
    perm_to(vWd, vWb, 16)
    stamp(9)
    poll(Z, vGE, [WS_E], sT10, 0x3ff, Z + 8, sleep=opt.get("sleepE", 0))
    for i in range(4):
        A(f"v_and_b32 v{Z+i}, s{sM10}, v{Z+i}")
    red4_to_lds(vLW, 1024)
    stamp(10)
    read4_from_lds(vLE)
    Gv, Uv = Z, Z + 2
    rbf(Gv, Gv)
    rbf(Uv, Uv)
    T1, T2 = Z + 1, Z + 3
    A(f"v_mul_f32 v{T1}, v{Gv}, v{Gv}")
    A(f"v_mul_f32 v{T1}, v{T1}, v{Gv}")
    A(f"v_mov_b32 v{T2}, v{Gv}")
    A(f"v_fmac_f32 v{T2}, 0x3d372713, v{T1}")
    A(f"v_mul_f32 v{T2}, 0xc0135761, v{T2}")
    A(f"v_exp_f32 v{T2}, v{T2}")
    A(f"v_add_f32 v{T2}, 1.0, v{T2}")
    A(f"v_rcp_f32 v{T2}, v{T2}")
    A(f"v_mul_f32 v{Gv}, v{Gv}, v{T2}")
    rbf(Gv, Gv)
    A(f"v_mul_f32 v{Gv}, v{Gv}, v{Uv}")
    pack_pairs(Gv, Z + 4)
    gemv_publish(vWd, 8, lambda p: (Z + 4, 2 * p))
    stamp(14)
    A("s_branch L_end")

    A.label("L_roleR")
    A.vm = []
    A("s_barrier")
    A("s_waitcnt lgkmcnt(0)")
    tags()
    common_addr()
    service("R")
    pretouch(WS_PT + [(vZ, rOUT, 0), (vZ, rX, 0)])
    lds_wait(L_CNTO, 8)
    A.label("L_reduce")
    A.vm = []
    A(f"s_lshl_b32 s{sRID}, s{sX_}, 2")
    A(f"s_and_b32 s{sT0}, s{sA}, 1")
    A(f"s_add_u32 s{sRID}, s{sRID}, s{sT0}")
    A(f"s_lshr_b32 s{sT0}, s{sA}, 4")
    A(f"s_lshl_b32 s{sT0}, s{sT0}, 1")
    A(f"s_add_u32 s{sRID}, s{sRID}, s{sT0}")
    A(f"v_lshrrev_b32 v{vT+3}, 1, v{vC4}")
    A(f"s_lshl_b32 s{sT0}, s{sRID}, 6")
    A(f"buffer_load_ushort v{vX0}, v{vT+3}, {srd(rX)}, s{sT0} offen")
    A(f"s_lshl_b32 s{sT0}, s{sHW}, 17")
    A(f"s_lshl_b32 s{sT1}, s{sRID}, 7")
    A(f"s_add_u32 s{sT0}, s{sT0}, s{sT1}")
    A(f"v_add_u32 v{vA1}, s{sT0}, v{vA1}")
    A(f"v_lshrrev_b32 v{vT}, 5, v{vL}")
    A(f"v_lshl_add_u32 v{vT+2}, v{vT}, 12, v{vC4}")
    A(f"s_lshl_b32 s{sT3}, s{sHW}, 13")
    A(f"s_add_u32 s{sT3}, s{sT3}, s{sT1}")
    A(f"s_add_u32 s{sT3}, s{sT3}, {WS_H}")

    def reduce32(base, execs, ldsoff, first, sl):
        A(f"v_add_u32 v{vLR}, {L_GP+ldsoff}, v{vC4}")
        poll(Z, vA1, [base + i * 32768 for i in range(4)], sT10, 0x3ff, Z + 16, execs, sleep=sl)
        if first:
            A(f"v_lshlrev_b32 v{vX0}, 16, v{vX0}")
        for i in range(16):
            A(f"v_and_b32 v{Z+i}, s{sM10}, v{Z+i}")
        for c in range(4):
            A(f"v_add_f32 v{Z+c}, v{Z+c}, v{Z+4+c}")
            A(f"v_add_f32 v{Z+8+c}, v{Z+8+c}, v{Z+12+c}")
        for c in range(4):
            A(f"v_add_f32 v{Z+c}, v{Z+c}, v{Z+8+c}")
        red4_to_lds(vLW, ldsoff)
        read4_from_lds(vLR)
        A(f"v_add_f32 v{Z}, v{Z}, v{Z+2}")
        rbf(Z, Z)
        A(f"v_add_f32 v{vX0}, v{vX0}, v{Z}")
        rbf(vX0, vX0)

    reduce32(WS_B, None, 1024, True, opt.get("sleepB", 0))
    A(f"v_or_b32 v{Z}, s{sT16}, v{vX0}")
    A(f"buffer_store_dword v{Z}, v{vT+2}, {srd(rWS)}, s{sT3} offen sc1")
    stamp(13)
    reduce32(WS_D, {1: 0xffff, 3: 0xffff}, 2048, False, opt.get("sleepD", 0))
    A(f"s_cmp_lg_u32 s{sHW}, 0")
    A("s_cbranch_scc1 L_end")
    A(f"v_lshrrev_b32 v{Z}, 16, v{vX0}")
    A(f"s_lshl_b32 s{sT0}, s{sRID}, 6")
    A("s_mov_b64 exec, 0xffffffff")
    A(f"buffer_store_short v{Z}, v{vT+3}, {srd(rOUT)}, s{sT0} offen")
    A("s_mov_b64 exec, -1")
    stamp(15)
    A(f"s_cmp_lg_u32 s{sRID}, 0")
    A("s_cbranch_scc1 L_end")
    A(f"v_mov_b32 v{Z}, s{sE}")
    A("s_mov_b64 exec, 1")
    A(f"buffer_store_dword v{Z}, v{vZ}, {srd(rWS)}, 0 offen offset:{WS_EPOCH}")
    A("s_mov_b64 exec, -1")
    A("s_branch L_end")

    A.label("L_roleM")
    A.vm = []
    A(f"s_mul_i32 s{sRI}, s{sX_}, 14")
    A(f"s_add_u32 s{sRI}, s{sRI}, s{sA}")
    A(f"s_sub_u32 s{sRI}, s{sRI}, 16")
    A(f"s_cmp_lt_u32 s{sHW}, 2")
    A(f"s_cselect_b32 s{rW1}, s28, s30")
    A(f"s_cselect_b32 s{rW1+1}, s29, s31")
    A(f"s_and_b32 s{rW1+1}, s{rW1+1}, 0xffff")
    A(f"s_mov_b32 s{rW1+2}, {hex(1024*3584*2)}")
    A(f"s_mov_b32 s{rW1+3}, 0x20000")
    A("s_barrier")
    common_addr()
    sKC, sCG = 16, 17
    if opt.get("mmap", 1) == 0:
        A(f"s_and_b32 s{sKC}, s{sRI}, 15")
        A(f"s_lshr_b32 s{sCG}, s{sRI}, 4")
    else:
        A(f"s_sub_u32 s{sCG}, s{sA}, 16")
        A(f"s_lshl_b32 s{sKC}, s{sX_}, 1")
        A(f"s_cmp_ge_u32 s{sCG}, 7")
        A(f"s_cselect_b32 s{sT0}, 7, 0")
        A(f"s_cselect_b32 s{sT1}, 1, 0")
        A(f"s_sub_u32 s{sCG}, s{sCG}, s{sT0}")
        A(f"s_add_u32 s{sKC}, s{sKC}, s{sT1}")
    A(f"v_lshrrev_b32 v{vA2}, 5, v{vL}")
    A(f"v_mul_u32_u24 v{vA2}, {32*7168}, v{vA2}")
    A(f"v_lshl_add_u32 v{vA2}, v{vC4}, 2, v{vA2}")
    A(f"s_mul_i32 s{sKB}, s{sKC}, {64*7168}")
    A(f"s_lshl_b32 s{sT2}, s{sCG}, 10")
    A(f"s_add_u32 s{sKB}, s{sKB}, s{sT2}")
    A(f"s_and_b32 s{sT3}, s{sHW}, 1")
    A(f"s_lshl_b32 s{sT2}, s{sT3}, 9")
    A(f"s_add_u32 s{sKB}, s{sKB}, s{sT2}")
    gu1 = opt.get("gu1", 0)

    gst = {"done": 0}

    def gu_perm(p):
        for t in range(4):
            a = vWa + 8 + (2 * p) * 4 + t
            b = vWa + 8 + (2 * p + 1) * 4 + t
            A(f"v_perm_b32 v{vWa+(2*p)*4+t}, v{b}, v{a}, s{sPLO}")
            A(f"v_perm_b32 v{vWa+(2*p+1)*4+t}, v{b}, v{a}, s{sPHI}")
        gst["done"] = p + 1

    def gu_loads(rng, d):
        for i in rng:
            A(f"s_add_u32 s{sT0}, s{sKB}, {i*7168}")
            throttle(d)
            A(f"buffer_load_dwordx4 {v4(vWa+8+4*i)}, v{vA2}, {srd(rW1)}, s{sT0} offen{ntg}", f"gu{i//2}")
            p = gst["done"]
            if 2 * p + 1 < i and f"gu{p}" not in A.vm:
                gu_perm(p)

    def gu_finish(n):
        while gst["done"] < n // 2:
            A.wait_vm(f"gu{gst['done']}")
            gu_perm(gst["done"])

    gu_loads(range(gu1), opt.get("DG1", 2))
    gu_finish(gu1)
    A(f"s_mul_i32 s{sPUB}, s{sKC}, 28672")
    A(f"s_lshr_b32 s{sT1}, s{sHW}, 1")
    A(f"s_mul_i32 s{sT1}, s{sT1}, 14336")
    A(f"s_add_u32 s{sPUB}, s{sPUB}, s{sT1}")
    A(f"s_lshl_b32 s{sT1}, s{sCG}, 11")
    A(f"s_add_u32 s{sPUB}, s{sPUB}, s{sT1}")
    A(f"s_lshl_b32 s{sT1}, s{sT3}, 10")
    A(f"s_add_u32 s{sPUB}, s{sPUB}, s{sT1}")
    A(f"s_add_u32 s{sPUB}, s{sPUB}, {WS_E}")
    A(f"s_lshl_b32 s{sT1}, s{sX_}, 12")
    A(f"s_lshl_b32 s{sT2}, s{sHW}, 10")
    A(f"s_add_u32 s{sT2}, s{sT1}, s{sT2}")
    A(f"v_add_u32 v{vGA}, s{sT2}, v{vOV}")
    A(f"v_and_b32 v{vGE}, 7, v{vL}")
    A(f"v_lshlrev_b32 v{vGE}, 4, v{vGE}")
    A(f"v_lshrrev_b32 v{vT}, 5, v{vL}")
    A(f"v_lshl_add_u32 v{vGE}, v{vT}, 7, v{vGE}")
    A(f"s_lshl_b32 s{sT2}, s{sKC}, 8")
    A(f"s_add_u32 s{sT2}, s{sT1}, s{sT2}")
    A(f"v_add_u32 v{vGE}, s{sT2}, v{vGE}")
    A(f"s_lshl_b32 s{sT0}, s{sHW}, 3")
    A(f"v_mov_b32 v{vLW}, s{sT0}")
    zero_acc()
    A("s_waitcnt vmcnt(0) lgkmcnt(0)")
    stamp(1)
    tags()
    service("M")
    pretouch(WS_PT + [(vA2, rW1, (sKB, i * 7168)) for i in (0, 8, 16, 24, 31)])
    ga = opt.get("gu_after", "p")
    if ga == "flag":
        lds_wait(L_FLAGW, 4, opt.get("wcnt", 4))
    elif ga == "o":
        lds_wait(L_CNTO, 4, 4)
    else:
        lds_wait(L_CNTP, 4, 4)
    gu2 = gu1
    if ga == "g":
        gu2 = opt.get("gu2", gu1)
        gu_loads(range(gu1, gu2), opt.get("DLG", 10))
        A(f"s_cmp_lg_u32 s{sHW}, 0")
        A("s_cbranch_scc1 L_gwait")
        svm = list(A.vm)
        A(f"v_lshlrev_b32 v{vT+4}, 12, v{vL}")
        A(f"s_lshl_b32 s{sT1}, s{sG}, 18")
        A(f"s_lshl_b32 s{sT2}, s{sC}, 6")
        A(f"s_add_u32 s{sT1}, s{sT1}, s{sT2}")
        A(f"v_add_u32 v{vT+4}, s{sT1}, v{vT+4}")
        poll(Z, vT + 4, [WS_A], sT10, 0x3ff, Z + 8, sleep=opt.get("sleepG", 6))
        lds_setflag(L_FLAGG)
        A.label("L_gwait")
        A.vm = svm
        lds_wait(L_FLAGG, 2)
    stamp(3)
    gu_loads(range(gu2, 32), opt.get("DLG", 10))
    stamp(4)
    gu_finish(32)
    stamp(6)
    poll(Z, [vGA, vGE], [WS_H, WS_H], sT16, 0xffff, Z + 8, sleep=opt.get("sleepC", 0))
    stamp(13)
    for i in range(8):
        A(f"v_and_b32 v{Z+i}, s{sM16}, v{Z+i}")
    A(f"v_readfirstlane_b32 s{sT1}, v{Z}")
    S1, S2, TT = Z + 8, Z + 9, Z + 10
    for i in range(4):
        A(f"v_subrev_f32 v{Z+i}, s{sT1}, v{Z+i}")
    A(f"v_add_f32 v{S1}, v{Z}, v{Z+1}")
    A(f"v_mul_f32 v{S2}, v{Z}, v{Z}")
    A(f"v_add_f32 v{TT}, v{Z+2}, v{Z+3}")
    A(f"v_fmac_f32 v{S2}, v{Z+1}, v{Z+1}")
    A(f"v_add_f32 v{S1}, v{S1}, v{TT}")
    A(f"v_fmac_f32 v{S2}, v{Z+2}, v{Z+2}")
    A(f"v_fmac_f32 v{S2}, v{Z+3}, v{Z+3}")
    A(f"v_permlane32_swap_b32 v{S1}, v{S2}")
    A(f"v_add_f32 v{S1}, v{S1}, v{S2}")
    row_red("v_add_f32", S1, (8, 4, 2, 1))
    A(f"v_mov_b32 v{TT}, v{S1}")
    A(f"v_permlane16_swap_b32 v{TT}, v{S1}")
    A(f"v_add_f32 v{S1}, v{S1}, v{TT}")
    A(f"v_mov_b32 v{S2}, v{S1}")
    A(f"v_permlane32_swap_b32 v{S1}, v{S2}")
    A(f"v_mul_f32 v{TT}, 0x3b800000, v{S1}")
    A(f"v_fma_f32 v{S2}, -v{TT}, v{S1}, v{S2}")
    A(f"v_add_f32 v{S1}, s{sT1}, v{TT}")
    A(f"ds_write_b64 v{vLW}, {v2(S1)} offset:{L_LN}")
    A("s_waitcnt lgkmcnt(0)")
    A("s_barrier")
    A(f"ds_read_b128 {v4(Z+12)}, v{vZ} offset:{L_LN}")
    A(f"ds_read_b128 {v4(Z+16)}, v{vZ} offset:{L_LN+16}")
    A("s_waitcnt lgkmcnt(0)")
    MEAN, VAR = Z + 8, Z + 9
    A(f"v_add_f32 v{MEAN}, v{Z+12}, v{Z+14}")
    A(f"v_add_f32 v{TT}, v{Z+16}, v{Z+18}")
    A(f"v_add_f32 v{VAR}, v{Z+13}, v{Z+15}")
    A(f"v_add_f32 v{MEAN}, v{MEAN}, v{TT}")
    A(f"v_add_f32 v{Z+11}, v{Z+17}, v{Z+19}")
    A(f"v_mul_f32 v{MEAN}, 0x3e800000, v{MEAN}")
    A(f"v_add_f32 v{VAR}, v{VAR}, v{Z+11}")
    for k in range(4):
        A(f"v_sub_f32 v{Z+12+2*k}, v{Z+12+2*k}, v{MEAN}")
    A(f"v_mul_f32 v{TT}, v{Z+12}, v{Z+12}")
    for k in range(1, 4):
        A(f"v_fmac_f32 v{TT}, v{Z+12+2*k}, v{Z+12+2*k}")
    A(f"v_mul_f32 v{VAR}, 0x3a800000, v{VAR}")
    A(f"v_fmac_f32 v{VAR}, 0x3e800000, v{TT}")
    ln_finish(MEAN, VAR, Z + 10, Z + 11)
    ln_apply_pair(Z + 12, Z + 4, Z + 5, Z + 10, Z + 11)
    ln_apply_pair(Z + 13, Z + 6, Z + 7, Z + 10, Z + 11)
    stamp(14)
    gemv_publish(vWa, 16, lambda p: (Z + 12 + (p & 1), p >> 1))
    stamp(15)

    A.label("L_end")
    if stamps:
        A("s_mov_b64 exec, 1")
        A(f"s_lshl_b32 s{sT0}, s2, 3")
        A(f"s_add_u32 s{sT0}, s{sT0}, s{sW}")
        A(f"s_lshl_b32 s{sT0}, s{sT0}, 6")
        A(f"s_add_u32 s{sT0}, s{sT0}, {WS_STAMP}")
        for q in range(4):
            for k in range(4):
                A(f"v_mov_b32 v{vT+k}, s{sSTAMP+4*q+k}")
            A(f"buffer_store_dwordx4 {v4(vT)}, v{vZ}, {srd(rWS)}, s{sT0} offen offset:{16*q}")
            A("s_nop 2")
    A.label("L_exit")
    A("s_endpgm")
    A.raw('.section .rodata,"a"')
    A.raw(".p2align 6")
    A.raw(f".amdhsa_kernel {NAME}_kernel")
    A.raw("  .amdhsa_next_free_vgpr 256")
    A.raw("  .amdhsa_next_free_sgpr 102")
    A.raw("  .amdhsa_accum_offset 256")
    A.raw("  .amdhsa_group_segment_fixed_size 0")
    A.raw("  .amdhsa_kernarg_size 96")
    A.raw("  .amdhsa_user_sgpr_count 2")
    A.raw("  .amdhsa_user_sgpr_kernarg_segment_ptr 1")
    A.raw("  .amdhsa_system_sgpr_workgroup_id_x 1")
    A.raw("  .amdhsa_float_denorm_mode_32 3")
    A.raw(".end_amdhsa_kernel")
    return A.text()


if __name__ == "__main__":
    import json
    opt = json.loads(sys.argv[2]) if len(sys.argv) > 2 else {}
    out = sys.argv[1] if len(sys.argv) > 1 else "k.s"
    open(out, "w").write(gen(opt))
```

```python
import sys
from asmlib import Asm

NAME = "sequential_preLN__gqa_block_cached__glu_gated_geglu__decode"

HEADER = """; Kernarg layout for this problem (96 bytes, ptrs only, base s[0:1]):
"""

STAMP_NAMES = ["start", "qpub", "qgath", "kiss", "qrdy", "qk", "wland", "s_glob", "viss", "prdy", "pv", "apub",
               "hopA", "h", "hopC", "end"]

WS_EPOCH = 0x0
WS_Q = 0x1000
WS_S = 0x8000
WS_H = 0x10000
WS_HINT = 0x20000
WS_A = 0x100000
WS_B = 0x200000
WS_D = 0x300000
WS_STAMP = 0x400000
WS_E = 0x500000
WS_C = 0x580000
WS_EF = 0x600000
WS_SIZE = 0x700000

L_CNTQ, L_FLAGQ, L_CNTS, L_FLAGS = 0, 4, 8, 12
L_FLAGW = 16
L_CNTO = 20
L_CNTB = 24
L_CNTP = 28
L_PRGK, L_PRGV, L_FLAGG = 32, 36, 40
L_LVL = 44
L_CK = 48
L_Q = 0x200
L_SP = 0xC00
L_SG = 0x1400
L_F = 0x1480
L_LN = 0x1800
L_GP = 0x2000
L_QPART = 0x2C00
L_O = 0x3000
L_KV = 0x8000
NLDS = 3
LDS_BYTES = L_KV + 4 * NLDS * 8192

sW = 3
sX_, sA, sJ, sRI, sG, sC = 4, 5, 6, 7, 8, 9
sT16, sT10 = 10, 11
sPLO, sPHI = 12, 13
sM10, sM16 = 14, 15
rX, rK, rV, rW1, rW2, rW3, rOUT, rWS = 40, 44, 48, 52, 56, 60, 68, 72
sTO, sKB, sE, sLOG2E = 76, 77, 78, 79
sSTAMP = 80
sT0, sT1, sT2, sT3 = 96, 97, 98, 99
sP0, sP1 = 100, 101
sSCALE, sLDSB, sPUB, sHW = 64, 65, 66, 67

vL, vN, vGq, vOK, vOV, vM, vH, vZ = 0, 1, 2, 3, 4, 5, 6, 7
vT = 8
vQ = 16
vS = 32
vR = 96


def srd(r):
    return f"s[{r}:{r+3}]"


def v4(r):
    return f"v[{r}:{r+3}]"


def v2(r):
    return f"v[{r}:{r+1}]"


DPPALL = "row_mask:0xf bank_mask:0xf"


def gen(opt):
    A = Asm()
    stamps = opt.get("stamps", False)
    pol = lambda k, d: (" " + opt.get(k, d)).rstrip()
    ntq, nto, ntg, ntd = pol("pq", ""), pol("po", ""), pol("pg", ""), pol("pd", "")
    ntk, ntv = pol("pk", "nt"), pol("pv", "nt")
    D = opt.get("D", 5)
    DC = opt.get("DC", 7)
    DG = opt.get("DG", 1)

    def stamp(k):
        if not stamps:
            return
        A(f"s_memrealtime s[{sP0}:{sP1}]")
        A("s_waitcnt lgkmcnt(0)")
        A(f"s_mov_b32 s{sSTAMP+k}, s{sP0}")

    def mk_srd(r, ptr, size):
        A(f"s_mov_b32 s{r}, s{ptr}")
        A(f"s_and_b32 s{r+1}, s{ptr+1}, 0xffff")
        A(f"s_mov_b32 s{r+2}, {hex(size)}")
        A(f"s_mov_b32 s{r+3}, 0x20000")

    def rbf(dst, src):
        A(f"v_cvt_pk_bf16_f32 v{dst}, v{src}, v{src}")
        A(f"v_and_b32 v{dst}, s{sM16}, v{dst}")

    def row_red(op, x, rors):
        for r in rors:
            A(f"{op}_dpp v{x}, v{x}, v{x} row_ror:{r} {DPPALL}")

    def xrow_red(op, x, t):
        A(f"v_mov_b32 v{t}, v{x}")
        A(f"v_permlane16_swap_b32 v{t}, v{x}")
        A(f"{op} v{x}, v{x}, v{t}")
        A(f"v_mov_b32 v{t}, v{x}")
        A(f"v_permlane32_swap_b32 v{t}, v{x}")
        A(f"{op} v{x}, v{x}, v{t}")

    def wave_sum(x, t):
        row_red("v_add_f32", x, (8, 4, 2, 1))
        xrow_red("v_add_f32", x, t)

    def ln_finish(mean, var, out_mb, out_r):
        rbf(out_mb, mean)
        rbf(var, var)
        A(f"v_add_f32 v{var}, 0x3727c5ac, v{var}")
        rbf(var, var)
        A(f"v_sqrt_f32 v{var}, v{var}")
        rbf(var, var)
        A(f"v_rcp_f32 v{out_r}, v{var}")

    def ln_stats(vals, t0, t1, t2, out_mb, out_r):
        A(f"v_add_f32 v{t0}, v{vals[0]}, v{vals[1]}")
        A(f"v_add_f32 v{t1}, v{vals[2]}, v{vals[3]}")
        for i in range(4, 16, 2):
            A(f"v_add_f32 v{t0}, v{t0}, v{vals[i]}")
            A(f"v_add_f32 v{t1}, v{t1}, v{vals[i+1]}")
        A(f"v_add_f32 v{t0}, v{t0}, v{t1}")
        wave_sum(t0, t1)
        A(f"v_mul_f32 v{t0}, 0x3a800000, v{t0}")
        A(f"v_sub_f32 v{t1}, v{vals[0]}, v{t0}")
        A(f"v_mul_f32 v{t2}, v{t1}, v{t1}")
        for i in range(1, 16):
            A(f"v_sub_f32 v{t1}, v{vals[i]}, v{t0}")
            A(f"v_fmac_f32 v{t2}, v{t1}, v{t1}")
        wave_sum(t2, t1)
        A(f"v_mul_f32 v{t2}, 0x3a800000, v{t2}")
        ln_finish(t0, t2, out_mb, out_r)

    def ln_apply_pair(dst, a, b, mb, r):
        A(f"v_sub_f32 v{a}, v{a}, v{mb}")
        A(f"v_sub_f32 v{b}, v{b}, v{mb}")
        A(f"v_cvt_pk_bf16_f32 v{b}, v{a}, v{b}")
        A(f"v_lshlrev_b32 v{a}, 16, v{b}")
        A(f"v_and_b32 v{b}, s{sM16}, v{b}")
        A(f"v_mul_f32 v{a}, v{a}, v{r}")
        A(f"v_mul_f32 v{b}, v{b}, v{r}")
        A(f"v_cvt_pk_bf16_f32 v{dst}, v{a}, v{b}")

    def unpack(dlo, dhi, src):
        A(f"v_lshlrev_b32 v{dlo}, 16, v{src}")
        A(f"v_and_b32 v{dhi}, s{sM16}, v{src}")

    def perm_inplace(src, nrows, tmp):
        for p in range(nrows // 2):
            for t in range(4):
                a = src + (2 * p) * 4 + t
                b = src + (2 * p + 1) * 4 + t
                A(f"v_perm_b32 v{tmp+t}, v{b}, v{a}, s{sPHI}")
                A(f"v_perm_b32 v{a}, v{b}, v{a}, s{sPLO}")
            for t in range(4):
                A(f"v_mov_b32 v{src+(2*p+1)*4+t}, v{tmp+t}")

    def dots(acc, wp, xp, npairs):
        for p in range(npairs):
            for c in range(8):
                src = "0" if p == 0 else f"v{acc+c}"
                w = wp + (2 * p + (c & 1)) * 4 + (c >> 1)
                A(f"v_dot2_f32_bf16 v{acc+c}, v{w}, v{xp+p}, {src}")

    def red8_rows(acc):
        for c in range(4):
            A(f"v_permlane32_swap_b32 v{acc+c}, v{acc+c+4}")
        for c in range(4):
            A(f"v_add_f32 v{acc+c}, v{acc+c}, v{acc+c+4}")
        for c in range(2):
            A(f"v_permlane16_swap_b32 v{acc+c}, v{acc+c+2}")
        for c in range(2):
            A(f"v_add_f32 v{acc+c}, v{acc+c}, v{acc+c+2}")

    def tag10(r):
        A(f"v_add_u32 v{r}, 0x200, v{r}")
        A(f"v_and_or_b32 v{r}, v{r}, s{sM10}, v{vTAG}")

    def lds_wait(off, sl=2, atleast=1):
        lp = A.newlabel("ldsw")
        dn = A.newlabel("ldsd")
        A.label(lp)
        A(f"ds_read_b32 v{vT}, v{vZ} offset:{off}")
        A("s_waitcnt lgkmcnt(0)")
        A(f"v_readfirstlane_b32 s{sT0}, v{vT}")
        A(f"s_cmp_ge_u32 s{sT0}, {atleast}")
        A(f"s_cbranch_scc1 {dn}")
        A(f"s_sleep {sl}")
        A(f"s_sub_u32 s{sTO}, s{sTO}, 1")
        A(f"s_cmp_lg_u32 s{sTO}, 0")
        A(f"s_cbranch_scc1 {lp}")
        A("s_branch L_end")
        A.label(dn)

    def lds_arrive(off, dst_s):
        A(f"v_mov_b32 v{vT+1}, 1")
        A("s_mov_b64 exec, 1")
        A(f"ds_add_rtn_u32 v{vT}, v{vZ}, v{vT+1} offset:{off}")
        A("s_waitcnt lgkmcnt(0)")
        A(f"v_readfirstlane_b32 s{dst_s}, v{vT}")
        A("s_mov_b64 exec, -1")

    def lds_inc(off):
        A(f"v_mov_b32 v{vT+1}, 1")
        A("s_mov_b64 exec, 1")
        A(f"ds_add_u32 v{vZ}, v{vT+1} offset:{off}")
        A("s_mov_b64 exec, -1")

    def lds_setflag(off):
        A(f"v_mov_b32 v{vT+1}, 1")
        A(f"ds_write_b32 v{vZ}, v{vT+1} offset:{off}")

    def poll(dst, voff, soffs, tagreg, mask, t, execs=None, sleep=0, alt=None, back=None, entry=None):
        n = len(soffs)
        execs = execs or {}
        masked = opt.get("masked", True)
        lp = A.newlabel("poll")
        dn = A.newlabel("polld")
        A(f"v_mov_b32 v{t+2*n}, s{tagreg}")
        for i in execs:
            for c in range(4):
                A(f"v_mov_b32 v{dst+4*i+c}, s{tagreg}")
        if alt:
            A(f"s_mov_b32 s{sT3}, 0")
        A(f"s_mov_b64 s[{sP0}:{sP1}], -1")
        A.label(lp)
        if alt:
            A(f"s_add_u32 s{sT3}, s{sT3}, 1")
            A(f"s_and_b32 s{sT2}, s{sT3}, {alt[1]-1}")
            A(f"s_cselect_b32 s{sT2}, {hex(alt[0])}, 0")
        if masked:
            A(f"s_mov_b64 exec, s[{sP0}:{sP1}]")
        for i in range(n):
            if alt:
                A(f"s_add_u32 s{sT0}, s{sT2}, {hex(soffs[i])}")
            else:
                A(f"s_mov_b32 s{sT0}, {hex(soffs[i])}")
            sk = None
            if i in execs:
                A(f"s_and_b32 exec_hi, exec_hi, {hex(execs[i])}")
                sk = A.newlabel("psk")
                A(f"s_cbranch_execz {sk}")
            vo = voff[i] if isinstance(voff, (list, tuple)) else voff
            A(f"buffer_load_dwordx4 {v4(dst+4*i)}, v{vo}, {srd(rWS)}, s{sT0} offen sc1")
            if i in execs:
                A.label(sk)
                A(f"s_mov_b64 exec, s[{sP0}:{sP1}]" if masked else "s_mov_b64 exec, -1")
        if entry:
            A.label(entry)
        A("s_waitcnt vmcnt(0)")
        for i in range(2 * n):
            A(f"v_bitop3_b32 v{t+i}, v{dst+2*i}, v{dst+2*i+1}, v{t+2*n} bitop3:0x7e")
        regs = [t + i for i in range(2 * n)]
        while len(regs) > 1:
            nxt = []
            k = 0
            while k < len(regs):
                grp = regs[k:k + 3]
                if len(grp) == 3:
                    A(f"v_or3_b32 v{grp[0]}, v{grp[0]}, v{grp[1]}, v{grp[2]}")
                elif len(grp) == 2:
                    A(f"v_or_b32 v{grp[0]}, v{grp[0]}, v{grp[1]}")
                nxt.append(grp[0])
                k += 3
            regs = nxt
        A(f"v_and_b32 v{t}, {hex(mask)}, v{t}")
        A(f"v_cmp_ne_u32 s[{sP0}:{sP1}], 0, v{t}")
        if masked:
            A("s_mov_b64 exec, -1")
        A(f"s_cmp_eq_u64 s[{sP0}:{sP1}], 0")
        A(f"s_cbranch_scc1 {dn}")
        if sleep:
            A(f"s_sleep {sleep}")
        if back:
            nb = A.newlabel("pnb")
            A(f"s_bcnt1_i32_b64 s{sT0}, s[{sP0}:{sP1}]")
            A(f"s_cmp_le_u32 s{sT0}, {back[0]}")
            A(f"s_cbranch_scc1 {nb}")
            A(f"s_sleep {back[1]}")
            A.label(nb)
        A(f"s_sub_u32 s{sTO}, s{sTO}, 1")
        A(f"s_cmp_lg_u32 s{sTO}, 0")
        A(f"s_cbranch_scc1 {lp}")
        A("s_branch L_end")
        A.label(dn)

    def throttle(d):
        if d and len(A.vm) >= d:
            A(f"s_waitcnt vmcnt({d-1})")

    LV = opt.get("LV", [5, 6, 7, 8])
    sLVL, sCLS = 36, 37

    def throttle2(on):
        if not on:
            return
        if on < 0:
            throttle(-on)
            return
        if len(A.vm) >= LV[-1]:
            A(f"s_waitcnt vmcnt({LV[-1]-1})")
        sv = list(A.vm)
        lab = None
        for lv in range(len(LV) - 2, -1, -1):
            if len(sv) >= LV[lv] and LV[lv] < LV[lv + 1]:
                lab = lab or A.newlabel("th")
                A(f"s_cmp_gt_u32 s{sLVL}, {lv}")
                A(f"s_cbranch_scc1 {lab}")
                A(f"s_waitcnt vmcnt({LV[lv]-1})")
        if lab:
            A.label(lab)
        A.vm = sv

    def tok(item):
        return f"{item[0]}{item[1]}"

    st = {}

    def blk_reg(b):
        return vR + (b - NLDS) * 32

    def issue(item, d):
        kind, b, i = item
        ps = {("k", 1, 0): 1, ("k", 2, 0): 12, ("k", 4, 0): 13, ("k", 6, 0): 14, ("v", 2, 0): 6, ("v", 4, 0): 15}
        if item in ps and opt.get("pstamps", False):
            stamp(ps[item])
        idx = (0 if kind == "k" else 64) + 8 * b + i
        if opt.get("rank") and idx > 64 and idx < 64 + opt.get("rank_end", 64) and d:
            if i % 4 == 0:
                A(f"ds_read_b32 v{vT+7}, v{vZ} offset:{L_LVL}")
                st["pend"] = True
            elif st.get("pend"):
                A("s_waitcnt lgkmcnt(0)")
                A(f"v_readfirstlane_b32 s{sT1}, v{vT+7}")
                A(f"s_sub_u32 s{sT1}, s{sT1}, 1")
                A(f"s_cselect_b32 s{sLVL}, s{sLVL}, s{sT1}")
                st["pend"] = False
        if opt.get("rank") and idx == 64 + opt.get("rank_end", 64):
            A(f"s_mov_b32 s{sLVL}, {opt.get('rank_base', 1)}")
        if kind == "k":
            off = (i >> 2) * 4096 + ((i >> 1) & 1) * 512 + (i & 1) * 128
            va, rs, nt = vOK, rK, ntk
        else:
            off = i * 1024
            va, rs, nt = vOV, rV, ntv
        if b < NLDS:
            A(f"s_add_u32 s{sT0}, s{sKB}, {hex((b<<21) + off)}")
            A(f"s_add_u32 m0, s{sLDSB}, {hex(b*8192 + i*1024)}")
            throttle2(d)
            A(f"buffer_load_dwordx4 v{va}, {srd(rs)}, s{sT0} offen{nt} lds", tok(item))
        else:
            A(f"s_add_u32 s{sT0}, s{sKB}, {hex((b<<21) + (off & ~4095))}")
            throttle2(d)
            A(f"buffer_load_dwordx4 {v4(blk_reg(b)+4*i)}, v{va}, {srd(rs)}, s{sT0} offen offset:{off & 4095}{nt}",
              tok(item))

    vTAG = vH

    def tags():
        A(f"s_add_u32 s{sE}, s{sE}, 1")
        A(f"s_and_b32 s{sT16}, s{sE}, 0xffff")
        A(f"s_and_b32 s{sT10}, s{sE}, 0x3ff")
        A(f"v_mov_b32 v{vTAG}, s{sT10}")

    A.raw(HEADER.rstrip("\n"))
    A.raw(f"; @launch grid=(256,1,1) block=(512,1,1) lds={LDS_BYTES}")
    A.raw('.amdgcn_target "amdgcn-amd-amdhsa--gfx950"')
    A.raw(".text")
    A.raw(f".globl {NAME}_kernel")
    A.raw(".p2align 8")
    A.raw(f".type {NAME}_kernel,@function")
    A.raw(f"{NAME}_kernel:")
    A("s_cmp_ge_u32 s2, 256")
    A("s_cbranch_scc1 L_exit")
    A("s_load_dwordx16 s[16:31], s[0:1], 0")
    A("s_load_dwordx8 s[32:39], s[0:1], 64")
    if stamps:
        A(f"s_memrealtime s[{sP0}:{sP1}]")
        for k in range(16):
            A(f"s_mov_b32 s{sSTAMP+k}, 0")
    A(f"v_lshrrev_b32 v{vT}, 6, v0")
    A(f"v_and_b32 v{vL}, 63, v0")
    A(f"v_readfirstlane_b32 s{sW}, v{vT}")
    A(f"v_mov_b32 v{vZ}, 0")
    A(f"v_and_b32 v{vN}, 15, v{vL}")
    A(f"v_lshrrev_b32 v{vGq}, 4, v{vL}")
    for i in range(4):
        A(f"v_mov_b32 v{vT+i}, 0")
    A(f"s_cmp_lg_u32 s{sW}, 0")
    A("s_cbranch_scc1 L_nozero")
    A(f"ds_write_b128 v{vZ}, {v4(vT)}")
    A(f"ds_write_b128 v{vZ}, {v4(vT)} offset:16")
    A(f"ds_write_b128 v{vZ}, {v4(vT)} offset:32")
    A(f"ds_write_b128 v{vZ}, {v4(vT)} offset:48")
    A.label("L_nozero")
    A(f"s_and_b32 s{sX_}, s2, 7")
    A(f"s_lshr_b32 s{sA}, s2, 3")
    sWL = 35
    gmap = opt.get("gmap", "x")
    if gmap == "a2":
        A(f"s_and_b32 s{sG}, s{sA}, 3")
        A(f"s_lshr_b32 s{sT0}, s{sA}, 2")
        A(f"s_lshl_b32 s{sC}, s{sT0}, 3")
        A(f"s_add_u32 s{sC}, s{sC}, s{sX_}")
        A(f"s_lshl_b32 s{sRI}, s{sX_}, 2")
        A(f"s_add_u32 s{sRI}, s{sRI}, s{sT0}")
    else:
        A(f"s_lshr_b32 s{sG}, s{sX_}, 1")
        A(f"s_and_b32 s{sC}, s{sX_}, 1")
        A(f"s_lshl_b32 s{sRI}, s{sC}, 4")
        A(f"s_and_b32 s{sT0}, s{sA}, 15")
        A(f"s_add_u32 s{sRI}, s{sRI}, s{sT0}")
        A(f"s_lshl_b32 s{sC}, s{sC}, 5")
        A(f"s_add_u32 s{sC}, s{sC}, s{sA}")
    A(f"s_lshl_b32 s{sJ}, s{sG}, 6")
    A(f"s_add_u32 s{sJ}, s{sJ}, s{sC}")
    A(f"s_and_b32 s{sHW}, s{sW}, 3")
    A(f"s_mov_b32 s{sPLO}, 0x05040100")
    A(f"s_mov_b32 s{sPHI}, 0x07060302")
    A(f"s_mov_b32 s{sM10}, 0xfffffc00")
    A(f"s_mov_b32 s{sM16}, 0xffff0000")
    A(f"s_mov_b32 s{sTO}, 200000")
    A(f"s_mov_b32 s{sLOG2E}, 0x3fb8aa3b")
    A(f"s_mov_b32 s{sSCALE}, 0x3db504f3")
    A(f"s_lshl_b32 s{sKB}, s{sG}, 24")
    A(f"s_lshl_b32 s{sT0}, s{sC}, 2")
    A(f"s_add_u32 s{sT0}, s{sT0}, s{sHW}")
    A(f"s_lshl_b32 s{sT0}, s{sT0}, 13")
    A(f"s_add_u32 s{sKB}, s{sKB}, s{sT0}")
    A(f"s_mul_i32 s{sLDSB}, s{sHW}, {NLDS*8192}")
    A(f"s_add_u32 s{sLDSB}, s{sLDSB}, {L_KV}")
    A(f"v_and_b32 v{vT+4}, 3, v{vN}")
    A(f"v_lshlrev_b32 v{vT+4}, 10, v{vT+4}")
    A(f"v_bfe_u32 v{vT+5}, v{vN}, 2, 1")
    A(f"v_lshl_add_u32 v{vT+4}, v{vT+5}, 8, v{vT+4}")
    A(f"v_lshrrev_b32 v{vT+5}, 3, v{vN}")
    A(f"v_lshl_add_u32 v{vT+4}, v{vT+5}, 6, v{vT+4}")
    A(f"v_lshl_add_u32 v{vOK}, v{vGq}, 4, v{vT+4}")
    A(f"v_lshlrev_b32 v{vOV}, 4, v{vL}")
    A("s_waitcnt lgkmcnt(0)")
    if stamps:
        A(f"s_mov_b32 s{sSTAMP}, s{sP0}")
    A(f"s_load_dword s{sE}, s[38:39], {WS_EPOCH}")
    mk_srd(rWS, 38, WS_SIZE)
    A(f"s_cmp_ge_u32 s{sW}, 4")
    A("s_cbranch_scc1 L_helper")

    mk_srd(rK, 18, 0x4000000)
    mk_srd(rV, 20, 0x4000000)
    k_items = [("k", b, i) for b in range(8) for i in range(8)]
    v_items = [("v", b, i) for b in range(8) for i in range(8)]
    lvO, lvQ, lvQs = opt.get("lv", [0, 1, 2])
    A(f"s_and_b32 s{sT0}, s{sRI}, 14")
    A(f"s_cmp_eq_u32 s{sT0}, 6")
    A(f"s_cselect_b32 s{sCLS}, {lvQs}, {lvQ}")
    A(f"s_cmp_lt_u32 s{sA}, 16")
    A(f"s_cselect_b32 s{sCLS}, {lvO}, s{sCLS}")
    A(f"s_and_b32 s{sT0}, s{sA}, 30")
    A(f"s_cmp_eq_u32 s{sT0}, 12")
    A(f"s_cselect_b32 s{sCLS}, {opt.get('lvR', 1)}, s{sCLS}")
    A(f"s_mov_b32 s{sLVL}, s{sCLS}")
    npre = opt.get("bpos", 4)
    nun = opt.get("nun", 0)
    for k, it in enumerate(k_items[:npre]):
        issue(it, 0 if k < nun else 1)
    A("s_barrier")
    A("s_waitcnt lgkmcnt(0)")
    tags()

    qpos = opt.get("qpos", 40)
    for k, it in enumerate(k_items):
        if k >= npre:
            issue(it, 1)
            if k + 1 == qpos:
                lds_inc(L_PRGK)
    stamp(3)
    lds_wait(L_FLAGQ)
    A(f"v_and_b32 v{vT}, 7, v{vN}")
    A(f"v_mul_u32_u24 v{vT}, 272, v{vT}")
    A(f"v_lshl_add_u32 v{vT}, v{vGq}, 4, v{vT}")
    A(f"v_lshrrev_b32 v{vT+1}, 3, v{vN}")
    A(f"v_lshl_add_u32 v{vT}, v{vT+1}, 6, v{vT}")
    for h in range(2):
        A(f"ds_read_b128 {v4(vQ+4*h)}, v{vT} offset:{L_Q+128*h}")
    A(f"v_add_u32 v{vM}, s{sLDSB}, v{vOV}")
    A("s_waitcnt lgkmcnt(0)")
    stamp(4)
    stream = list(v_items)

    def sprinkle(n=1):
        for _ in range(n):
            if stream:
                issue(stream.pop(0), 0)

    def score_round(a, b):
        A(f"v_cvt_pk_bf16_f32 v{b}, v{a}, v{b}")
        A(f"v_lshlrev_b32 v{a}, 16, v{b}")
        A(f"v_and_b32 v{b}, s{sM16}, v{b}")
        A(f"v_mul_f32 v{a}, s{sSCALE}, v{a}")
        A(f"v_mul_f32 v{b}, s{sSCALE}, v{b}")
        A(f"v_cvt_pk_bf16_f32 v{b}, v{a}, v{b}")
        A(f"v_lshlrev_b32 v{a}, 16, v{b}")
        A(f"v_and_b32 v{b}, s{sM16}, v{b}")

    def combine(t):
        d0, d1 = vS + 4 * t, vQ + 8 + 4 * (t & 1)
        for r in range(4):
            A(f"v_permlane32_swap_b32 v{d0+r}, v{d1+r}")
        for r in range(4):
            A(f"v_add_f32_dpp v{d0+r}, v{d1+r}, v{d0+r} row_ror:8 {DPPALL}")
        score_round(d0, d0 + 1)
        score_round(d0 + 2, d0 + 3)

    STG = vS + 32
    for b in range(8):
        A.wait_vm(f"k{b}")
        if b < NLDS:
            for i in range(8):
                A(f"ds_read_b128 {v4(STG+4*i)}, v{vM} offset:{b*8192+i*1024}")
            A("s_waitcnt lgkmcnt(0)")
            base = STG
        else:
            base = blk_reg(b)
        for tt in range(2):
            t = 2 * b + tt
            d0, d1 = vS + 4 * t, vQ + 8 + 4 * (t & 1)
            r = base + tt * 16
            A(f"v_mfma_f32_16x16x32_bf16 {v4(d0)}, {v4(r)}, {v4(vQ)}, 0")
            A(f"v_mfma_f32_16x16x32_bf16 {v4(d1)}, {v4(r+8)}, {v4(vQ)}, 0")
            A(f"v_mfma_f32_16x16x32_bf16 {v4(d0)}, {v4(r+4)}, {v4(vQ+4)}, {v4(d0)}")
            A(f"v_mfma_f32_16x16x32_bf16 {v4(d1)}, {v4(r+12)}, {v4(vQ+4)}, {v4(d1)}")
            if t > 0:
                combine(t - 1)
        sprinkle(opt.get("spr_qk", 2))
    combine(15)
    stamp(5)
    vLA = vQ
    A(f"v_mov_b32 v{vLA}, v{vM}")
    A(f"v_max_f32 v{vM}, v{vS}, v{vS+1}")
    for i in range(2, 64, 2):
        A(f"v_max3_f32 v{vM}, v{vM}, v{vS+i}, v{vS+i+1}")
    xrow_red("v_max_f32", vM, vT + 2)
    sprinkle()
    for i in range(64):
        A(f"v_sub_f32 v{vS+i}, v{vS+i}, v{vM}")
        A(f"v_mul_f32 v{vS+i}, s{sLOG2E}, v{vS+i}")
        A(f"v_exp_f32 v{vS+i}, v{vS+i}")
        if i % 16 == 15:
            sprinkle()
    A(f"v_add_f32 v{vT+2}, v{vS}, v{vS+1}")
    A(f"v_add_f32 v{vT+3}, v{vS+2}, v{vS+3}")
    for i in range(4, 64, 2):
        A(f"v_add_f32 v{vT+2}, v{vT+2}, v{vS+i}")
        A(f"v_add_f32 v{vT+3}, v{vT+3}, v{vS+i+1}")
    A(f"v_add_f32 v{vT+3}, v{vT+2}, v{vT+3}")
    A(f"v_mov_b32 v{vT+2}, v{vM}")
    sprinkle()
    A(f"v_lshlrev_b32 v{vT+4}, 3, v{vN}")
    A(f"v_lshl_add_u32 v{vT+4}, v{vGq}, 6, v{vT+4}")
    A(f"s_lshl_b32 s{sT0}, s{sW}, 8")
    A(f"v_add_u32 v{vT+4}, s{sT0}, v{vT+4}")
    A("s_mov_b32 exec_lo, 0x00ff00ff")
    A("s_mov_b32 exec_hi, 0x00ff00ff")
    A(f"ds_write_b64 v{vT+4}, {v2(vT+2)} offset:{L_SP}")
    A("s_mov_b64 exec, -1")
    lds_inc(L_CNTS)
    if "lvV" in opt:
        A(f"s_mov_b32 s{sLVL}, {opt['lvV']}")

    vP = vS
    vO = vS + 32
    for i in range(32):
        A(f"v_cvt_pk_bf16_f32 v{vP+i}, v{vS+2*i}, v{vS+2*i+1}")
    spos = opt.get("spos", 40)
    wpos = opt.get("wpos", 64)
    cnt = [64 - len(stream)]
    assert cnt[0] < spos
    work = []
    nxt = [0]

    def pv_chunks(b):
        R = blk_reg(7) if b < NLDS else blk_reg(b)
        ch = []
        if b < NLDS:
            def stage():
                for i in range(8):
                    A(f"ds_read_b128 {v4(R+4*i)}, v{vLA} offset:{b*8192+i*1024}")
            ch.append(stage)
        for t in range(4):
            def chunk(t=t):
                if b < NLDS and t == 0:
                    A("s_waitcnt lgkmcnt(0)")
                for u in range(4):
                    A(f"v_perm_b32 v{vQ+8+u}, v{R+(2*u+1)*4+t}, v{R+(2*u)*4+t}, s{sPLO}")
                for u in range(4):
                    A(f"v_perm_b32 v{vQ+12+u}, v{R+(2*u+1)*4+t}, v{R+(2*u)*4+t}, s{sPHI}")
                for hh in range(2):
                    m = 2 * t + hh
                    c = "0" if b == 0 else v4(vO + 4 * m)
                    A(f"v_mfma_f32_16x16x32_bf16 {v4(vO+4*m)}, {v4(vP+4*b)}, {v4(vQ+8+4*hh)}, {c}")
            ch.append(chunk)
        return ch

    while stream:
        if stream[0][1] == 7:
            assert nxt[0] >= NLDS
            while work and nxt[0] <= NLDS:
                work.pop(0)()
        issue(stream.pop(0), 1)
        cnt[0] += 1
        if cnt[0] == spos:
            lds_inc(L_PRGV)
        if cnt[0] == opt.get("lvpos", 0):
            A(f"s_max_u32 s{sLVL}, s{sLVL}, {opt.get('lvmin', 1)}")
        if cnt[0] == wpos:
            lds_inc(L_FLAGW)
        if not work and cnt[0] >= 8 * (nxt[0] + 1) and f"v{nxt[0]}" not in A.vm:
            work.extend(pv_chunks(nxt[0]))
            nxt[0] += 1
        for _ in range(2):
            if work:
                work.pop(0)()
    while work:
        work.pop(0)()
    while nxt[0] < 7:
        A.wait_vm(f"v{nxt[0]}")
        for c in pv_chunks(nxt[0]):
            c()
        nxt[0] += 1
    vF = blk_reg(3)
    lds_wait(L_FLAGS)
    A(f"v_and_b32 v{vT}, 1, v{vL}")
    A(f"v_lshlrev_b32 v{vT}, 4, v{vT}")
    for w in range(4):
        A(f"ds_read_b128 {v4(vF+4*w)}, v{vT} offset:{L_F+32*w}")
    vOW, vOR = vQ + 1, vQ + 2
    A(f"v_mul_u32_u24 v{vOW}, 272, v{vN}")
    A(f"v_lshl_add_u32 v{vOW}, v{vGq}, 4, v{vOW}")
    A(f"s_mul_i32 s{sT0}, s{sW}, 4352")
    A(f"v_add_u32 v{vOW}, s{sT0}, v{vOW}")
    A(f"s_lshl_b32 s{sT0}, s{sW}, 2")
    A(f"v_add_u32 v{vOR}, s{sT0}, v{vGq}")
    A(f"v_mul_u32_u24 v{vOR}, 272, v{vOR}")
    A(f"v_lshl_add_u32 v{vOR}, v{vN}, 4, v{vOR}")
    A(f"s_lshl_b32 s{sT3}, s{sJ}, 12")
    A(f"s_lshl_b32 s{sT1}, s{sW}, 10")
    A(f"s_add_u32 s{sT3}, s{sT3}, s{sT1}")
    A(f"s_add_u32 s{sT3}, s{sT3}, {WS_A}")
    A(f"v_mov_b32 v{vT+1}, 1")
    stamp(9)
    A.wait_vm("v7")
    stamp(8)

    def o_write(t):
        A("s_mov_b64 exec, 0xffffffff")
        for m in (2 * t, 2 * t + 1):
            A(f"ds_write_b128 v{vOW}, {v4(vO+4*m)} offset:{L_O+32*m}")
        A("s_mov_b64 exec, -1")

    for t, c in enumerate(pv_chunks(7)):
        c()
        if t > 0:
            o_write(t - 1)
    o_write(3)
    stamp(10)
    Z = blk_reg(4)
    A("s_mov_b64 exec, 1")
    A(f"ds_add_u32 v{vZ}, v{vT+1} offset:{L_CNTO}")
    A("s_mov_b64 exec, -1")
    A.label("L_owait")
    A(f"ds_read_b32 v{vT}, v{vZ} offset:{L_CNTO}")
    for w in range(4):
        A(f"ds_read_b128 {v4(Z+4*w)}, v{vOR} offset:{L_O+4352*w}")
    A("s_waitcnt lgkmcnt(0)")
    A(f"v_readfirstlane_b32 s{sT0}, v{vT}")
    A(f"s_cmp_eq_u32 s{sT0}, 4")
    A("s_cbranch_scc1 L_oready")
    A(f"s_sub_u32 s{sTO}, s{sTO}, 1")
    A(f"s_cmp_lg_u32 s{sTO}, 0")
    A("s_cbranch_scc1 L_owait")
    A("s_branch L_end")
    A.label("L_oready")
    for c in range(4):
        A(f"v_mul_f32 v{Z+c}, v{Z+c}, v{vF+c}")
    for w in range(1, 4):
        for c in range(4):
            A(f"v_fmac_f32 v{Z+c}, v{Z+4*w+c}, v{vF+4*w+c}")
    for c in range(4):
        tag10(Z + c)
    A(f"buffer_store_dwordx4 {v4(Z)}, v{vOV}, {srd(rWS)}, s{sT3} offen sc1")
    if opt.get("pubwait", False):
        A("s_waitcnt vmcnt(0)")
    lds_inc(L_CNTP)
    stamp(11)
    A("s_branch L_end")

    A.label("L_helper")
    A.vm = []
    vTAG = vM
    Z = 16
    ACC = 48
    vA1, vA2, vA3 = vOK, vH, 15
    vWa = 64
    vWb = 192
    vGA, vLW, vLR, vX0, vC4, vGE, vLE = 56, 57, 58, 59, 60, 61, 62
    sRID = sLDSB
    mk_srd(rX, 16, 2048)
    mk_srd(rOUT, 34, 2048)

    def rowsplit_loads(dst, rs, sbase, row_off, rng, d, token, ntw):
        for i in rng:
            off = row_off(i)
            A(f"s_add_u32 s{sT0}, s{sbase}, {off & ~4095}")
            throttle(d)
            A(f"buffer_load_dwordx4 {v4(dst+4*i)}, v{vA2}, {srd(rs)}, s{sT0} offen offset:{off & 4095}{ntw}",
              token or f"r{i//2}")

    def perm_to(dst, src, nrows):
        for p in range(nrows // 2):
            A.wait_vm(f"r{p}")
            for t in range(4):
                a = src + (2 * p) * 4 + t
                b = src + (2 * p + 1) * 4 + t
                A(f"v_perm_b32 v{dst+(2*p)*4+t}, v{b}, v{a}, s{sPLO}")
                A(f"v_perm_b32 v{dst+(2*p+1)*4+t}, v{b}, v{a}, s{sPHI}")

    def zero_acc():
        for c in range(8):
            A(f"v_mov_b32 v{ACC+c}, 0")

    sMK = 18
    efast = opt.get("efast", 64)

    def gemv_publish(wp, npairs, xsrc, emode=False):
        for p in range(npairs):
            xr, ln = xsrc(p)
            for c in range(8):
                w = wp + (2 * p + (c & 1)) * 4 + (c >> 1)
                A(f"v_dot2c_f32_bf16_dpp v{ACC+c}, v{xr}, v{w} row_newbcast:{ln} {DPPALL}")
        for c in range(4):
            A(f"v_permlane32_swap_b32 v{ACC+c}, v{ACC+c+4}")
        for c in range(4):
            A(f"v_add_f32 v{ACC+c}, v{ACC+c}, v{ACC+c+4}")
        for c in range(4):
            tag10(ACC + c)
        if emode:
            A(f"s_mov_b64 exec, s[{sMK}:{sMK+1}]")
            if efast:
                A(f"buffer_store_dwordx4 {v4(ACC)}, v{vA3}, {srd(rWS)}, s{sKB} offen")
        A(f"buffer_store_dwordx4 {v4(ACC)}, v{vA3}, {srd(rWS)}, s{sPUB} offen sc1")
        if emode:
            A("s_mov_b64 exec, -1")

    def pack_pairs(src, dst):
        A(f"v_mov_b32_dpp v{dst}, v{src} quad_perm:[1,0,3,2] {DPPALL}")
        A(f"v_cvt_pk_bf16_f32 v{dst}, v{src}, v{dst}")

    def red4_to_lds(waddr, ldsoff):
        A(f"v_permlane32_swap_b32 v{Z}, v{Z+2}")
        A(f"v_permlane32_swap_b32 v{Z+1}, v{Z+3}")
        A(f"v_add_f32 v{Z}, v{Z}, v{Z+2}")
        A(f"v_add_f32 v{Z+1}, v{Z+1}, v{Z+3}")
        A(f"v_permlane16_swap_b32 v{Z}, v{Z+1}")
        A(f"v_add_f32 v{Z}, v{Z}, v{Z+1}")
        row_red("v_add_f32", Z, (8,))
        A(f"ds_write_b32 v{waddr}, v{Z} offset:{L_GP+ldsoff}")
        A("s_waitcnt lgkmcnt(0)")
        A("s_barrier")

    def read4_from_lds(addr):
        for k in range(2):
            A(f"ds_read2_b32 {v2(Z+2*k)}, v{addr} offset0:{64*k} offset1:{64*k+32}")
        A("s_waitcnt lgkmcnt(0)")
        A(f"v_add_f32 v{Z}, v{Z}, v{Z+1}")
        A(f"v_add_f32 v{Z+2}, v{Z+2}, v{Z+3}")

    def common_addr():
        A(f"v_and_b32 v{vA3}, 31, v{vL}")
        A(f"v_lshlrev_b32 v{vC4}, 2, v{vA3}")
        A(f"v_lshlrev_b32 v{vA3}, 5, v{vA3}")
        A(f"v_lshrrev_b32 v{vT}, 5, v{vL}")
        A(f"v_lshl_add_u32 v{vA3}, v{vT}, 4, v{vA3}")
        A(f"v_lshrrev_b32 v{vA1}, 3, v{vL}")
        A(f"v_lshlrev_b32 v{vA1}, 12, v{vA1}")
        A(f"v_and_b32 v{vT+1}, 7, v{vL}")
        A(f"v_lshl_add_u32 v{vA1}, v{vT+1}, 4, v{vA1}")
        A(f"v_lshlrev_b32 v{vLW}, 4, v{vT+1}")
        A(f"v_lshl_add_u32 v{vLW}, v{vGq}, 2, v{vLW}")
        A(f"s_lshl_b32 s{sT0}, s{sHW}, 7")
        A(f"v_add_u32 v{vLW}, s{sT0}, v{vLW}")

    def pretouch(items):
        if not opt.get("pretouch", False):
            return
        lds_wait(L_PRGV, 8)
        A("s_mov_b32 exec_lo, 1")
        A("s_mov_b32 exec_hi, 1")
        for k, (va, rs, so) in enumerate(items):
            if isinstance(so, tuple):
                A(f"s_add_u32 s{sT0}, s{so[0]}, {so[1]}")
            else:
                A(f"s_mov_b32 s{sT0}, {hex(so)}")
            A(f"buffer_load_dword v{Z+k}, v{va}, {srd(rs)}, s{sT0} offen")
        A("s_mov_b64 exec, -1")
        A("s_waitcnt vmcnt(0)")

    WS_PT = [(vZ, rWS, 0x1f0000 - 0x1000 + 0x100000), (vZ, rWS, 0x3f8000), (vZ, rWS, 0x20000)]

    def hint_wait(delay):
        A(f"s_lshl_b32 s{sT1}, s{sX_}, 7")
        A(f"v_mov_b32 v{vT+4}, s{sT1}")
        poll(Z, vT + 4, [WS_HINT], sT16, 0xffff, Z + 8, sleep=opt.get("sleepH", 2))
        if delay:
            A(f"s_sleep {delay}")

    def service(name):
        A(f"s_cmp_lg_u32 s{sHW}, 0")
        A(f"s_cbranch_scc1 L_svc_{name}")
        X = Z
        lds_wait(L_PRGK, 8)
        A(f"s_lshl_b32 s{sT1}, s{sG}, 12")
        A(f"v_add_u32 v{vT+4}, s{sT1}, v{vOV}")
        poll(X, vT + 4, [WS_Q + i * 1024 for i in range(4)], sT16, 0xffff, X + 16, sleep=opt.get("sleepq", 8))
        A(f"v_lshrrev_b32 v{vT+1}, 5, v{vL}")
        A(f"v_mul_u32_u24 v{vT+1}, 272, v{vT+1}")
        A(f"v_and_b32 v{vT+2}, 31, v{vL}")
        A(f"v_lshl_add_u32 v{vT+1}, v{vT+2}, 3, v{vT+1}")
        for i in range(4):
            A(f"v_perm_b32 v{X+16+2*i}, v{X+4*i+1}, v{X+4*i}, s{sPHI}")
            A(f"v_perm_b32 v{X+16+2*i+1}, v{X+4*i+3}, v{X+4*i+2}, s{sPHI}")
            A(f"ds_write_b64 v{vT+1}, {v2(X+16+2*i)} offset:{L_Q+i*2*272}")
        lds_setflag(L_FLAGQ)
        stamp(2)
        lds_wait(L_CNTS, 4, 4)
        Y = Z
        A(f"v_and_b32 v{vT}, 7, v{vL}")
        A(f"v_lshlrev_b32 v{vT}, 3, v{vT}")
        A(f"v_lshrrev_b32 v{vT+1}, 3, v{vL}")
        A(f"v_lshl_add_u32 v{vT}, v{vT+1}, 7, v{vT}")
        for g in range(2):
            A(f"ds_read_b64 {v2(Y+2*g)}, v{vT} offset:{L_SP+64*g}")
        A("s_waitcnt lgkmcnt(0)")
        MM, LL, TT = vT + 2, vT + 3, Y + 6
        A(f"v_max_f32 v{MM}, v{Y}, v{Y+2}")
        row_red("v_max_f32", MM, (8,))
        xrow_red("v_max_f32", MM, TT)
        for g in range(2):
            A(f"v_sub_f32 v{Y+2*g}, v{Y+2*g}, v{MM}")
            A(f"v_mul_f32 v{Y+2*g}, s{sLOG2E}, v{Y+2*g}")
            A(f"v_exp_f32 v{Y+2*g}, v{Y+2*g}")
        A(f"v_mul_f32 v{LL}, v{Y}, v{Y+1}")
        A(f"v_fmac_f32 v{LL}, v{Y+2}, v{Y+3}")
        row_red("v_add_f32", LL, (8,))
        xrow_red("v_add_f32", LL, TT)
        A(f"v_or_b32 v{MM}, s{sT10}, v{MM}")
        tag10(LL)
        A(f"v_lshlrev_b32 v{vT}, 3, v{vL}")
        sfull = opt.get("sfull", True)
        A(f"s_lshl_b32 s{sT0}, s{sJ}, {7 if sfull else 6}")
        A(f"s_add_u32 s{sT0}, s{sT0}, {WS_S}")
        A(f"s_mov_b64 exec, {'0xffff' if sfull else '0xff'}")
        A(f"buffer_store_dwordx2 {v2(MM)}, v{vT}, {srd(rWS)}, s{sT0} offen sc1")
        A("s_mov_b64 exec, -1")
        if opt.get("rank"):
            A(f"v_lshlrev_b32 v{vT}, 8, v{vL}")
            A(f"s_and_b32 s{sT0}, s{sJ}, 3")
            A(f"s_lshl_b32 s{sT0}, s{sT0}, 6")
            A(f"s_add_u32 s{sT0}, s{sT0}, {WS_S}")
            A(f"buffer_load_dwordx2 {v2(Z)}, v{vT}, {srd(rWS)}, s{sT0} offen sc1")
            A("s_waitcnt vmcnt(0)")
            A(f"v_bitop3_b32 v{Z}, v{Z}, v{Z+1}, v{vTAG} bitop3:0x7e")
            A(f"v_and_b32 v{Z}, 0x3ff, v{Z}")
            A(f"v_cmp_eq_u32 s[{sP0}:{sP1}], 0, v{Z}")
            A(f"s_bcnt1_i32_b64 s{sT1}, s[{sP0}:{sP1}]")
            A(f"s_mov_b32 s{sT2}, 1")
            for q, t in enumerate(opt["rank"]):
                A(f"s_cmp_ge_u32 s{sT1}, {t}")
                A(f"s_cselect_b32 s{sT2}, {q+2}, s{sT2}")
            A(f"v_mov_b32 v{Z}, s{sT2}")
            A(f"ds_write_b32 v{vZ}, v{Z} offset:{L_LVL}")
            if stamps:
                A(f"s_add_u32 s{sSTAMP+8}, s{sSTAMP}, s{sT1}")
        lds_wait(L_PRGV, 8)
        Dd = Z
        TP = Z + 16
        if sfull:
            A(f"v_lshrrev_b32 v{vT+4}, 2, v{vL}")
            A(f"v_lshlrev_b32 v{vT+4}, 7, v{vT+4}")
            A(f"v_and_b32 v{vT+5}, 3, v{vL}")
            A(f"v_lshl_add_u32 v{vT+4}, v{vT+5}, 4, v{vT+4}")
            A(f"s_lshl_b32 s{sT1}, s{sG}, 13")
            A(f"v_add_u32 v{vT+4}, s{sT1}, v{vT+4}")
        poll(Dd, vT + 4, [WS_S + i * (2048 if sfull else 1024) for i in range(4)], sT10, 0x3ff, TP,
             sleep=opt.get("sleeps", 8))
        for i in range(16):
            A(f"v_and_b32 v{Dd+i}, s{sM10}, v{Dd+i}")
        Yy = TP
        Tt = TP + 4
        M0, M1, L0, L1 = Yy, Yy + 2, Yy + 1, Yy + 3
        for (Mx, o) in ((M0, 0), (M1, 2)):
            A(f"v_max_f32 v{Mx}, v{Dd+o}, v{Dd+4+o}")
            A(f"v_max3_f32 v{Mx}, v{Mx}, v{Dd+8+o}, v{Dd+12+o}")
        for Mx in (M0, M1):
            row_red("v_max_f32", Mx, (8, 4))
            xrow_red("v_max_f32", Mx, Tt)
        for (Mx, Lx, o) in ((M0, L0, 0), (M1, L1, 2)):
            for i in range(4):
                r = Dd + 4 * i + o
                A(f"v_sub_f32 v{r}, v{r}, v{Mx}")
                A(f"v_mul_f32 v{r}, s{sLOG2E}, v{r}")
                A(f"v_exp_f32 v{r}, v{r}")
            A(f"v_mul_f32 v{Lx}, v{Dd+o}, v{Dd+o+1}")
            for i in range(1, 4):
                A(f"v_fmac_f32 v{Lx}, v{Dd+4*i+o}, v{Dd+4*i+o+1}")
        for Lx in (L0, L1):
            row_red("v_add_f32", Lx, (8, 4))
            xrow_red("v_add_f32", Lx, Tt)
            A(f"v_rcp_f32 v{Lx}, v{Lx}")
        A(f"v_and_b32 v{vT}, 3, v{vL}")
        A(f"v_lshlrev_b32 v{vT}, 4, v{vT}")
        A(f"ds_write_b128 v{vT}, {v4(Yy)} offset:{L_SG}")
        A(f"v_and_b32 v{vT}, 7, v{vL}")
        A(f"v_lshlrev_b32 v{vT}, 3, v{vT}")
        A(f"v_bfe_u32 v{vT+2}, v{vL}, 3, 2")
        A(f"v_lshl_add_u32 v{vT+2}, v{vT+2}, 8, v{vT}")
        A(f"ds_read_b64 {v2(Dd)}, v{vT} offset:{L_SG}")
        A(f"ds_read_b32 v{Dd+2}, v{vT+2} offset:{L_SP}")
        A(f"v_and_b32 v{vT+3}, 31, v{vL}")
        A(f"v_lshlrev_b32 v{vT+3}, 2, v{vT+3}")
        A("s_waitcnt lgkmcnt(0)")
        A(f"v_sub_f32 v{Dd+2}, v{Dd+2}, v{Dd}")
        A(f"v_mul_f32 v{Dd+2}, s{sLOG2E}, v{Dd+2}")
        A(f"v_exp_f32 v{Dd+2}, v{Dd+2}")
        A(f"v_mul_f32 v{Dd+2}, v{Dd+2}, v{Dd+1}")
        A(f"ds_write_b32 v{vT+3}, v{Dd+2} offset:{L_F}")
        lds_setflag(L_FLAGS)
        stamp(7)
        A.label(f"L_svc_{name}")
        A.vm = []

    A(f"s_cmp_ge_u32 s{sA}, 16")
    A("s_cbranch_scc1 L_roleM")

    mk_srd(rW2, 24, 0 if opt.get("now") else 0x800000)
    mk_srd(rW3, 32, 0 if opt.get("now") else 3584 * 1024 * 2)
    common_addr()
    A(f"v_lshrrev_b32 v{vA2}, 5, v{vL}")
    A(f"v_lshlrev_b32 v{vA2}, 20, v{vA2}")
    A(f"v_lshl_add_u32 v{vA2}, v{vC4}, 2, v{vA2}")
    A(f"s_lshl_b32 s{sKB}, s{sG}, 21")
    A(f"s_and_b32 s{sT2}, s{sRI}, 31")
    A(f"s_lshl_b32 s{sT2}, s{sT2}, 13")
    A(f"s_add_u32 s{sKB}, s{sKB}, s{sT2}")
    A(f"s_lshl_b32 s{sT2}, s{sHW}, 9")
    A(f"s_add_u32 s{sKB}, s{sKB}, s{sT2}")
    wo_off = lambda i: (i >> 2) * 128 * 2048 + (i & 3) * 2048
    wo1 = opt.get("wo1", 16)
    rowsplit_loads(vWb, rW2, sKB, wo_off, range(min(4, wo1)), 0, None, nto)
    A("s_barrier")
    rowsplit_loads(vWb, rW2, sKB, wo_off, range(min(4, wo1), wo1), opt.get("DE", 0), None, nto)
    A("s_waitcnt lgkmcnt(0)")
    tags()
    A(f"s_lshl_b32 s{sPUB}, s{sX_}, 4")
    A(f"s_add_u32 s{sPUB}, s{sPUB}, s{sA}")
    A(f"s_lshl_b32 s{sPUB}, s{sPUB}, 12")
    A(f"s_lshl_b32 s{sT1}, s{sHW}, 10")
    A(f"s_add_u32 s{sPUB}, s{sPUB}, s{sT1}")
    A(f"s_add_u32 s{sPUB}, s{sPUB}, {WS_B}")
    A(f"s_lshl_b32 s{sT1}, s{sG}, 18")
    A(f"s_lshl_b32 s{sT2}, s{sHW}, 16")
    A(f"s_add_u32 s{sT1}, s{sT1}, s{sT2}")
    A(f"s_and_b32 s{sT2}, s{sRI}, 31")
    A(f"s_lshl_b32 s{sT2}, s{sT2}, 7")
    A(f"s_add_u32 s{sT1}, s{sT1}, s{sT2}")
    A(f"v_add_u32 v{vGA}, s{sT1}, v{vA1}")
    A(f"v_and_b32 v{vLR}, 3, v{vN}")
    A(f"v_lshlrev_b32 v{vLR}, 3, v{vLR}")
    A(f"v_lshrrev_b32 v{vT}, 5, v{vL}")
    A(f"v_lshl_add_u32 v{vLR}, v{vT}, 2, v{vLR}")
    A(f"v_lshrrev_b32 v{vT+1}, 2, v{vN}")
    A(f"v_add_u32 v{vLR}, v{vLR}, v{vT+1}")
    A(f"v_lshlrev_b32 v{vLR}, 2, v{vLR}")
    A(f"v_add_u32 v{vLR}, {L_GP}, v{vLR}")
    A(f"v_lshl_add_u32 v{vLE}, v{vT}, 4, v{vN}")
    A(f"v_lshlrev_b32 v{vLE}, 2, v{vLE}")
    A(f"v_add_u32 v{vLE}, {L_GP+1024}, v{vLE}")
    sDI = 16
    A(f"s_mul_i32 s{sDI}, s{sX_}, 14")
    A(f"s_add_u32 s{sDI}, s{sDI}, s{sA}")
    A(f"v_lshrrev_b32 v{vGE}, 3, v{vL}")
    A(f"v_mul_u32_u24 v{vGE}, 3584, v{vGE}")
    A(f"v_and_b32 v{vT+1}, 7, v{vL}")
    A(f"v_lshl_add_u32 v{vGE}, v{vT+1}, 4, v{vGE}")
    A(f"s_and_b32 s{sT0}, s{sHW}, 1")
    A(f"s_mul_i32 s{sT0}, s{sT0}, {8*3584}")
    A(f"s_lshr_b32 s{sT1}, s{sHW}, 1")
    A(f"s_mul_i32 s{sT1}, s{sT1}, 1792")
    A(f"s_add_u32 s{sT0}, s{sT0}, s{sT1}")
    A(f"s_mul_i32 s{sT1}, s{sX_}, {16*3584}")
    A(f"s_add_u32 s{sT0}, s{sT0}, s{sT1}")
    A(f"s_lshl_b32 s{sT1}, s{sA}, 7")
    A(f"s_add_u32 s{sT0}, s{sT0}, s{sT1}")
    A(f"v_add_u32 v{vGE}, s{sT0}, v{vGE}")
    vGB, vHP, vOA, vLB = 44, 45, 46, 47
    sHB = 20
    A(f"s_lshl_b32 s{sRID}, s{sX_}, 2")
    A(f"s_and_b32 s{sT0}, s{sA}, 3")
    A(f"s_add_u32 s{sRID}, s{sRID}, s{sT0}")
    A(f"v_lshrrev_b32 v{vOA}, 1, v{vC4}")
    A(f"s_lshl_b32 s{sT0}, s{sRID}, 6")
    A(f"buffer_load_ushort v{vX0}, v{vOA}, {srd(rX)}, s{sT0} offen")
    A(f"s_lshl_b32 s{sT0}, s{sHW}, 17")
    A(f"s_lshl_b32 s{sT1}, s{sRID}, 7")
    A(f"s_add_u32 s{sT0}, s{sT0}, s{sT1}")
    A(f"v_add_u32 v{vGB}, s{sT0}, v{vA1}")
    A(f"v_lshrrev_b32 v{vT}, 5, v{vL}")
    A(f"v_lshl_add_u32 v{vHP}, v{vT}, 12, v{vC4}")
    A(f"s_lshl_b32 s{sHB}, s{sHW}, 13")
    A(f"s_add_u32 s{sHB}, s{sHB}, s{sT1}")
    A(f"s_add_u32 s{sHB}, s{sHB}, {WS_H}")
    A(f"v_add_u32 v{vLB}, {L_GP+512}, v{vC4}")
    A("s_waitcnt vmcnt(0)")
    A(f"v_lshlrev_b32 v{vX0}, 16, v{vX0}")
    zero_acc()
    assert wo1 == 16
    pt = opt.get("pt", "d")
    vWd = vWa + 64
    vGH, vLN = 41, 42
    perm_to(vWa, vWb, 16)
    A(f"v_lshrrev_b32 v{vA2}, 5, v{vL}")
    A(f"v_lshlrev_b32 v{vA2}, 15, v{vA2}")
    A(f"v_lshl_add_u32 v{vA2}, v{vC4}, 2, v{vA2}")
    A(f"s_lshl_b32 s{sKB}, s{sDI}, 16")
    A(f"s_lshl_b32 s{sT2}, s{sHW}, 9")
    A(f"s_add_u32 s{sKB}, s{sKB}, s{sT2}")
    A(f"s_lshl_b32 s{sT1}, s{sX_}, 12")
    A(f"s_lshl_b32 s{sT2}, s{sHW}, 10")
    A(f"s_add_u32 s{sT2}, s{sT1}, s{sT2}")
    A(f"v_add_u32 v{vGH}, s{sT2}, v{vOV}")
    A(f"s_lshl_b32 s{sT0}, s{sHW}, 3")
    A(f"v_mov_b32 v{vLN}, s{sT0}")
    A(f"s_and_b32 s{sT0}, s{sA}, 14")
    A(f"s_cmp_lg_u32 s{sT0}, 12")
    A("s_cbranch_scc1 L_dearly")
    rowsplit_loads(vWb, rW3, sKB, lambda i: i * 2048, range(16), 0, None, ntd)
    perm_to(vWd, vWb, 16)
    A.label("L_dearly")
    A.vm = []
    service("W")
    stamp(6)
    a2 = 0
    if opt.get("await", "p") == "p":
        lds_wait(L_CNTP, 2, 4)
    else:
        lds_wait(L_CNTO, 2)
    if opt.get("dA", 0):
        A(f"s_sleep {opt['dA']}")
    if opt.get("a1", True):
        A("s_mov_b64 exec, 0xff")
        A(f"v_mov_b32 v{Z+8}, s{sT10}")
        A.label("L_a1")
        A(f"s_mov_b32 s{sT0}, {hex(WS_A)}")
        A(f"buffer_load_dwordx4 {v4(Z)}, v{vGA}, {srd(rWS)}, s{sT0} offen sc1")
        A("s_waitcnt vmcnt(0)")
        A(f"v_bitop3_b32 v{Z+4}, v{Z}, v{Z+1}, v{Z+8} bitop3:0x7e")
        A(f"v_and_b32 v{Z+4}, 0x3ff, v{Z+4}")
        A(f"v_cmp_ne_u32 s[{sP0}:{sP1}], 0, v{Z+4}")
        A(f"s_cmp_eq_u64 s[{sP0}:{sP1}], 0")
        A("s_cbranch_scc1 L_a1d")
        A("s_sleep 4")
        A(f"s_sub_u32 s{sTO}, s{sTO}, 1")
        A(f"s_cmp_lg_u32 s{sTO}, 0")
        A("s_cbranch_scc1 L_a1")
        A.label("L_a1d")
        A("s_mov_b64 exec, -1")
    poll(Z, vGA, [WS_A, WS_A + 32768], sT10, 0x3ff, Z + 8, sleep=opt.get("sleepA", 0), back=opt.get("backA"),
         entry="L_a2_entry" if (a2 and wo1 < 16) else None)
    for i in range(8):
        A(f"v_and_b32 v{Z+i}, s{sM10}, v{Z+i}")
    for c in range(4):
        A(f"v_add_f32 v{Z+c}, v{Z+c}, v{Z+4+c}")
    red4_to_lds(vLW, 0)
    stamp(12)
    read4_from_lds(vLR)
    A(f"v_add_f32 v{Z}, v{Z}, v{Z+2}")
    pack_pairs(Z, Z + 4)
    gemv_publish(vWa, 8, lambda p: (Z + 4, 2 * p))
    stamp(3)

    def reduce32(base, execs, ldsoff, sl):
        poll(Z, vGB, [base + i * 32768 for i in range(4)], sT10, 0x3ff, Z + 16, execs, back=sl)
        for i in range(16):
            A(f"v_and_b32 v{Z+i}, s{sM10}, v{Z+i}")
        for c in range(4):
            A(f"v_add_f32 v{Z+c}, v{Z+c}, v{Z+4+c}")
            A(f"v_add_f32 v{Z+8+c}, v{Z+8+c}, v{Z+12+c}")
        for c in range(4):
            A(f"v_add_f32 v{Z+c}, v{Z+c}, v{Z+8+c}")
        red4_to_lds(vLW, ldsoff)
        read4_from_lds(vLB)
        A(f"v_add_f32 v{Z}, v{Z}, v{Z+2}")
        rbf(Z, Z)
        A(f"v_add_f32 v{vX0}, v{vX0}, v{Z}")
        rbf(vX0, vX0)

    A(f"s_add_u32 s{sPUB}, s{sPUB}, {WS_D - WS_B}")
    A(f"s_cmp_lt_u32 s{sA}, 12")
    A("s_cbranch_scc1 L_nored")
    if opt.get("hint", True):
        A(f"s_cmp_lg_u32 s{sA}, 12")
        A("s_cbranch_scc1 L_nohint")
        A(f"s_cmp_lg_u32 s{sHW}, 0")
        A("s_cbranch_scc1 L_nohint")
        for c in range(4):
            A(f"v_mov_b32 v{Z+c}, s{sT16}")
        A(f"s_lshl_b32 s{sT0}, s{sX_}, 7")
        A(f"s_add_u32 s{sT0}, s{sT0}, {WS_HINT}")
        A("s_mov_b64 exec, 0xff")
        A(f"buffer_store_dwordx4 {v4(Z)}, v{vOV}, {srd(rWS)}, s{sT0} offen sc1")
        A("s_mov_b64 exec, -1")
        A.label("L_nohint")
    if opt.get("dB", 24):
        A(f"s_sleep {opt.get('dB', 24)}")
    reduce32(WS_B, None, 512, opt.get("backB"))
    A(f"v_or_b32 v{Z}, s{sT16}, v{vX0}")
    A(f"buffer_store_dword v{Z}, v{vHP}, {srd(rWS)}, s{sHB} offen sc1")
    stamp(13)
    if "d" in pt:
        for i in range(4):
            A(f"s_mov_b32 s{sT0}, {hex(WS_D + i * 32768)}")
            A(f"buffer_load_dwordx4 {v4(vWa+4*i)}, v{vGB}, {srd(rWS)}, s{sT0} offen sc1")
    A(f"v_add_u32 v{vLB}, 1024, v{vLB}")
    A(f"s_cmp_ge_u32 s{sA}, 14")
    A("s_cbranch_scc1 L_final0")
    A("s_branch L_down")
    A.label("L_nored")
    A.vm = []
    if efast and opt.get("ept0", True):
        for i, base in enumerate((WS_E, WS_C)):
            A(f"s_mov_b32 s{sT0}, {hex(base + WS_EF - WS_E)}")
            A(f"buffer_load_dwordx4 {v4(vWa+16+4*i)}, v{vGE}, {srd(rWS)}, s{sT0} offen sc1")
    rowsplit_loads(vWb, rW3, sKB, lambda i: i * 2048, range(16), opt.get("DLD", 6), None, ntd)
    perm_to(vWd, vWb, 16)
    A.label("L_down")
    A.vm = []
    if efast and opt.get("ept", True):
        for i, base in enumerate((WS_E, WS_C)):
            A(f"s_mov_b32 s{sT0}, {hex(base + WS_EF - WS_E)}")
            A(f"buffer_load_dwordx4 {v4(vWa+16+4*i)}, v{vGE}, {srd(rWS)}, s{sT0} offen sc1")
    zero_acc()
    stamp(9)
    poll(Z, vGH, [WS_H], sT16, 0xffff, Z + 8)
    for i in range(4):
        A(f"v_and_b32 v{Z+i}, s{sM16}, v{Z+i}")
    A(f"v_readfirstlane_b32 s{sT1}, v{Z}")
    S1, S2, TT = Z + 8, Z + 9, Z + 10
    for i in range(4):
        A(f"v_subrev_f32 v{Z+i}, s{sT1}, v{Z+i}")
    A(f"v_add_f32 v{S1}, v{Z}, v{Z+1}")
    A(f"v_mul_f32 v{S2}, v{Z}, v{Z}")
    A(f"v_add_f32 v{TT}, v{Z+2}, v{Z+3}")
    A(f"v_fmac_f32 v{S2}, v{Z+1}, v{Z+1}")
    A(f"v_add_f32 v{S1}, v{S1}, v{TT}")
    A(f"v_fmac_f32 v{S2}, v{Z+2}, v{Z+2}")
    A(f"v_fmac_f32 v{S2}, v{Z+3}, v{Z+3}")
    A(f"v_permlane32_swap_b32 v{S1}, v{S2}")
    A(f"v_add_f32 v{S1}, v{S1}, v{S2}")
    row_red("v_add_f32", S1, (8, 4, 2, 1))
    A(f"v_mov_b32 v{TT}, v{S1}")
    A(f"v_permlane16_swap_b32 v{TT}, v{S1}")
    A(f"v_add_f32 v{S1}, v{S1}, v{TT}")
    A(f"v_mov_b32 v{S2}, v{S1}")
    A(f"v_permlane32_swap_b32 v{S1}, v{S2}")
    A(f"v_mul_f32 v{TT}, 0x3b800000, v{S1}")
    A(f"v_fma_f32 v{S2}, -v{TT}, v{S1}, v{S2}")
    A(f"v_add_f32 v{S1}, s{sT1}, v{TT}")
    A(f"ds_write_b64 v{vLN}, {v2(S1)} offset:{L_LN}")
    A("s_waitcnt lgkmcnt(0)")
    A("s_barrier")
    A(f"ds_read_b128 {v4(Z+12)}, v{vZ} offset:{L_LN}")
    A(f"ds_read_b128 {v4(Z+16)}, v{vZ} offset:{L_LN+16}")
    A("s_waitcnt lgkmcnt(0)")
    MEAN, VAR = Z + 8, Z + 9
    A(f"v_add_f32 v{MEAN}, v{Z+12}, v{Z+14}")
    A(f"v_add_f32 v{TT}, v{Z+16}, v{Z+18}")
    A(f"v_add_f32 v{VAR}, v{Z+13}, v{Z+15}")
    A(f"v_add_f32 v{MEAN}, v{MEAN}, v{TT}")
    A(f"v_add_f32 v{Z+11}, v{Z+17}, v{Z+19}")
    A(f"v_mul_f32 v{MEAN}, 0x3e800000, v{MEAN}")
    A(f"v_add_f32 v{VAR}, v{VAR}, v{Z+11}")
    for k in range(4):
        A(f"v_sub_f32 v{Z+12+2*k}, v{Z+12+2*k}, v{MEAN}")
    A(f"v_mul_f32 v{TT}, v{Z+12}, v{Z+12}")
    for k in range(1, 4):
        A(f"v_fmac_f32 v{TT}, v{Z+12+2*k}, v{Z+12+2*k}")
    A(f"v_mul_f32 v{VAR}, 0x3a800000, v{VAR}")
    A(f"v_fmac_f32 v{VAR}, 0x3e800000, v{TT}")
    MB, RS = Z + 22, Z + 23
    ln_finish(MEAN, VAR, MB, RS)
    stamp(4)
    poll(Z, vGE, [WS_E, WS_C], sT10, 0x3ff, Z + 8, alt=(WS_EF - WS_E, efast) if efast else None)
    for i in range(8):
        A(f"v_and_b32 v{Z+i}, s{sM10}, v{Z+i}")
    for c in range(4):
        A(f"v_fma_f32 v{Z+c}, -v{MB}, v{Z+4+c}, v{Z+c}")
    red4_to_lds(vLW, 1024)
    stamp(10)
    read4_from_lds(vLE)
    Gv, Uv = Z, Z + 2
    A(f"v_mul_f32 v{Gv}, v{Gv}, v{RS}")
    A(f"v_mul_f32 v{Uv}, v{Uv}, v{RS}")
    rbf(Gv, Gv)
    rbf(Uv, Uv)
    T1, T2 = Z + 1, Z + 3
    A(f"v_mul_f32 v{T1}, v{Gv}, v{Gv}")
    A(f"v_mul_f32 v{T1}, v{T1}, v{Gv}")
    A(f"v_mov_b32 v{T2}, v{Gv}")
    A(f"v_fmac_f32 v{T2}, 0x3d372713, v{T1}")
    A(f"v_mul_f32 v{T2}, 0xc0135761, v{T2}")
    A(f"v_exp_f32 v{T2}, v{T2}")
    A(f"v_add_f32 v{T2}, 1.0, v{T2}")
    A(f"v_rcp_f32 v{T2}, v{T2}")
    A(f"v_mul_f32 v{Gv}, v{Gv}, v{T2}")
    rbf(Gv, Gv)
    A(f"v_mul_f32 v{Gv}, v{Gv}, v{Uv}")
    pack_pairs(Gv, Z + 4)
    gemv_publish(vWd, 8, lambda p: (Z + 4, 2 * p))
    stamp(14)
    A(f"s_cmp_lt_u32 s{sA}, 12")
    A("s_cbranch_scc1 L_end")
    A("s_branch L_final")
    A.label("L_final0")
    A.vm = []
    if opt.get("dwatch", False):
        A(f"v_subrev_u32 v{vGE}, 256, v{vGE}")
        poll(Z, vGE, [WS_E], sT10, 0x3ff, Z + 8, sleep=2, alt=(WS_EF - WS_E, efast) if efast else None)
        if opt.get("dD0", 0):
            A(f"s_sleep {opt['dD0']}")
    A.label("L_final")
    if opt.get("dD", 0):
        A(f"s_sleep {opt['dD']}")
    A.vm = []
    reduce32(WS_D, {1: 0xffff, 3: 0xffff}, 1536, opt.get("backD"))
    A(f"s_cmp_lg_u32 s{sHW}, 0")
    A("s_cbranch_scc1 L_end")
    A(f"v_lshrrev_b32 v{Z}, 16, v{vX0}")
    A(f"s_lshl_b32 s{sT0}, s{sRID}, 6")
    A("s_mov_b64 exec, 0xffffffff")
    A(f"buffer_store_short v{Z}, v{vOA}, {srd(rOUT)}, s{sT0} offen")
    A("s_mov_b64 exec, -1")
    stamp(15)
    A(f"s_cmp_lg_u32 s{sRID}, 0")
    A("s_cbranch_scc1 L_end")
    A(f"v_mov_b32 v{Z}, s{sE}")
    A("s_mov_b64 exec, 1")
    A(f"buffer_store_dword v{Z}, v{vZ}, {srd(rWS)}, 0 offen offset:{WS_EPOCH}")
    A("s_mov_b64 exec, -1")
    A("s_branch L_end")

    A.label("L_roleM")
    A.vm = []
    A("s_setprio 3")
    A(f"s_lshl_b32 s{sT0}, s{sG}, 5")
    A(f"s_add_u32 s{sRI}, s{sRI}, s{sT0}")
    mk_srd(rW1, 22, 0 if opt.get("noq") else 0x800000)
    XR = vWa + 64
    A(f"v_lshlrev_b32 v{vT}, 5, v{vL}")
    A(f"buffer_load_dwordx4 {v4(XR)}, v{vT}, {srd(rX)}, 0 offen", "x")
    A(f"buffer_load_dwordx4 {v4(XR+4)}, v{vT}, {srd(rX)}, 0 offen offset:16", "x")
    A(f"v_lshrrev_b32 v{vT+1}, 2, v{vL}")
    A(f"v_lshlrev_b32 v{vT+1}, 4, v{vT+1}")
    A(f"s_lshl_b32 s{sT0}, s{sHW}, 8")
    A(f"v_add_u32 v{vT+1}, s{sT0}, v{vT+1}")
    A(f"v_lshlrev_b32 v{vT+2}, 1, v{vT+1}")
    stq = 8 if opt.get("stagq", True) else 0
    A(f"s_and_b32 s{sT2}, s{sRI}, 1")
    A(f"s_mul_i32 s{sT3}, s{sT2}, {2*stq}")
    A(f"s_sub_u32 s{sT0}, 16, s{sT3}")
    A(f"buffer_load_dwordx4 {v4(XR+8)}, v{vT+2}, {srd(rX)}, s{sT3} offen", "x")
    A(f"buffer_load_dwordx4 {v4(XR+12)}, v{vT+2}, {srd(rX)}, s{sT0} offen", "x")
    A(f"v_lshlrev_b32 v{vT+2}, 13, v{vT+1}")
    A(f"v_and_b32 v{vT+3}, 3, v{vL}")
    A(f"v_lshl_add_u32 v{vT+2}, v{vT+3}, 4, v{vT+2}")
    A(f"s_lshl_b32 s{sT1}, s{sRI}, 6")
    A(f"s_mul_i32 s{sT2}, s{sT2}, {stq*8192}")
    A(f"s_sub_u32 s{sT3}, s{sT1}, s{sT2}")
    A(f"s_add_u32 s{sT1}, s{sT1}, s{sT2}")
    for i in range(16):
        A(f"s_add_u32 s{sT0}, s{sT3 if (i & 8) else sT1}, {i*8192}")
        A(f"buffer_load_dwordx4 {v4(vWa+4*i)}, v{vT+2}, {srd(rW1)}, s{sT0} offen{ntq}", f"wq{i//2}")
    if opt.get("qbar_early", True):
        A("s_barrier")
    A.wait_vm("x")
    F = XR + 16
    for i in range(8):
        unpack(F + 2 * i, F + 2 * i + 1, XR + i)
    MB, RD = XR + 32, XR + 33
    ln_stats([F + i for i in range(16)], XR + 34, XR + 35, XR + 36, MB, RD)
    XP = XR + 40
    for p in range(8):
        unpack(XR + 38, XR + 39, XR + 8 + p)
        ln_apply_pair(XP + p, XR + 38, XR + 39, MB, RD)
    for p in range(8):
        A.wait_vm(f"wq{p}")
        for t in range(4):
            a = vWa + (2 * p) * 4 + t
            b = vWa + (2 * p + 1) * 4 + t
            A(f"v_perm_b32 v{Z+8+2*t}, v{b}, v{a}, s{sPLO}")
            A(f"v_perm_b32 v{Z+8+2*t+1}, v{b}, v{a}, s{sPHI}")
        for c in range(8):
            src = "0" if p == 0 else f"v{Z+c}"
            A(f"v_dot2_f32_bf16 v{Z+c}, v{Z+8+c}, v{XP+p}, {src}")
    red8_rows(Z)
    for r in (8, 4):
        for c in range(2):
            A(f"v_add_f32_dpp v{Z+c}, v{Z+c}, v{Z+c} row_ror:{r} {DPPALL}")
    A(f"v_and_b32 v{vT+3}, 3, v{vL}")
    A(f"v_lshlrev_b32 v{vT+3}, 5, v{vT+3}")
    A(f"v_lshl_add_u32 v{vT+3}, v{vGq}, 3, v{vT+3}")
    A(f"s_lshl_b32 s{sT0}, s{sHW}, 7")
    A(f"v_add_u32 v{vT+3}, s{sT0}, v{vT+3}")
    A(f"ds_write_b64 v{vT+3}, {v2(Z)} offset:{L_QPART}")
    A("s_waitcnt lgkmcnt(0)")
    if not opt.get("qbar_early", True):
        A("s_barrier")
    tags()
    lds_arrive(L_CNTQ, sT0)
    A(f"s_cmp_lg_u32 s{sT0}, 3")
    A("s_cbranch_scc1 L_qpub_done")
    A("s_mov_b64 exec, 0xff")
    for w in range(4):
        A(f"ds_read_b128 {v4(Z+4*w)}, v{vOV} offset:{L_QPART+128*w}")
    A("s_waitcnt lgkmcnt(0)")
    for st in (2, 1):
        for w in range(st):
            for c in range(4):
                A(f"v_add_f32 v{Z+4*w+c}, v{Z+4*w+c}, v{Z+4*(w+st)+c}")
    for c in range(4):
        rbf(Z + c, Z + c)
        A(f"v_or_b32 v{Z+c}, s{sT16}, v{Z+c}")
    A(f"s_lshl_b32 s{sT0}, s{sRI}, 7")
    A(f"s_add_u32 s{sT0}, s{sT0}, {WS_Q}")
    A(f"buffer_store_dwordx4 {v4(Z)}, v{vOV}, {srd(rWS)}, s{sT0} offen sc1")
    A("s_mov_b64 exec, -1")
    A.label("L_qpub_done")
    A.vm = []
    stamp(1)
    A("s_setprio 0")
    A(f"s_mul_i32 s{sRI}, s{sX_}, 14")
    A(f"s_add_u32 s{sRI}, s{sRI}, s{sA}")
    A(f"s_sub_u32 s{sRI}, s{sRI}, 16")
    A(f"s_cmp_lt_u32 s{sHW}, 2")
    A(f"s_cselect_b32 s{rW1}, s28, s30")
    A(f"s_cselect_b32 s{rW1+1}, s29, s31")
    A(f"s_and_b32 s{rW1+1}, s{rW1+1}, 0xffff")
    A(f"s_mov_b32 s{rW1+2}, {hex(0 if opt.get('now') else 1024*3584*2)}")
    A(f"s_mov_b32 s{rW1+3}, 0x20000")
    common_addr()
    sKC, sCG = 16, 17
    A(f"s_sub_u32 s{sKC}, s{sA}, 16")
    A(f"v_lshrrev_b32 v{vA2}, 5, v{vL}")
    A(f"v_mul_u32_u24 v{vA2}, {32*7168}, v{vA2}")
    A(f"v_lshl_add_u32 v{vA2}, v{vC4}, 2, v{vA2}")
    A(f"s_mul_i32 s{sKB}, s{sKC}, {64*7168}")
    A(f"s_mul_i32 s{sT2}, s{sX_}, 896")
    A(f"s_add_u32 s{sKB}, s{sKB}, s{sT2}")
    A(f"s_and_b32 s{sT3}, s{sHW}, 1")
    A(f"s_lshl_b32 s{sT2}, s{sT3}, 9")
    A(f"s_add_u32 s{sKB}, s{sKB}, s{sT2}")
    A(f"s_cmp_eq_u32 s{sT3}, 0")
    A(f"s_cselect_b32 s{sMK}, -1, 0x00ffffff")
    A(f"s_mov_b32 s{sMK+1}, s{sMK}")
    gu1 = opt.get("gu1", 0)

    gst = {"done": 0}
    CS, vONE = 200, 208
    for c in range(8):
        A(f"v_mov_b32 v{CS+c}, 0")
    A(f"v_mov_b32 v{vONE}, 0x3f803f80")

    def gu_perm(p):
        for t in range(4):
            a = vWa + 8 + (2 * p) * 4 + t
            b = vWa + 8 + (2 * p + 1) * 4 + t
            A(f"v_perm_b32 v{vWa+(2*p)*4+t}, v{b}, v{a}, s{sPLO}")
            A(f"v_perm_b32 v{vWa+(2*p+1)*4+t}, v{b}, v{a}, s{sPHI}")
        for c in range(8):
            w = vWa + (2 * p + (c & 1)) * 4 + (c >> 1)
            A(f"v_dot2c_f32_bf16 v{CS+c}, v{vONE}, v{w}")
        gst["done"] = p + 1

    def gu_loads(rng, d):
        for i in rng:
            A(f"s_add_u32 s{sT0}, s{sKB}, {i*7168}")
            throttle(d)
            A(f"s_mov_b64 exec, s[{sMK}:{sMK+1}]")
            A(f"buffer_load_dwordx4 {v4(vWa+8+4*i)}, v{vA2}, {srd(rW1)}, s{sT0} offen{ntg}", f"gu{i//2}")
            A("s_mov_b64 exec, -1")
            p = gst["done"]
            if 2 * p + 1 < i and f"gu{p}" not in A.vm:
                gu_perm(p)

    def gu_finish(n):
        while gst["done"] < n // 2:
            A.wait_vm(f"gu{gst['done']}")
            gu_perm(gst["done"])

    gu_loads(range(gu1), opt.get("DG1", 2))
    gu_finish(gu1)
    A(f"s_lshl_b32 s{sPUB}, s{sX_}, 4")
    A(f"s_add_u32 s{sPUB}, s{sPUB}, s{sKC}")
    A(f"s_mul_i32 s{sPUB}, s{sPUB}, 3584")
    A(f"s_lshr_b32 s{sT1}, s{sHW}, 1")
    A(f"s_mul_i32 s{sT1}, s{sT1}, 1792")
    A(f"s_add_u32 s{sPUB}, s{sPUB}, s{sT1}")
    A(f"s_lshl_b32 s{sT1}, s{sT3}, 10")
    A(f"s_add_u32 s{sPUB}, s{sPUB}, s{sT1}")
    A(f"s_add_u32 s{sPUB}, s{sPUB}, {WS_E}")
    A(f"s_lshl_b32 s{sT1}, s{sX_}, 12")
    A(f"s_lshl_b32 s{sT2}, s{sHW}, 10")
    A(f"s_add_u32 s{sT2}, s{sT1}, s{sT2}")
    A(f"v_add_u32 v{vGA}, s{sT2}, v{vOV}")
    A(f"v_and_b32 v{vGE}, 7, v{vL}")
    A(f"v_lshlrev_b32 v{vGE}, 4, v{vGE}")
    A(f"v_lshrrev_b32 v{vT}, 5, v{vL}")
    A(f"v_lshl_add_u32 v{vGE}, v{vT}, 7, v{vGE}")
    A(f"s_lshl_b32 s{sT2}, s{sKC}, 8")
    A(f"s_add_u32 s{sT2}, s{sT1}, s{sT2}")
    A(f"v_add_u32 v{vGE}, s{sT2}, v{vGE}")
    A(f"s_lshl_b32 s{sT0}, s{sHW}, 3")
    A(f"v_mov_b32 v{vLW}, s{sT0}")
    zero_acc()
    service("M")
    pretouch(WS_PT + [(vA2, rW1, (sKB, i * 7168)) for i in (0, 8, 16, 24, 31)])
    ga = opt.get("gu_after", "p")
    if ga == "flag":
        lds_wait(L_FLAGW, 4, opt.get("wcnt", 4))
    elif ga == "o":
        lds_wait(L_CNTO, 4, 4)
    else:
        lds_wait(L_CNTP, 4, 4)
    gu2 = gu1
    if ga == "g":
        gu2 = opt.get("gu2", gu1)
        gu_loads(range(gu1, gu2), opt.get("DLG", 10))
        A(f"s_cmp_lg_u32 s{sHW}, 0")
        A("s_cbranch_scc1 L_gwait")
        svm = list(A.vm)
        A(f"v_lshlrev_b32 v{vT+4}, 12, v{vL}")
        A(f"s_lshl_b32 s{sT1}, s{sG}, 18")
        A(f"s_lshl_b32 s{sT2}, s{sC}, 6")
        A(f"s_add_u32 s{sT1}, s{sT1}, s{sT2}")
        A(f"v_add_u32 v{vT+4}, s{sT1}, v{vT+4}")
        poll(Z, vT + 4, [WS_A], sT10, 0x3ff, Z + 8, sleep=opt.get("sleepG", 6))
        lds_setflag(L_FLAGG)
        A.label("L_gwait")
        A.vm = svm
        lds_wait(L_FLAGG, 2)
    stamp(3)
    gu_loads(range(gu2, 32), opt.get("DLG", 10))
    stamp(4)
    gu_finish(32)
    A(f"s_add_u32 s{sKB}, s{sPUB}, {WS_EF - WS_E}")
    for c in range(4):
        A(f"v_permlane32_swap_b32 v{CS+c}, v{CS+c+4}")
    for c in range(4):
        A(f"v_add_f32 v{CS+c}, v{CS+c}, v{CS+c+4}")
    for c in range(4):
        tag10(CS + c)
    A(f"s_add_u32 s20, s{sPUB}, {WS_C - WS_E}")
    A(f"s_add_u32 s21, s{sKB}, {WS_C - WS_E}")
    if efast:
        A(f"s_mov_b64 exec, s[{sMK}:{sMK+1}]")
        A(f"buffer_store_dwordx4 {v4(CS)}, v{vA3}, {srd(rWS)}, s21 offen")
        A("s_mov_b64 exec, -1")
    stamp(6)
    if opt.get("hint", True):
        hint_wait(opt.get("dC", 0))
    poll(Z, vGE, [WS_H], sT16, 0xffff, Z + 8)
    stamp(13)
    A(f"v_perm_b32 v{Z+12}, v{Z+1}, v{Z}, s{sPHI}")
    A(f"v_perm_b32 v{Z+13}, v{Z+3}, v{Z+2}, s{sPHI}")
    gemv_publish(vWa, 16, lambda p: (Z + 12 + (p & 1), p >> 1), True)
    A(f"s_mov_b64 exec, s[{sMK}:{sMK+1}]")
    A(f"buffer_store_dwordx4 {v4(CS)}, v{vA3}, {srd(rWS)}, s20 offen sc1")
    A("s_mov_b64 exec, -1")
    stamp(15)

    A.label("L_end")
    if stamps:
        A("s_mov_b64 exec, 1")
        A(f"s_lshl_b32 s{sT0}, s2, 3")
        A(f"s_add_u32 s{sT0}, s{sT0}, s{sW}")
        A(f"s_lshl_b32 s{sT0}, s{sT0}, 6")
        A(f"s_add_u32 s{sT0}, s{sT0}, {WS_STAMP}")
        for q in range(4):
            for k in range(4):
                A(f"v_mov_b32 v{vT+k}, s{sSTAMP+4*q+k}")
            A(f"buffer_store_dwordx4 {v4(vT)}, v{vZ}, {srd(rWS)}, s{sT0} offen offset:{16*q}")
            A("s_nop 2")
    A.label("L_exit")
    A("s_endpgm")
    A.raw('.section .rodata,"a"')
    A.raw(".p2align 6")
    A.raw(f".amdhsa_kernel {NAME}_kernel")
    A.raw("  .amdhsa_next_free_vgpr 256")
    A.raw("  .amdhsa_next_free_sgpr 102")
    A.raw("  .amdhsa_accum_offset 256")
    A.raw("  .amdhsa_group_segment_fixed_size 0")
    A.raw("  .amdhsa_kernarg_size 96")
    A.raw("  .amdhsa_user_sgpr_count 2")
    A.raw("  .amdhsa_user_sgpr_kernarg_segment_ptr 1")
    A.raw("  .amdhsa_system_sgpr_workgroup_id_x 1")
    A.raw("  .amdhsa_float_denorm_mode_32 3")
    A.raw(".end_amdhsa_kernel")
    return A.text()


if __name__ == "__main__":
    import json
    opt = json.loads(sys.argv[2]) if len(sys.argv) > 2 else {}
    out = sys.argv[1] if len(sys.argv) > 1 else "k.s"
    open(out, "w").write(gen(opt))
```

```python
import sys
from asmlib import Asm

NAME = "sequential_preLN__gqa_block_cached__glu_gated_geglu__decode"

HEADER = """; Kernarg layout for this problem (96 bytes, ptrs only, base s[0:1]):
"""

STAMP_NAMES = ["start", "qpub", "qgath", "kiss", "qrdy", "qk", "wland", "s_glob", "viss", "prdy", "pv", "apub",
               "hopA", "h", "hopC", "end"]

WS_EPOCH = 0x0
WS_Q = 0x1000
WS_S = 0x8000
WS_H = 0x10000
WS_HINT = 0x20000
WS_A = 0x100000
WS_B = 0x200000
WS_D = 0x300000
WS_STAMP = 0x400000
WS_E = 0x500000
WS_C = 0x580000
WS_EF = 0x600000
WS_SIZE = 0x700000

L_CNTQ, L_FLAGQ, L_CNTS, L_FLAGS = 0, 4, 8, 12
L_FLAGW = 16
L_CNTO = 20
L_CNTB = 24
L_CNTP = 28
L_PRGK, L_PRGV, L_FLAGG = 32, 36, 40
L_LVL = 44
L_CK = 48
L_Q = 0x200
L_SP = 0xC00
L_SG = 0x1400
L_F = 0x1480
L_LN = 0x1800
L_GP = 0x2000
L_QPART = 0x2C00
L_O = 0x3000
L_KV = 0x8000
NLDS = 3
LDS_BYTES = L_KV + 4 * NLDS * 8192

sW = 3
sX_, sA, sJ, sRI, sG, sC = 4, 5, 6, 7, 8, 9
sT16, sT10 = 10, 11
sPLO, sPHI = 12, 13
sM10, sM16 = 14, 15
rX, rK, rV, rW1, rW2, rW3, rOUT, rWS = 40, 44, 48, 52, 56, 60, 68, 72
sTO, sKB, sE, sLOG2E = 76, 77, 78, 79
sSTAMP = 80
sT0, sT1, sT2, sT3 = 96, 97, 98, 99
sP0, sP1 = 100, 101
sSCALE, sLDSB, sPUB, sHW = 64, 65, 66, 67

vL, vN, vGq, vOK, vOV, vM, vH, vZ = 0, 1, 2, 3, 4, 5, 6, 7
vT = 8
vQ = 16
vS = 32
vR = 96


def srd(r):
    return f"s[{r}:{r+3}]"


def v4(r):
    return f"v[{r}:{r+3}]"


def v2(r):
    return f"v[{r}:{r+1}]"


DPPALL = "row_mask:0xf bank_mask:0xf"


def gen(opt):
    A = Asm()
    stamps = opt.get("stamps", False)
    pol = lambda k, d: (" " + opt.get(k, d)).rstrip()
    ntq, nto, ntg, ntd = pol("pq", ""), pol("po", ""), pol("pg", ""), pol("pd", "")
    ntk, ntv = pol("pk", "nt"), pol("pv", "nt")
    D = opt.get("D", 5)
    DC = opt.get("DC", 7)
    DG = opt.get("DG", 1)

    def stamp(k):
        if not stamps:
            return
        A(f"s_memrealtime s[{sP0}:{sP1}]")
        A("s_waitcnt lgkmcnt(0)")
        A(f"s_mov_b32 s{sSTAMP+k}, s{sP0}")

    def mk_srd(r, ptr, size):
        A(f"s_mov_b32 s{r}, s{ptr}")
        A(f"s_and_b32 s{r+1}, s{ptr+1}, 0xffff")
        A(f"s_mov_b32 s{r+2}, {hex(size)}")
        A(f"s_mov_b32 s{r+3}, 0x20000")

    def rbf(dst, src):
        A(f"v_cvt_pk_bf16_f32 v{dst}, v{src}, v{src}")
        A(f"v_and_b32 v{dst}, s{sM16}, v{dst}")

    def row_red(op, x, rors):
        for r in rors:
            A(f"{op}_dpp v{x}, v{x}, v{x} row_ror:{r} {DPPALL}")

    def xrow_red(op, x, t):
        A(f"v_mov_b32 v{t}, v{x}")
        A(f"v_permlane16_swap_b32 v{t}, v{x}")
        A(f"{op} v{x}, v{x}, v{t}")
        A(f"v_mov_b32 v{t}, v{x}")
        A(f"v_permlane32_swap_b32 v{t}, v{x}")
        A(f"{op} v{x}, v{x}, v{t}")

    def wave_sum(x, t):
        row_red("v_add_f32", x, (8, 4, 2, 1))
        xrow_red("v_add_f32", x, t)

    def ln_finish(mean, var, out_mb, out_r):
        rbf(out_mb, mean)
        rbf(var, var)
        A(f"v_add_f32 v{var}, 0x3727c5ac, v{var}")
        rbf(var, var)
        A(f"v_sqrt_f32 v{var}, v{var}")
        rbf(var, var)
        A(f"v_rcp_f32 v{out_r}, v{var}")

    def ln_stats(vals, t0, t1, t2, out_mb, out_r):
        A(f"v_add_f32 v{t0}, v{vals[0]}, v{vals[1]}")
        A(f"v_add_f32 v{t1}, v{vals[2]}, v{vals[3]}")
        for i in range(4, 16, 2):
            A(f"v_add_f32 v{t0}, v{t0}, v{vals[i]}")
            A(f"v_add_f32 v{t1}, v{t1}, v{vals[i+1]}")
        A(f"v_add_f32 v{t0}, v{t0}, v{t1}")
        wave_sum(t0, t1)
        A(f"v_mul_f32 v{t0}, 0x3a800000, v{t0}")
        A(f"v_sub_f32 v{t1}, v{vals[0]}, v{t0}")
        A(f"v_mul_f32 v{t2}, v{t1}, v{t1}")
        for i in range(1, 16):
            A(f"v_sub_f32 v{t1}, v{vals[i]}, v{t0}")
            A(f"v_fmac_f32 v{t2}, v{t1}, v{t1}")
        wave_sum(t2, t1)
        A(f"v_mul_f32 v{t2}, 0x3a800000, v{t2}")
        ln_finish(t0, t2, out_mb, out_r)

    def ln_apply_pair(dst, a, b, mb, r):
        A(f"v_sub_f32 v{a}, v{a}, v{mb}")
        A(f"v_sub_f32 v{b}, v{b}, v{mb}")
        A(f"v_cvt_pk_bf16_f32 v{b}, v{a}, v{b}")
        A(f"v_lshlrev_b32 v{a}, 16, v{b}")
        A(f"v_and_b32 v{b}, s{sM16}, v{b}")
        A(f"v_mul_f32 v{a}, v{a}, v{r}")
        A(f"v_mul_f32 v{b}, v{b}, v{r}")
        A(f"v_cvt_pk_bf16_f32 v{dst}, v{a}, v{b}")

    def unpack(dlo, dhi, src):
        A(f"v_lshlrev_b32 v{dlo}, 16, v{src}")
        A(f"v_and_b32 v{dhi}, s{sM16}, v{src}")

    def perm_inplace(src, nrows, tmp):
        for p in range(nrows // 2):
            for t in range(4):
                a = src + (2 * p) * 4 + t
                b = src + (2 * p + 1) * 4 + t
                A(f"v_perm_b32 v{tmp+t}, v{b}, v{a}, s{sPHI}")
                A(f"v_perm_b32 v{a}, v{b}, v{a}, s{sPLO}")
            for t in range(4):
                A(f"v_mov_b32 v{src+(2*p+1)*4+t}, v{tmp+t}")

    def dots(acc, wp, xp, npairs):
        for p in range(npairs):
            for c in range(8):
                src = "0" if p == 0 else f"v{acc+c}"
                w = wp + (2 * p + (c & 1)) * 4 + (c >> 1)
                A(f"v_dot2_f32_bf16 v{acc+c}, v{w}, v{xp+p}, {src}")

    def red8_rows(acc):
        for c in range(4):
            A(f"v_permlane32_swap_b32 v{acc+c}, v{acc+c+4}")
        for c in range(4):
            A(f"v_add_f32 v{acc+c}, v{acc+c}, v{acc+c+4}")
        for c in range(2):
            A(f"v_permlane16_swap_b32 v{acc+c}, v{acc+c+2}")
        for c in range(2):
            A(f"v_add_f32 v{acc+c}, v{acc+c}, v{acc+c+2}")

    def tag10(r):
        A(f"v_add_u32 v{r}, 0x200, v{r}")
        A(f"v_and_or_b32 v{r}, v{r}, s{sM10}, v{vTAG}")

    def lds_wait(off, sl=2, atleast=1):
        lp = A.newlabel("ldsw")
        dn = A.newlabel("ldsd")
        A.label(lp)
        A(f"ds_read_b32 v{vT}, v{vZ} offset:{off}")
        A("s_waitcnt lgkmcnt(0)")
        A(f"v_readfirstlane_b32 s{sT0}, v{vT}")
        A(f"s_cmp_ge_u32 s{sT0}, {atleast}")
        A(f"s_cbranch_scc1 {dn}")
        A(f"s_sleep {sl}")
        A(f"s_sub_u32 s{sTO}, s{sTO}, 1")
        A(f"s_cmp_lg_u32 s{sTO}, 0")
        A(f"s_cbranch_scc1 {lp}")
        A("s_branch L_end")
        A.label(dn)

    def lds_arrive(off, dst_s):
        A(f"v_mov_b32 v{vT+1}, 1")
        A("s_mov_b64 exec, 1")
        A(f"ds_add_rtn_u32 v{vT}, v{vZ}, v{vT+1} offset:{off}")
        A("s_waitcnt lgkmcnt(0)")
        A(f"v_readfirstlane_b32 s{dst_s}, v{vT}")
        A("s_mov_b64 exec, -1")

    def lds_inc(off):
        A(f"v_mov_b32 v{vT+1}, 1")
        A("s_mov_b64 exec, 1")
        A(f"ds_add_u32 v{vZ}, v{vT+1} offset:{off}")
        A("s_mov_b64 exec, -1")

    def lds_setflag(off):
        A(f"v_mov_b32 v{vT+1}, 1")
        A(f"ds_write_b32 v{vZ}, v{vT+1} offset:{off}")

    def poll(dst, voff, soffs, tagreg, mask, t, execs=None, sleep=0, alt=None, back=None, entry=None):
        n = len(soffs)
        execs = execs or {}
        masked = opt.get("masked", True)
        lp = A.newlabel("poll")
        dn = A.newlabel("polld")
        A(f"v_mov_b32 v{t+2*n}, s{tagreg}")
        for i in execs:
            for c in range(4):
                A(f"v_mov_b32 v{dst+4*i+c}, s{tagreg}")
        if alt:
            A(f"s_mov_b32 s{sT3}, 0")
        A(f"s_mov_b64 s[{sP0}:{sP1}], -1")
        A.label(lp)
        if alt:
            A(f"s_add_u32 s{sT3}, s{sT3}, 1")
            A(f"s_and_b32 s{sT2}, s{sT3}, {alt[1]-1}")
            A(f"s_cselect_b32 s{sT2}, {hex(alt[0])}, 0")
        if masked:
            A(f"s_mov_b64 exec, s[{sP0}:{sP1}]")
        for i in range(n):
            if alt:
                A(f"s_add_u32 s{sT0}, s{sT2}, {hex(soffs[i])}")
            else:
                A(f"s_mov_b32 s{sT0}, {hex(soffs[i])}")
            sk = None
            if i in execs:
                A(f"s_and_b32 exec_hi, exec_hi, {hex(execs[i])}")
                sk = A.newlabel("psk")
                A(f"s_cbranch_execz {sk}")
            vo = voff[i] if isinstance(voff, (list, tuple)) else voff
            A(f"buffer_load_dwordx4 {v4(dst+4*i)}, v{vo}, {srd(rWS)}, s{sT0} offen sc1")
            if i in execs:
                A.label(sk)
                A(f"s_mov_b64 exec, s[{sP0}:{sP1}]" if masked else "s_mov_b64 exec, -1")
        if entry:
            A.label(entry)
        A("s_waitcnt vmcnt(0)")
        for i in range(2 * n):
            A(f"v_bitop3_b32 v{t+i}, v{dst+2*i}, v{dst+2*i+1}, v{t+2*n} bitop3:0x7e")
        regs = [t + i for i in range(2 * n)]
        while len(regs) > 1:
            nxt = []
            k = 0
            while k < len(regs):
                grp = regs[k:k + 3]
                if len(grp) == 3:
                    A(f"v_or3_b32 v{grp[0]}, v{grp[0]}, v{grp[1]}, v{grp[2]}")
                elif len(grp) == 2:
                    A(f"v_or_b32 v{grp[0]}, v{grp[0]}, v{grp[1]}")
                nxt.append(grp[0])
                k += 3
            regs = nxt
        A(f"v_and_b32 v{t}, {hex(mask)}, v{t}")
        A(f"v_cmp_ne_u32 s[{sP0}:{sP1}], 0, v{t}")
        if masked:
            A("s_mov_b64 exec, -1")
        A(f"s_cmp_eq_u64 s[{sP0}:{sP1}], 0")
        A(f"s_cbranch_scc1 {dn}")
        if sleep:
            A(f"s_sleep {sleep}")
        if back:
            nb = A.newlabel("pnb")
            A(f"s_bcnt1_i32_b64 s{sT0}, s[{sP0}:{sP1}]")
            A(f"s_cmp_le_u32 s{sT0}, {back[0]}")
            A(f"s_cbranch_scc1 {nb}")
            A(f"s_sleep {back[1]}")
            A.label(nb)
        A(f"s_sub_u32 s{sTO}, s{sTO}, 1")
        A(f"s_cmp_lg_u32 s{sTO}, 0")
        A(f"s_cbranch_scc1 {lp}")
        A("s_branch L_end")
        A.label(dn)

    def throttle(d):
        if d and len(A.vm) >= d:
            A(f"s_waitcnt vmcnt({d-1})")

    LV = opt.get("LV", [5, 6, 7, 8])
    sLVL, sCLS = 36, 37

    def throttle2(on):
        if not on:
            return
        if on < 0:
            throttle(-on)
            return
        if len(A.vm) >= LV[-1]:
            A(f"s_waitcnt vmcnt({LV[-1]-1})")
        sv = list(A.vm)
        lab = None
        for lv in range(len(LV) - 2, -1, -1):
            if len(sv) >= LV[lv] and LV[lv] < LV[lv + 1]:
                lab = lab or A.newlabel("th")
                A(f"s_cmp_gt_u32 s{sLVL}, {lv}")
                A(f"s_cbranch_scc1 {lab}")
                A(f"s_waitcnt vmcnt({LV[lv]-1})")
        if lab:
            A.label(lab)
        A.vm = sv

    def tok(item):
        return f"{item[0]}{item[1]}"

    st = {}

    def blk_reg(b):
        return vR + (b - NLDS) * 32

    def issue(item, d):
        kind, b, i = item
        ps = {("k", 1, 0): 1, ("k", 2, 0): 12, ("k", 4, 0): 13, ("k", 6, 0): 14, ("v", 2, 0): 6, ("v", 4, 0): 15}
        if item in ps and opt.get("pstamps", False):
            stamp(ps[item])
        idx = (0 if kind == "k" else 64) + 8 * b + i
        if opt.get("rank") and idx > 64 and idx < 64 + opt.get("rank_end", 64) and d:
            if i % 4 == 0:
                A(f"ds_read_b32 v{vT+7}, v{vZ} offset:{L_LVL}")
                st["pend"] = True
            elif st.get("pend"):
                A("s_waitcnt lgkmcnt(0)")
                A(f"v_readfirstlane_b32 s{sT1}, v{vT+7}")
                A(f"s_sub_u32 s{sT1}, s{sT1}, 1")
                A(f"s_cselect_b32 s{sLVL}, s{sLVL}, s{sT1}")
                st["pend"] = False
        if opt.get("rank") and idx == 64 + opt.get("rank_end", 64):
            A(f"s_mov_b32 s{sLVL}, {opt.get('rank_base', 1)}")
        blk = (0 if kind == "k" else 8) + b
        if opt.get("bt") and i == 0 and blk in set(opt["bt"]) and blk > 0:
            A(f"s_cmp_eq_u32 s35, {blk}")
            A(f"s_cselect_b32 s{sLVL}, s{sCLS}, s{sLVL}")
        if kind == "k":
            off = (i >> 2) * 4096 + ((i >> 1) & 1) * 512 + (i & 1) * 128
            va, rs, nt = vOK, rK, ntk
        else:
            off = i * 1024
            va, rs, nt = vOV, rV, ntv
        if b < NLDS:
            A(f"s_add_u32 s{sT0}, s{sKB}, {hex((b<<21) + off)}")
            A(f"s_add_u32 m0, s{sLDSB}, {hex(b*8192 + i*1024)}")
            throttle2(d)
            A(f"buffer_load_dwordx4 v{va}, {srd(rs)}, s{sT0} offen{nt} lds", tok(item))
        else:
            A(f"s_add_u32 s{sT0}, s{sKB}, {hex((b<<21) + (off & ~4095))}")
            throttle2(d)
            A(f"buffer_load_dwordx4 {v4(blk_reg(b)+4*i)}, v{va}, {srd(rs)}, s{sT0} offen offset:{off & 4095}{nt}",
              tok(item))

    vTAG = vH

    def tags():
        A(f"s_add_u32 s{sE}, s{sE}, 1")
        A(f"s_and_b32 s{sT16}, s{sE}, 0xffff")
        A(f"s_and_b32 s{sT10}, s{sE}, 0x3ff")
        A(f"v_mov_b32 v{vTAG}, s{sT10}")

    A.raw(HEADER.rstrip("\n"))
    A.raw(f"; @launch grid=(256,1,1) block=(512,1,1) lds={LDS_BYTES}")
    A.raw('.amdgcn_target "amdgcn-amd-amdhsa--gfx950"')
    A.raw(".text")
    A.raw(f".globl {NAME}_kernel")
    A.raw(".p2align 8")
    A.raw(f".type {NAME}_kernel,@function")
    A.raw(f"{NAME}_kernel:")
    A("s_cmp_ge_u32 s2, 256")
    A("s_cbranch_scc1 L_exit")
    A("s_load_dwordx16 s[16:31], s[0:1], 0")
    A("s_load_dwordx8 s[32:39], s[0:1], 64")
    if stamps:
        A(f"s_memrealtime s[{sP0}:{sP1}]")
        for k in range(16):
            A(f"s_mov_b32 s{sSTAMP+k}, 0")
    A(f"v_lshrrev_b32 v{vT}, 6, v0")
    A(f"v_and_b32 v{vL}, 63, v0")
    A(f"v_readfirstlane_b32 s{sW}, v{vT}")
    A(f"v_mov_b32 v{vZ}, 0")
    A(f"v_and_b32 v{vN}, 15, v{vL}")
    A(f"v_lshrrev_b32 v{vGq}, 4, v{vL}")
    for i in range(4):
        A(f"v_mov_b32 v{vT+i}, 0")
    A(f"s_cmp_lg_u32 s{sW}, 0")
    A("s_cbranch_scc1 L_nozero")
    A(f"ds_write_b128 v{vZ}, {v4(vT)}")
    A(f"ds_write_b128 v{vZ}, {v4(vT)} offset:16")
    A(f"ds_write_b128 v{vZ}, {v4(vT)} offset:32")
    A(f"ds_write_b128 v{vZ}, {v4(vT)} offset:48")
    A.label("L_nozero")
    A(f"s_and_b32 s{sX_}, s2, 7")
    A(f"s_lshr_b32 s{sA}, s2, 3")
    sWL = 35
    gmap = opt.get("gmap", "x")
    if gmap == "a2":
        A(f"s_and_b32 s{sG}, s{sA}, 3")
        A(f"s_lshr_b32 s{sT0}, s{sA}, 2")
        A(f"s_lshl_b32 s{sC}, s{sT0}, 3")
        A(f"s_add_u32 s{sC}, s{sC}, s{sX_}")
        A(f"s_lshl_b32 s{sRI}, s{sX_}, 2")
        A(f"s_add_u32 s{sRI}, s{sRI}, s{sT0}")
    else:
        A(f"s_lshr_b32 s{sG}, s{sX_}, 1")
        A(f"s_and_b32 s{sC}, s{sX_}, 1")
        A(f"s_lshl_b32 s{sRI}, s{sC}, 4")
        A(f"s_and_b32 s{sT0}, s{sA}, 15")
        A(f"s_add_u32 s{sRI}, s{sRI}, s{sT0}")
        A(f"s_lshl_b32 s{sC}, s{sC}, 5")
        A(f"s_add_u32 s{sC}, s{sC}, s{sA}")
    A(f"s_lshl_b32 s{sJ}, s{sG}, 6")
    A(f"s_add_u32 s{sJ}, s{sJ}, s{sC}")
    A(f"s_and_b32 s{sHW}, s{sW}, 3")
    A(f"s_mov_b32 s{sPLO}, 0x05040100")
    A(f"s_mov_b32 s{sPHI}, 0x07060302")
    A(f"s_mov_b32 s{sM10}, 0xfffffc00")
    A(f"s_mov_b32 s{sM16}, 0xffff0000")
    A(f"s_mov_b32 s{sTO}, 200000")
    A(f"s_mov_b32 s{sLOG2E}, 0x3fb8aa3b")
    A(f"s_mov_b32 s{sSCALE}, 0x3db504f3")
    A(f"s_lshl_b32 s{sKB}, s{sG}, 24")
    A(f"s_lshl_b32 s{sT0}, s{sC}, 2")
    A(f"s_add_u32 s{sT0}, s{sT0}, s{sHW}")
    A(f"s_lshl_b32 s{sT0}, s{sT0}, 13")
    A(f"s_add_u32 s{sKB}, s{sKB}, s{sT0}")
    A(f"s_mul_i32 s{sLDSB}, s{sHW}, {NLDS*8192}")
    A(f"s_add_u32 s{sLDSB}, s{sLDSB}, {L_KV}")
    A(f"v_and_b32 v{vT+4}, 3, v{vN}")
    A(f"v_lshlrev_b32 v{vT+4}, 10, v{vT+4}")
    A(f"v_bfe_u32 v{vT+5}, v{vN}, 2, 1")
    A(f"v_lshl_add_u32 v{vT+4}, v{vT+5}, 8, v{vT+4}")
    A(f"v_lshrrev_b32 v{vT+5}, 3, v{vN}")
    A(f"v_lshl_add_u32 v{vT+4}, v{vT+5}, 6, v{vT+4}")
    A(f"v_lshl_add_u32 v{vOK}, v{vGq}, 4, v{vT+4}")
    A(f"v_lshlrev_b32 v{vOV}, 4, v{vL}")
    A("s_waitcnt lgkmcnt(0)")
    if stamps:
        A(f"s_mov_b32 s{sSTAMP}, s{sP0}")
    A(f"s_load_dword s{sE}, s[38:39], {WS_EPOCH}")
    mk_srd(rWS, 38, WS_SIZE)
    A(f"s_cmp_ge_u32 s{sW}, 4")
    A("s_cbranch_scc1 L_helper")

    mk_srd(rK, 18, 0x4000000)
    mk_srd(rV, 20, 0x4000000)
    k_items = [("k", b, i) for b in range(8) for i in range(8)]
    v_items = [("v", b, i) for b in range(8) for i in range(8)]
    lvO, lvQ, lvQs = opt.get("lv", [0, 1, 2])
    A(f"s_and_b32 s{sT0}, s{sRI}, 14")
    A(f"s_cmp_eq_u32 s{sT0}, 6")
    A(f"s_cselect_b32 s{sCLS}, {lvQs}, {lvQ}")
    A(f"s_cmp_lt_u32 s{sA}, 16")
    A(f"s_cselect_b32 s{sCLS}, {lvO}, s{sCLS}")
    A(f"s_and_b32 s{sT0}, s{sA}, 30")
    A(f"s_cmp_eq_u32 s{sT0}, 12")
    A(f"s_cselect_b32 s{sCLS}, {opt.get('lvR', 1)}, s{sCLS}")
    A(f"s_mov_b32 s{sLVL}, s{sCLS}")
    sBST = 35
    bt = opt.get("bt")
    if bt:
        packed = sum((v & 15) << (4 * i) for i, v in enumerate(bt))
        A(f"s_getreg_b32 s{sT0}, hwreg(HW_REG_XCC_ID, 0, 3)")
        A(f"s_lshl_b32 s{sT0}, s{sT0}, 2")
        A(f"s_lshr_b32 s{sBST}, {hex(packed)}, s{sT0}")
        A(f"s_and_b32 s{sBST}, s{sBST}, 15")
        A(f"s_cselect_b32 s{sT0}, 1, 0")
        A(f"s_add_u32 s{sLVL}, s{sLVL}, s{sT0}")
    npre = opt.get("bpos", 4)
    nun = opt.get("nun", 0)
    for k, it in enumerate(k_items[:npre]):
        issue(it, 0 if k < nun else 1)
    A("s_barrier")
    A("s_waitcnt lgkmcnt(0)")
    tags()

    qpos = opt.get("qpos", 40)
    for k, it in enumerate(k_items):
        if k >= npre:
            issue(it, 1)
            if k + 1 == qpos:
                lds_inc(L_PRGK)
    stamp(3)
    lds_wait(L_FLAGQ)
    A(f"v_and_b32 v{vT}, 7, v{vN}")
    A(f"v_mul_u32_u24 v{vT}, 272, v{vT}")
    A(f"v_lshl_add_u32 v{vT}, v{vGq}, 4, v{vT}")
    A(f"v_lshrrev_b32 v{vT+1}, 3, v{vN}")
    A(f"v_lshl_add_u32 v{vT}, v{vT+1}, 6, v{vT}")
    for h in range(2):
        A(f"ds_read_b128 {v4(vQ+4*h)}, v{vT} offset:{L_Q+128*h}")
    A(f"v_add_u32 v{vM}, s{sLDSB}, v{vOV}")
    A("s_waitcnt lgkmcnt(0)")
    stamp(4)
    stream = list(v_items)

    def sprinkle(n=1):
        for _ in range(n):
            if stream:
                issue(stream.pop(0), 0)

    def score_round(a, b):
        A(f"v_cvt_pk_bf16_f32 v{b}, v{a}, v{b}")
        A(f"v_lshlrev_b32 v{a}, 16, v{b}")
        A(f"v_and_b32 v{b}, s{sM16}, v{b}")
        A(f"v_mul_f32 v{a}, s{sSCALE}, v{a}")
        A(f"v_mul_f32 v{b}, s{sSCALE}, v{b}")
        A(f"v_cvt_pk_bf16_f32 v{b}, v{a}, v{b}")
        A(f"v_lshlrev_b32 v{a}, 16, v{b}")
        A(f"v_and_b32 v{b}, s{sM16}, v{b}")

    def combine(t):
        d0, d1 = vS + 4 * t, vQ + 8 + 4 * (t & 1)
        for r in range(4):
            A(f"v_permlane32_swap_b32 v{d0+r}, v{d1+r}")
        for r in range(4):
            A(f"v_add_f32_dpp v{d0+r}, v{d1+r}, v{d0+r} row_ror:8 {DPPALL}")
        score_round(d0, d0 + 1)
        score_round(d0 + 2, d0 + 3)

    STG = vS + 32
    for b in range(8):
        A.wait_vm(f"k{b}")
        if b < NLDS:
            for i in range(8):
                A(f"ds_read_b128 {v4(STG+4*i)}, v{vM} offset:{b*8192+i*1024}")
            A("s_waitcnt lgkmcnt(0)")
            base = STG
        else:
            base = blk_reg(b)
        for tt in range(2):
            t = 2 * b + tt
            d0, d1 = vS + 4 * t, vQ + 8 + 4 * (t & 1)
            r = base + tt * 16
            A(f"v_mfma_f32_16x16x32_bf16 {v4(d0)}, {v4(r)}, {v4(vQ)}, 0")
            A(f"v_mfma_f32_16x16x32_bf16 {v4(d1)}, {v4(r+8)}, {v4(vQ)}, 0")
            A(f"v_mfma_f32_16x16x32_bf16 {v4(d0)}, {v4(r+4)}, {v4(vQ+4)}, {v4(d0)}")
            A(f"v_mfma_f32_16x16x32_bf16 {v4(d1)}, {v4(r+12)}, {v4(vQ+4)}, {v4(d1)}")
            if t > 0:
                combine(t - 1)
        sprinkle(opt.get("spr_qk", 2))
    combine(15)
    stamp(5)
    vLA = vQ
    A(f"v_mov_b32 v{vLA}, v{vM}")
    A(f"v_max_f32 v{vM}, v{vS}, v{vS+1}")
    for i in range(2, 64, 2):
        A(f"v_max3_f32 v{vM}, v{vM}, v{vS+i}, v{vS+i+1}")
    xrow_red("v_max_f32", vM, vT + 2)
    sprinkle()
    for i in range(64):
        A(f"v_sub_f32 v{vS+i}, v{vS+i}, v{vM}")
        A(f"v_mul_f32 v{vS+i}, s{sLOG2E}, v{vS+i}")
        A(f"v_exp_f32 v{vS+i}, v{vS+i}")
        if i % 16 == 15:
            sprinkle()
    A(f"v_add_f32 v{vT+2}, v{vS}, v{vS+1}")
    A(f"v_add_f32 v{vT+3}, v{vS+2}, v{vS+3}")
    for i in range(4, 64, 2):
        A(f"v_add_f32 v{vT+2}, v{vT+2}, v{vS+i}")
        A(f"v_add_f32 v{vT+3}, v{vT+3}, v{vS+i+1}")
    A(f"v_add_f32 v{vT+3}, v{vT+2}, v{vT+3}")
    A(f"v_mov_b32 v{vT+2}, v{vM}")
    sprinkle()
    A(f"v_lshlrev_b32 v{vT+4}, 3, v{vN}")
    A(f"v_lshl_add_u32 v{vT+4}, v{vGq}, 6, v{vT+4}")
    A(f"s_lshl_b32 s{sT0}, s{sW}, 8")
    A(f"v_add_u32 v{vT+4}, s{sT0}, v{vT+4}")
    A("s_mov_b32 exec_lo, 0x00ff00ff")
    A("s_mov_b32 exec_hi, 0x00ff00ff")
    A(f"ds_write_b64 v{vT+4}, {v2(vT+2)} offset:{L_SP}")
    A("s_mov_b64 exec, -1")
    lds_inc(L_CNTS)
    if "lvV" in opt:
        A(f"s_mov_b32 s{sLVL}, {opt['lvV']}")

    vP = vS
    vO = vS + 32
    for i in range(32):
        A(f"v_cvt_pk_bf16_f32 v{vP+i}, v{vS+2*i}, v{vS+2*i+1}")
    spos = opt.get("spos", 40)
    wpos = opt.get("wpos", 64)
    cnt = [64 - len(stream)]
    assert cnt[0] < spos
    work = []
    nxt = [0]

    def pv_chunks(b):
        R = blk_reg(7) if b < NLDS else blk_reg(b)
        ch = []
        if b < NLDS:
            def stage():
                for i in range(8):
                    A(f"ds_read_b128 {v4(R+4*i)}, v{vLA} offset:{b*8192+i*1024}")
            ch.append(stage)
        for t in range(4):
            def chunk(t=t):
                if b < NLDS and t == 0:
                    A("s_waitcnt lgkmcnt(0)")
                for u in range(4):
                    A(f"v_perm_b32 v{vQ+8+u}, v{R+(2*u+1)*4+t}, v{R+(2*u)*4+t}, s{sPLO}")
                for u in range(4):
                    A(f"v_perm_b32 v{vQ+12+u}, v{R+(2*u+1)*4+t}, v{R+(2*u)*4+t}, s{sPHI}")
                for hh in range(2):
                    m = 2 * t + hh
                    c = "0" if b == 0 else v4(vO + 4 * m)
                    A(f"v_mfma_f32_16x16x32_bf16 {v4(vO+4*m)}, {v4(vP+4*b)}, {v4(vQ+8+4*hh)}, {c}")
            ch.append(chunk)
        return ch

    while stream:
        if stream[0][1] == 7:
            assert nxt[0] >= NLDS
            while work and nxt[0] <= NLDS:
                work.pop(0)()
        issue(stream.pop(0), 1)
        cnt[0] += 1
        if cnt[0] == spos:
            lds_inc(L_PRGV)
        if cnt[0] == opt.get("lvpos", 0):
            A(f"s_max_u32 s{sLVL}, s{sLVL}, {opt.get('lvmin', 1)}")
        if cnt[0] == wpos:
            lds_inc(L_FLAGW)
        if not work and cnt[0] >= 8 * (nxt[0] + 1) and f"v{nxt[0]}" not in A.vm:
            work.extend(pv_chunks(nxt[0]))
            nxt[0] += 1
        for _ in range(2):
            if work:
                work.pop(0)()
    while work:
        work.pop(0)()
    while nxt[0] < 7:
        A.wait_vm(f"v{nxt[0]}")
        for c in pv_chunks(nxt[0]):
            c()
        nxt[0] += 1
    vF = blk_reg(3)
    lds_wait(L_FLAGS)
    A(f"v_and_b32 v{vT}, 1, v{vL}")
    A(f"v_lshlrev_b32 v{vT}, 4, v{vT}")
    for w in range(4):
        A(f"ds_read_b128 {v4(vF+4*w)}, v{vT} offset:{L_F+32*w}")
    vOW, vOR = vQ + 1, vQ + 2
    A(f"v_mul_u32_u24 v{vOW}, 272, v{vN}")
    A(f"v_lshl_add_u32 v{vOW}, v{vGq}, 4, v{vOW}")
    A(f"s_mul_i32 s{sT0}, s{sW}, 4352")
    A(f"v_add_u32 v{vOW}, s{sT0}, v{vOW}")
    A(f"s_lshl_b32 s{sT0}, s{sW}, 2")
    A(f"v_add_u32 v{vOR}, s{sT0}, v{vGq}")
    A(f"v_mul_u32_u24 v{vOR}, 272, v{vOR}")
    A(f"v_lshl_add_u32 v{vOR}, v{vN}, 4, v{vOR}")
    A(f"s_lshl_b32 s{sT3}, s{sJ}, 12")
    A(f"s_lshl_b32 s{sT1}, s{sW}, 10")
    A(f"s_add_u32 s{sT3}, s{sT3}, s{sT1}")
    A(f"s_add_u32 s{sT3}, s{sT3}, {WS_A}")
    A(f"v_mov_b32 v{vT+1}, 1")
    stamp(9)
    A.wait_vm("v7")
    stamp(8)

    def o_write(t):
        A("s_mov_b64 exec, 0xffffffff")
        for m in (2 * t, 2 * t + 1):
            A(f"ds_write_b128 v{vOW}, {v4(vO+4*m)} offset:{L_O+32*m}")
        A("s_mov_b64 exec, -1")

    for t, c in enumerate(pv_chunks(7)):
        c()
        if t > 0:
            o_write(t - 1)
    o_write(3)
    stamp(10)
    Z = blk_reg(4)
    A("s_mov_b64 exec, 1")
    A(f"ds_add_u32 v{vZ}, v{vT+1} offset:{L_CNTO}")
    A("s_mov_b64 exec, -1")
    A.label("L_owait")
    A(f"ds_read_b32 v{vT}, v{vZ} offset:{L_CNTO}")
    for w in range(4):
        A(f"ds_read_b128 {v4(Z+4*w)}, v{vOR} offset:{L_O+4352*w}")
    A("s_waitcnt lgkmcnt(0)")
    A(f"v_readfirstlane_b32 s{sT0}, v{vT}")
    A(f"s_cmp_eq_u32 s{sT0}, 4")
    A("s_cbranch_scc1 L_oready")
    A(f"s_sub_u32 s{sTO}, s{sTO}, 1")
    A(f"s_cmp_lg_u32 s{sTO}, 0")
    A("s_cbranch_scc1 L_owait")
    A("s_branch L_end")
    A.label("L_oready")
    for c in range(4):
        A(f"v_mul_f32 v{Z+c}, v{Z+c}, v{vF+c}")
    for w in range(1, 4):
        for c in range(4):
            A(f"v_fmac_f32 v{Z+c}, v{Z+4*w+c}, v{vF+4*w+c}")
    for c in range(4):
        tag10(Z + c)
    A(f"buffer_store_dwordx4 {v4(Z)}, v{vOV}, {srd(rWS)}, s{sT3} offen sc1")
    if opt.get("pubwait", False):
        A("s_waitcnt vmcnt(0)")
    lds_inc(L_CNTP)
    stamp(11)
    A("s_branch L_end")

    A.label("L_helper")
    A.vm = []
    vTAG = vM
    Z = 16
    ACC = 48
    vA1, vA2, vA3 = vOK, vH, 15
    vWa = 64
    vWb = 192
    vGA, vLW, vLR, vX0, vC4, vGE, vLE = 56, 57, 58, 59, 60, 61, 62
    sRID = sLDSB
    mk_srd(rX, 16, 2048)
    mk_srd(rOUT, 34, 2048)

    def rowsplit_loads(dst, rs, sbase, row_off, rng, d, token, ntw):
        for i in rng:
            off = row_off(i)
            A(f"s_add_u32 s{sT0}, s{sbase}, {off & ~4095}")
            throttle(d)
            A(f"buffer_load_dwordx4 {v4(dst+4*i)}, v{vA2}, {srd(rs)}, s{sT0} offen offset:{off & 4095}{ntw}",
              token or f"r{i//2}")

    def perm_to(dst, src, nrows):
        for p in range(nrows // 2):
            A.wait_vm(f"r{p}")
            for t in range(4):
                a = src + (2 * p) * 4 + t
                b = src + (2 * p + 1) * 4 + t
                A(f"v_perm_b32 v{dst+(2*p)*4+t}, v{b}, v{a}, s{sPLO}")
                A(f"v_perm_b32 v{dst+(2*p+1)*4+t}, v{b}, v{a}, s{sPHI}")

    def zero_acc():
        for c in range(8):
            A(f"v_mov_b32 v{ACC+c}, 0")

    sMK = 18
    efast = opt.get("efast", 64)

    def gemv_publish(wp, npairs, xsrc, emode=False):
        for p in range(npairs):
            xr, ln = xsrc(p)
            for c in range(8):
                w = wp + (2 * p + (c & 1)) * 4 + (c >> 1)
                A(f"v_dot2c_f32_bf16_dpp v{ACC+c}, v{xr}, v{w} row_newbcast:{ln} {DPPALL}")
        for c in range(4):
            A(f"v_permlane32_swap_b32 v{ACC+c}, v{ACC+c+4}")
        for c in range(4):
            A(f"v_add_f32 v{ACC+c}, v{ACC+c}, v{ACC+c+4}")
        for c in range(4):
            tag10(ACC + c)
        if emode:
            A(f"s_mov_b64 exec, s[{sMK}:{sMK+1}]")
            if efast:
                A(f"buffer_store_dwordx4 {v4(ACC)}, v{vA3}, {srd(rWS)}, s{sKB} offen")
        A(f"buffer_store_dwordx4 {v4(ACC)}, v{vA3}, {srd(rWS)}, s{sPUB} offen sc1")
        if emode:
            A("s_mov_b64 exec, -1")

    def pack_pairs(src, dst):
        A(f"v_mov_b32_dpp v{dst}, v{src} quad_perm:[1,0,3,2] {DPPALL}")
        A(f"v_cvt_pk_bf16_f32 v{dst}, v{src}, v{dst}")

    def red4_to_lds(waddr, ldsoff):
        A(f"v_permlane32_swap_b32 v{Z}, v{Z+2}")
        A(f"v_permlane32_swap_b32 v{Z+1}, v{Z+3}")
        A(f"v_add_f32 v{Z}, v{Z}, v{Z+2}")
        A(f"v_add_f32 v{Z+1}, v{Z+1}, v{Z+3}")
        A(f"v_permlane16_swap_b32 v{Z}, v{Z+1}")
        A(f"v_add_f32 v{Z}, v{Z}, v{Z+1}")
        row_red("v_add_f32", Z, (8,))
        A(f"ds_write_b32 v{waddr}, v{Z} offset:{L_GP+ldsoff}")
        A("s_waitcnt lgkmcnt(0)")
        A("s_barrier")

    def read4_from_lds(addr):
        for k in range(2):
            A(f"ds_read2_b32 {v2(Z+2*k)}, v{addr} offset0:{64*k} offset1:{64*k+32}")
        A("s_waitcnt lgkmcnt(0)")
        A(f"v_add_f32 v{Z}, v{Z}, v{Z+1}")
        A(f"v_add_f32 v{Z+2}, v{Z+2}, v{Z+3}")

    def common_addr():
        A(f"v_and_b32 v{vA3}, 31, v{vL}")
        A(f"v_lshlrev_b32 v{vC4}, 2, v{vA3}")
        A(f"v_lshlrev_b32 v{vA3}, 5, v{vA3}")
        A(f"v_lshrrev_b32 v{vT}, 5, v{vL}")
        A(f"v_lshl_add_u32 v{vA3}, v{vT}, 4, v{vA3}")
        A(f"v_lshrrev_b32 v{vA1}, 3, v{vL}")
        A(f"v_lshlrev_b32 v{vA1}, 12, v{vA1}")
        A(f"v_and_b32 v{vT+1}, 7, v{vL}")
        A(f"v_lshl_add_u32 v{vA1}, v{vT+1}, 4, v{vA1}")
        A(f"v_lshlrev_b32 v{vLW}, 4, v{vT+1}")
        A(f"v_lshl_add_u32 v{vLW}, v{vGq}, 2, v{vLW}")
        A(f"s_lshl_b32 s{sT0}, s{sHW}, 7")
        A(f"v_add_u32 v{vLW}, s{sT0}, v{vLW}")

    def pretouch(items):
        if not opt.get("pretouch", False):
            return
        lds_wait(L_PRGV, 8)
        A("s_mov_b32 exec_lo, 1")
        A("s_mov_b32 exec_hi, 1")
        for k, (va, rs, so) in enumerate(items):
            if isinstance(so, tuple):
                A(f"s_add_u32 s{sT0}, s{so[0]}, {so[1]}")
            else:
                A(f"s_mov_b32 s{sT0}, {hex(so)}")
            A(f"buffer_load_dword v{Z+k}, v{va}, {srd(rs)}, s{sT0} offen")
        A("s_mov_b64 exec, -1")
        A("s_waitcnt vmcnt(0)")

    WS_PT = [(vZ, rWS, 0x1f0000 - 0x1000 + 0x100000), (vZ, rWS, 0x3f8000), (vZ, rWS, 0x20000)]

    def watch(va, base, name):
        A("s_mov_b64 exec, 0xff")
        A(f"v_mov_b32 v{Z+8}, s{sT10}")
        A(f"s_mov_b32 s{sT1}, {hex(base)}")
        A.label(f"L_{name}")
        A(f"buffer_load_dwordx4 {v4(Z)}, v{va}, {srd(rWS)}, s{sT1} offen sc1")
        A("s_waitcnt vmcnt(0)")
        A(f"v_bitop3_b32 v{Z+4}, v{Z}, v{Z+1}, v{Z+8} bitop3:0x7e")
        A(f"v_and_b32 v{Z+4}, 0x3ff, v{Z+4}")
        A(f"v_cmp_ne_u32 s[{sP0}:{sP1}], 0, v{Z+4}")
        A(f"s_cmp_eq_u64 s[{sP0}:{sP1}], 0")
        A(f"s_cbranch_scc1 L_{name}d")
        A("s_sleep 2")
        A(f"s_sub_u32 s{sTO}, s{sTO}, 1")
        A(f"s_cmp_lg_u32 s{sTO}, 0")
        A(f"s_cbranch_scc1 L_{name}")
        A.label(f"L_{name}d")
        A("s_mov_b64 exec, -1")

    def hint_wait(delay):
        A(f"s_lshl_b32 s{sT1}, s{sX_}, 7")
        A(f"v_mov_b32 v{vT+4}, s{sT1}")
        poll(Z, vT + 4, [WS_HINT], sT16, 0xffff, Z + 8, sleep=opt.get("sleepH", 2))
        if delay:
            A(f"s_sleep {delay}")

    def service(name):
        A(f"s_cmp_lg_u32 s{sHW}, 0")
        A(f"s_cbranch_scc1 L_svc_{name}")
        X = Z
        lds_wait(L_PRGK, 8)
        A(f"s_lshl_b32 s{sT1}, s{sG}, 12")
        A(f"v_add_u32 v{vT+4}, s{sT1}, v{vOV}")
        poll(X, vT + 4, [WS_Q + i * 1024 for i in range(4)], sT16, 0xffff, X + 16, sleep=opt.get("sleepq", 8))
        A(f"v_lshrrev_b32 v{vT+1}, 5, v{vL}")
        A(f"v_mul_u32_u24 v{vT+1}, 272, v{vT+1}")
        A(f"v_and_b32 v{vT+2}, 31, v{vL}")
        A(f"v_lshl_add_u32 v{vT+1}, v{vT+2}, 3, v{vT+1}")
        for i in range(4):
            A(f"v_perm_b32 v{X+16+2*i}, v{X+4*i+1}, v{X+4*i}, s{sPHI}")
            A(f"v_perm_b32 v{X+16+2*i+1}, v{X+4*i+3}, v{X+4*i+2}, s{sPHI}")
            A(f"ds_write_b64 v{vT+1}, {v2(X+16+2*i)} offset:{L_Q+i*2*272}")
        lds_setflag(L_FLAGQ)
        stamp(2)
        lds_wait(L_CNTS, 4, 4)
        Y = Z
        A(f"v_and_b32 v{vT}, 7, v{vL}")
        A(f"v_lshlrev_b32 v{vT}, 3, v{vT}")
        A(f"v_lshrrev_b32 v{vT+1}, 3, v{vL}")
        A(f"v_lshl_add_u32 v{vT}, v{vT+1}, 7, v{vT}")
        for g in range(2):
            A(f"ds_read_b64 {v2(Y+2*g)}, v{vT} offset:{L_SP+64*g}")
        A("s_waitcnt lgkmcnt(0)")
        MM, LL, TT = vT + 2, vT + 3, Y + 6
        A(f"v_max_f32 v{MM}, v{Y}, v{Y+2}")
        row_red("v_max_f32", MM, (8,))
        xrow_red("v_max_f32", MM, TT)
        for g in range(2):
            A(f"v_sub_f32 v{Y+2*g}, v{Y+2*g}, v{MM}")
            A(f"v_mul_f32 v{Y+2*g}, s{sLOG2E}, v{Y+2*g}")
            A(f"v_exp_f32 v{Y+2*g}, v{Y+2*g}")
        A(f"v_mul_f32 v{LL}, v{Y}, v{Y+1}")
        A(f"v_fmac_f32 v{LL}, v{Y+2}, v{Y+3}")
        row_red("v_add_f32", LL, (8,))
        xrow_red("v_add_f32", LL, TT)
        A(f"v_or_b32 v{MM}, s{sT10}, v{MM}")
        tag10(LL)
        A(f"v_lshlrev_b32 v{vT}, 3, v{vL}")
        sfull = opt.get("sfull", True)
        A(f"s_lshl_b32 s{sT0}, s{sJ}, {7 if sfull else 6}")
        A(f"s_add_u32 s{sT0}, s{sT0}, {WS_S}")
        A(f"s_mov_b64 exec, {'0xffff' if sfull else '0xff'}")
        A(f"buffer_store_dwordx2 {v2(MM)}, v{vT}, {srd(rWS)}, s{sT0} offen sc1")
        A("s_mov_b64 exec, -1")
        if opt.get("rank"):
            A(f"v_lshlrev_b32 v{vT}, 8, v{vL}")
            A(f"s_and_b32 s{sT0}, s{sJ}, 3")
            A(f"s_lshl_b32 s{sT0}, s{sT0}, 6")
            A(f"s_add_u32 s{sT0}, s{sT0}, {WS_S}")
            A(f"buffer_load_dwordx2 {v2(Z)}, v{vT}, {srd(rWS)}, s{sT0} offen sc1")
            A("s_waitcnt vmcnt(0)")
            A(f"v_bitop3_b32 v{Z}, v{Z}, v{Z+1}, v{vTAG} bitop3:0x7e")
            A(f"v_and_b32 v{Z}, 0x3ff, v{Z}")
            A(f"v_cmp_eq_u32 s[{sP0}:{sP1}], 0, v{Z}")
            A(f"s_bcnt1_i32_b64 s{sT1}, s[{sP0}:{sP1}]")
            A(f"s_mov_b32 s{sT2}, 1")
            for q, t in enumerate(opt["rank"]):
                A(f"s_cmp_ge_u32 s{sT1}, {t}")
                A(f"s_cselect_b32 s{sT2}, {q+2}, s{sT2}")
            A(f"v_mov_b32 v{Z}, s{sT2}")
            A(f"ds_write_b32 v{vZ}, v{Z} offset:{L_LVL}")
            if stamps:
                A(f"s_add_u32 s{sSTAMP+8}, s{sSTAMP}, s{sT1}")
        lds_wait(L_PRGV, 8)
        Dd = Z
        TP = Z + 16
        if sfull:
            A(f"v_lshrrev_b32 v{vT+4}, 2, v{vL}")
            A(f"v_lshlrev_b32 v{vT+4}, 7, v{vT+4}")
            A(f"v_and_b32 v{vT+5}, 3, v{vL}")
            A(f"v_lshl_add_u32 v{vT+4}, v{vT+5}, 4, v{vT+4}")
            A(f"s_lshl_b32 s{sT1}, s{sG}, 13")
            A(f"v_add_u32 v{vT+4}, s{sT1}, v{vT+4}")
        poll(Dd, vT + 4, [WS_S + i * (2048 if sfull else 1024) for i in range(4)], sT10, 0x3ff, TP,
             sleep=opt.get("sleeps", 8))
        for i in range(16):
            A(f"v_and_b32 v{Dd+i}, s{sM10}, v{Dd+i}")
        Yy = TP
        Tt = TP + 4
        M0, M1, L0, L1 = Yy, Yy + 2, Yy + 1, Yy + 3
        for (Mx, o) in ((M0, 0), (M1, 2)):
            A(f"v_max_f32 v{Mx}, v{Dd+o}, v{Dd+4+o}")
            A(f"v_max3_f32 v{Mx}, v{Mx}, v{Dd+8+o}, v{Dd+12+o}")
        for Mx in (M0, M1):
            row_red("v_max_f32", Mx, (8, 4))
            xrow_red("v_max_f32", Mx, Tt)
        for (Mx, Lx, o) in ((M0, L0, 0), (M1, L1, 2)):
            for i in range(4):
                r = Dd + 4 * i + o
                A(f"v_sub_f32 v{r}, v{r}, v{Mx}")
                A(f"v_mul_f32 v{r}, s{sLOG2E}, v{r}")
                A(f"v_exp_f32 v{r}, v{r}")
            A(f"v_mul_f32 v{Lx}, v{Dd+o}, v{Dd+o+1}")
            for i in range(1, 4):
                A(f"v_fmac_f32 v{Lx}, v{Dd+4*i+o}, v{Dd+4*i+o+1}")
        for Lx in (L0, L1):
            row_red("v_add_f32", Lx, (8, 4))
            xrow_red("v_add_f32", Lx, Tt)
            A(f"v_rcp_f32 v{Lx}, v{Lx}")
        A(f"v_and_b32 v{vT}, 3, v{vL}")
        A(f"v_lshlrev_b32 v{vT}, 4, v{vT}")
        A(f"ds_write_b128 v{vT}, {v4(Yy)} offset:{L_SG}")
        A(f"v_and_b32 v{vT}, 7, v{vL}")
        A(f"v_lshlrev_b32 v{vT}, 3, v{vT}")
        A(f"v_bfe_u32 v{vT+2}, v{vL}, 3, 2")
        A(f"v_lshl_add_u32 v{vT+2}, v{vT+2}, 8, v{vT}")
        A(f"ds_read_b64 {v2(Dd)}, v{vT} offset:{L_SG}")
        A(f"ds_read_b32 v{Dd+2}, v{vT+2} offset:{L_SP}")
        A(f"v_and_b32 v{vT+3}, 31, v{vL}")
        A(f"v_lshlrev_b32 v{vT+3}, 2, v{vT+3}")
        A("s_waitcnt lgkmcnt(0)")
        A(f"v_sub_f32 v{Dd+2}, v{Dd+2}, v{Dd}")
        A(f"v_mul_f32 v{Dd+2}, s{sLOG2E}, v{Dd+2}")
        A(f"v_exp_f32 v{Dd+2}, v{Dd+2}")
        A(f"v_mul_f32 v{Dd+2}, v{Dd+2}, v{Dd+1}")
        A(f"ds_write_b32 v{vT+3}, v{Dd+2} offset:{L_F}")
        lds_setflag(L_FLAGS)
        stamp(7)
        A.label(f"L_svc_{name}")
        A.vm = []

    A(f"s_cmp_ge_u32 s{sA}, 16")
    A("s_cbranch_scc1 L_roleM")

    mk_srd(rW2, 24, 0 if opt.get("now") else 0x800000)
    mk_srd(rW3, 32, 0 if opt.get("now") else 3584 * 1024 * 2)
    common_addr()
    A(f"v_lshrrev_b32 v{vA2}, 5, v{vL}")
    A(f"v_lshlrev_b32 v{vA2}, 20, v{vA2}")
    A(f"v_lshl_add_u32 v{vA2}, v{vC4}, 2, v{vA2}")
    A(f"s_lshl_b32 s{sKB}, s{sG}, 21")
    A(f"s_and_b32 s{sT2}, s{sRI}, 31")
    A(f"s_lshl_b32 s{sT2}, s{sT2}, 13")
    A(f"s_add_u32 s{sKB}, s{sKB}, s{sT2}")
    A(f"s_lshl_b32 s{sT2}, s{sHW}, 9")
    A(f"s_add_u32 s{sKB}, s{sKB}, s{sT2}")
    wo_off = lambda i: (i >> 2) * 128 * 2048 + (i & 3) * 2048
    wo1 = opt.get("wo1", 16)
    rowsplit_loads(vWb, rW2, sKB, wo_off, range(min(4, wo1)), 0, None, nto)
    A("s_barrier")
    rowsplit_loads(vWb, rW2, sKB, wo_off, range(min(4, wo1), wo1), opt.get("DE", 0), None, nto)
    A("s_waitcnt lgkmcnt(0)")
    tags()
    A(f"s_lshl_b32 s{sPUB}, s{sX_}, 4")
    A(f"s_add_u32 s{sPUB}, s{sPUB}, s{sA}")
    A(f"s_lshl_b32 s{sPUB}, s{sPUB}, 12")
    A(f"s_lshl_b32 s{sT1}, s{sHW}, 10")
    A(f"s_add_u32 s{sPUB}, s{sPUB}, s{sT1}")
    A(f"s_add_u32 s{sPUB}, s{sPUB}, {WS_B}")
    A(f"s_lshl_b32 s{sT1}, s{sG}, 18")
    A(f"s_lshl_b32 s{sT2}, s{sHW}, 16")
    A(f"s_add_u32 s{sT1}, s{sT1}, s{sT2}")
    A(f"s_and_b32 s{sT2}, s{sRI}, 31")
    A(f"s_lshl_b32 s{sT2}, s{sT2}, 7")
    A(f"s_add_u32 s{sT1}, s{sT1}, s{sT2}")
    A(f"v_add_u32 v{vGA}, s{sT1}, v{vA1}")
    A(f"v_and_b32 v{vLR}, 3, v{vN}")
    A(f"v_lshlrev_b32 v{vLR}, 3, v{vLR}")
    A(f"v_lshrrev_b32 v{vT}, 5, v{vL}")
    A(f"v_lshl_add_u32 v{vLR}, v{vT}, 2, v{vLR}")
    A(f"v_lshrrev_b32 v{vT+1}, 2, v{vN}")
    A(f"v_add_u32 v{vLR}, v{vLR}, v{vT+1}")
    A(f"v_lshlrev_b32 v{vLR}, 2, v{vLR}")
    A(f"v_add_u32 v{vLR}, {L_GP}, v{vLR}")
    A(f"v_lshl_add_u32 v{vLE}, v{vT}, 4, v{vN}")
    A(f"v_lshlrev_b32 v{vLE}, 2, v{vLE}")
    A(f"v_add_u32 v{vLE}, {L_GP+1024}, v{vLE}")
    sDI = 16
    A(f"s_mul_i32 s{sDI}, s{sX_}, 14")
    A(f"s_add_u32 s{sDI}, s{sDI}, s{sA}")
    A(f"v_lshrrev_b32 v{vGE}, 3, v{vL}")
    A(f"v_mul_u32_u24 v{vGE}, 3584, v{vGE}")
    A(f"v_and_b32 v{vT+1}, 7, v{vL}")
    A(f"v_lshl_add_u32 v{vGE}, v{vT+1}, 4, v{vGE}")
    A(f"s_and_b32 s{sT0}, s{sHW}, 1")
    A(f"s_mul_i32 s{sT0}, s{sT0}, {8*3584}")
    A(f"s_lshr_b32 s{sT1}, s{sHW}, 1")
    A(f"s_mul_i32 s{sT1}, s{sT1}, 1792")
    A(f"s_add_u32 s{sT0}, s{sT0}, s{sT1}")
    A(f"s_mul_i32 s{sT1}, s{sX_}, {16*3584}")
    A(f"s_add_u32 s{sT0}, s{sT0}, s{sT1}")
    A(f"s_lshl_b32 s{sT1}, s{sA}, 7")
    A(f"s_add_u32 s{sT0}, s{sT0}, s{sT1}")
    A(f"v_add_u32 v{vGE}, s{sT0}, v{vGE}")
    vGB, vHP, vOA, vLB = 44, 45, 46, 47
    sHB = 20
    A(f"s_lshl_b32 s{sRID}, s{sX_}, 2")
    A(f"s_and_b32 s{sT0}, s{sA}, 3")
    A(f"s_add_u32 s{sRID}, s{sRID}, s{sT0}")
    A(f"v_lshrrev_b32 v{vOA}, 1, v{vC4}")
    A(f"s_lshl_b32 s{sT0}, s{sRID}, 6")
    A(f"buffer_load_ushort v{vX0}, v{vOA}, {srd(rX)}, s{sT0} offen")
    A(f"s_lshl_b32 s{sT0}, s{sHW}, 17")
    A(f"s_lshl_b32 s{sT1}, s{sRID}, 7")
    A(f"s_add_u32 s{sT0}, s{sT0}, s{sT1}")
    A(f"v_add_u32 v{vGB}, s{sT0}, v{vA1}")
    A(f"v_lshrrev_b32 v{vT}, 5, v{vL}")
    A(f"v_lshl_add_u32 v{vHP}, v{vT}, 12, v{vC4}")
    A(f"s_lshl_b32 s{sHB}, s{sHW}, 13")
    A(f"s_add_u32 s{sHB}, s{sHB}, s{sT1}")
    A(f"s_add_u32 s{sHB}, s{sHB}, {WS_H}")
    A(f"v_add_u32 v{vLB}, {L_GP+512}, v{vC4}")
    A("s_waitcnt vmcnt(0)")
    A(f"v_lshlrev_b32 v{vX0}, 16, v{vX0}")
    zero_acc()
    assert wo1 == 16
    pt = opt.get("pt", "d")
    vWd = vWa + 64
    vGH, vLN = 41, 42
    perm_to(vWa, vWb, 16)
    A(f"v_lshrrev_b32 v{vA2}, 5, v{vL}")
    A(f"v_lshlrev_b32 v{vA2}, 15, v{vA2}")
    A(f"v_lshl_add_u32 v{vA2}, v{vC4}, 2, v{vA2}")
    A(f"s_lshl_b32 s{sKB}, s{sDI}, 16")
    A(f"s_lshl_b32 s{sT2}, s{sHW}, 9")
    A(f"s_add_u32 s{sKB}, s{sKB}, s{sT2}")
    A(f"s_lshl_b32 s{sT1}, s{sX_}, 12")
    A(f"s_lshl_b32 s{sT2}, s{sHW}, 10")
    A(f"s_add_u32 s{sT2}, s{sT1}, s{sT2}")
    A(f"v_add_u32 v{vGH}, s{sT2}, v{vOV}")
    A(f"s_lshl_b32 s{sT0}, s{sHW}, 3")
    A(f"v_mov_b32 v{vLN}, s{sT0}")
    A(f"s_and_b32 s{sT0}, s{sA}, 14")
    A(f"s_cmp_lg_u32 s{sT0}, 12")
    A("s_cbranch_scc1 L_dearly")
    rowsplit_loads(vWb, rW3, sKB, lambda i: i * 2048, range(16), 0, None, ntd)
    perm_to(vWd, vWb, 16)
    A.label("L_dearly")
    A.vm = []
    service("W")
    stamp(6)
    a2 = 0
    aw = opt.get("await", "p")
    if aw == "p":
        lds_wait(L_CNTP, 2, 4)
    elif aw == "f":
        lds_wait(L_FLAGW, 4, 4)
    else:
        lds_wait(L_CNTO, 2)
    if opt.get("dA", 0):
        A(f"s_sleep {opt['dA']}")
    dch = opt.get("dch", 0)
    sDN = 21
    A(f"s_mov_b32 s{sDN}, 0")
    if dch:
        A(f"s_cmp_ge_u32 s{sA}, 12")
        A("s_cbranch_scc1 L_dch_done")
        A(f"v_mov_b32 v{Z+8}, s{sT10}")
        for k in range(16 // dch):
            A(f"s_mov_b32 s{sT0}, {hex(WS_A)}")
            A("s_mov_b64 exec, 0xff")
            A(f"buffer_load_dwordx4 {v4(Z)}, v{vGA}, {srd(rWS)}, s{sT0} offen sc1")
            A("s_waitcnt vmcnt(0)")
            A(f"v_bitop3_b32 v{Z+4}, v{Z}, v{Z+1}, v{Z+8} bitop3:0x7e")
            A(f"v_and_b32 v{Z+4}, 0x3ff, v{Z+4}")
            A(f"v_cmp_ne_u32 s[{sP0}:{sP1}], 0, v{Z+4}")
            A("s_mov_b64 exec, -1")
            A(f"s_cmp_eq_u64 s[{sP0}:{sP1}], 0")
            A("s_cbranch_scc1 L_a1d")
            rowsplit_loads(vWb, rW3, sKB, lambda i: i * 2048, range(k * dch, (k + 1) * dch), 0, None, ntd)
            A(f"s_mov_b32 s{sDN}, {k+1}")
        A.label("L_dch_done")
        A.vm = []
    if opt.get("a1", True):
        A(f"s_mov_b64 exec, {hex(opt.get('a1m', 0xff))}")
        A(f"v_mov_b32 v{Z+8}, s{sT10}")
        A.label("L_a1")
        A(f"s_mov_b32 s{sT0}, {hex(WS_A + opt.get('a1off', 0))}")
        A(f"buffer_load_dwordx4 {v4(Z)}, v{vGA}, {srd(rWS)}, s{sT0} offen sc1")
        A("s_waitcnt vmcnt(0)")
        A(f"v_bitop3_b32 v{Z+4}, v{Z}, v{Z+1}, v{Z+8} bitop3:0x7e")
        A(f"v_and_b32 v{Z+4}, 0x3ff, v{Z+4}")
        A(f"v_cmp_ne_u32 s[{sP0}:{sP1}], 0, v{Z+4}")
        A(f"s_cmp_eq_u64 s[{sP0}:{sP1}], 0")
        A("s_cbranch_scc1 L_a1d")
        A("s_sleep 4")
        A(f"s_sub_u32 s{sTO}, s{sTO}, 1")
        A(f"s_cmp_lg_u32 s{sTO}, 0")
        A("s_cbranch_scc1 L_a1")
        A.label("L_a1d")
        A("s_mov_b64 exec, -1")
    if aw == "f":
        lds_wait(L_CNTP, 1, 4)
    poll(Z, vGA, [WS_A, WS_A + 32768], sT10, 0x3ff, Z + 8, sleep=opt.get("sleepA", 0), back=opt.get("backA"),
         entry="L_a2_entry" if (a2 and wo1 < 16) else None)
    for i in range(8):
        A(f"v_and_b32 v{Z+i}, s{sM10}, v{Z+i}")
    for c in range(4):
        A(f"v_add_f32 v{Z+c}, v{Z+c}, v{Z+4+c}")
    red4_to_lds(vLW, 0)
    stamp(12)
    read4_from_lds(vLR)
    A(f"v_add_f32 v{Z}, v{Z}, v{Z+2}")
    pack_pairs(Z, Z + 4)
    gemv_publish(vWa, 8, lambda p: (Z + 4, 2 * p))
    stamp(3)

    def reduce32(base, execs, ldsoff, sl):
        poll(Z, vGB, [base + i * 32768 for i in range(4)], sT10, 0x3ff, Z + 16, execs, back=sl)
        for i in range(16):
            A(f"v_and_b32 v{Z+i}, s{sM10}, v{Z+i}")
        for c in range(4):
            A(f"v_add_f32 v{Z+c}, v{Z+c}, v{Z+4+c}")
            A(f"v_add_f32 v{Z+8+c}, v{Z+8+c}, v{Z+12+c}")
        for c in range(4):
            A(f"v_add_f32 v{Z+c}, v{Z+c}, v{Z+8+c}")
        red4_to_lds(vLW, ldsoff)
        read4_from_lds(vLB)
        A(f"v_add_f32 v{Z}, v{Z}, v{Z+2}")
        rbf(Z, Z)
        A(f"v_add_f32 v{vX0}, v{vX0}, v{Z}")
        rbf(vX0, vX0)

    A(f"s_add_u32 s{sPUB}, s{sPUB}, {WS_D - WS_B}")
    A(f"s_cmp_lt_u32 s{sA}, 12")
    A("s_cbranch_scc1 L_nored")
    if opt.get("hint", False):
        A(f"s_cmp_lg_u32 s{sA}, 12")
        A("s_cbranch_scc1 L_nohint")
        A(f"s_cmp_lg_u32 s{sHW}, 0")
        A("s_cbranch_scc1 L_nohint")
        for c in range(4):
            A(f"v_mov_b32 v{Z+c}, s{sT16}")
        A(f"s_lshl_b32 s{sT0}, s{sX_}, 7")
        A(f"s_add_u32 s{sT0}, s{sT0}, {WS_HINT}")
        A("s_mov_b64 exec, 0xff")
        A(f"buffer_store_dwordx4 {v4(Z)}, v{vOV}, {srd(rWS)}, s{sT0} offen sc1")
        A("s_mov_b64 exec, -1")
        A.label("L_nohint")
    if opt.get("dB", 0):
        A(f"s_sleep {opt.get('dB', 0)}")
    if opt.get("b1", False):
        watch(vGB, WS_B + opt.get("b1off", 0), "b1")
    if opt.get("back", True):
        A("s_waitcnt vmcnt(0)")
    reduce32(WS_B, None, 512, opt.get("backB"))
    A(f"v_or_b32 v{Z}, s{sT16}, v{vX0}")
    A(f"buffer_store_dword v{Z}, v{vHP}, {srd(rWS)}, s{sHB} offen sc1")
    stamp(13)
    if "d" in pt:
        for i in range(4):
            A(f"s_mov_b32 s{sT0}, {hex(WS_D + i * 32768)}")
            A(f"buffer_load_dwordx4 {v4(vWa+4*i)}, v{vGB}, {srd(rWS)}, s{sT0} offen sc1")
    A(f"v_add_u32 v{vLB}, 1024, v{vLB}")
    A(f"s_cmp_ge_u32 s{sA}, 14")
    A("s_cbranch_scc1 L_final0")
    A("s_branch L_down")
    A.label("L_nored")
    A.vm = []
    if efast and opt.get("ept0", True):
        for i, base in enumerate((WS_E, WS_C)):
            A(f"s_mov_b32 s{sT0}, {hex(base + WS_EF - WS_E)}")
            A(f"buffer_load_dwordx4 {v4(vWa+16+4*i)}, v{vGE}, {srd(rWS)}, s{sT0} offen sc1")
    if dch:
        for k in range(16 // dch):
            lab = A.newlabel("dsk")
            A(f"s_cmp_gt_u32 s{sDN}, {k}")
            A(f"s_cbranch_scc1 {lab}")
            rowsplit_loads(vWb, rW3, sKB, lambda i: i * 2048, range(k * dch, (k + 1) * dch), 0, None, ntd)
            A.label(lab)
    else:
        rowsplit_loads(vWb, rW3, sKB, lambda i: i * 2048, range(16), opt.get("DLD", 0), None, ntd)
    if opt.get("hpipe", False):
        A(f"v_mov_b32 v{Z+10}, s{sT16}")
        A(f"s_mov_b32 s{sT0}, {hex(WS_H)}")
        A(f"buffer_load_dwordx4 {v4(Z)}, v{vGH}, {srd(rWS)}, s{sT0} offen sc1")
        zero_acc()
        perm_to(vWd, vWb, 16)
        stamp(9)
        A("s_branch L_hentry")
    else:
        perm_to(vWd, vWb, 16)
    A.label("L_down")
    A.vm = []
    if efast and opt.get("ept", True):
        for i, base in enumerate((WS_E, WS_C)):
            A(f"s_mov_b32 s{sT0}, {hex(base + WS_EF - WS_E)}")
            A(f"buffer_load_dwordx4 {v4(vWa+16+4*i)}, v{vGE}, {srd(rWS)}, s{sT0} offen sc1")
    zero_acc()
    stamp(9)
    poll(Z, vGH, [WS_H], sT16, 0xffff, Z + 8, entry="L_hentry" if opt.get("hpipe", False) else None)
    for i in range(4):
        A(f"v_and_b32 v{Z+i}, s{sM16}, v{Z+i}")
    A(f"v_readfirstlane_b32 s{sT1}, v{Z}")
    S1, S2, TT = Z + 8, Z + 9, Z + 10
    for i in range(4):
        A(f"v_subrev_f32 v{Z+i}, s{sT1}, v{Z+i}")
    A(f"v_add_f32 v{S1}, v{Z}, v{Z+1}")
    A(f"v_mul_f32 v{S2}, v{Z}, v{Z}")
    A(f"v_add_f32 v{TT}, v{Z+2}, v{Z+3}")
    A(f"v_fmac_f32 v{S2}, v{Z+1}, v{Z+1}")
    A(f"v_add_f32 v{S1}, v{S1}, v{TT}")
    A(f"v_fmac_f32 v{S2}, v{Z+2}, v{Z+2}")
    A(f"v_fmac_f32 v{S2}, v{Z+3}, v{Z+3}")
    A(f"v_permlane32_swap_b32 v{S1}, v{S2}")
    A(f"v_add_f32 v{S1}, v{S1}, v{S2}")
    row_red("v_add_f32", S1, (8, 4, 2, 1))
    A(f"v_mov_b32 v{TT}, v{S1}")
    A(f"v_permlane16_swap_b32 v{TT}, v{S1}")
    A(f"v_add_f32 v{S1}, v{S1}, v{TT}")
    A(f"v_mov_b32 v{S2}, v{S1}")
    A(f"v_permlane32_swap_b32 v{S1}, v{S2}")
    A(f"v_mul_f32 v{TT}, 0x3b800000, v{S1}")
    A(f"v_fma_f32 v{S2}, -v{TT}, v{S1}, v{S2}")
    A(f"v_add_f32 v{S1}, s{sT1}, v{TT}")
    A(f"ds_write_b64 v{vLN}, {v2(S1)} offset:{L_LN}")
    A("s_waitcnt lgkmcnt(0)")
    A("s_barrier")
    A(f"ds_read_b128 {v4(Z+12)}, v{vZ} offset:{L_LN}")
    A(f"ds_read_b128 {v4(Z+16)}, v{vZ} offset:{L_LN+16}")
    A("s_waitcnt lgkmcnt(0)")
    MEAN, VAR = Z + 8, Z + 9
    A(f"v_add_f32 v{MEAN}, v{Z+12}, v{Z+14}")
    A(f"v_add_f32 v{TT}, v{Z+16}, v{Z+18}")
    A(f"v_add_f32 v{VAR}, v{Z+13}, v{Z+15}")
    A(f"v_add_f32 v{MEAN}, v{MEAN}, v{TT}")
    A(f"v_add_f32 v{Z+11}, v{Z+17}, v{Z+19}")
    A(f"v_mul_f32 v{MEAN}, 0x3e800000, v{MEAN}")
    A(f"v_add_f32 v{VAR}, v{VAR}, v{Z+11}")
    for k in range(4):
        A(f"v_sub_f32 v{Z+12+2*k}, v{Z+12+2*k}, v{MEAN}")
    A(f"v_mul_f32 v{TT}, v{Z+12}, v{Z+12}")
    for k in range(1, 4):
        A(f"v_fmac_f32 v{TT}, v{Z+12+2*k}, v{Z+12+2*k}")
    A(f"v_mul_f32 v{VAR}, 0x3a800000, v{VAR}")
    A(f"v_fmac_f32 v{VAR}, 0x3e800000, v{TT}")
    MB, RS = Z + 22, Z + 23
    ln_finish(MEAN, VAR, MB, RS)
    stamp(4)
    poll(Z, vGE, [WS_E, WS_C], sT10, 0x3ff, Z + 8, alt=(WS_EF - WS_E, efast) if efast else None)
    for i in range(8):
        A(f"v_and_b32 v{Z+i}, s{sM10}, v{Z+i}")
    for c in range(4):
        A(f"v_fma_f32 v{Z+c}, -v{MB}, v{Z+4+c}, v{Z+c}")
    red4_to_lds(vLW, 1024)
    stamp(10)
    read4_from_lds(vLE)
    Gv, Uv = Z, Z + 2
    A(f"v_mul_f32 v{Gv}, v{Gv}, v{RS}")
    A(f"v_mul_f32 v{Uv}, v{Uv}, v{RS}")
    rbf(Gv, Gv)
    rbf(Uv, Uv)
    T1, T2 = Z + 1, Z + 3
    A(f"v_mul_f32 v{T1}, v{Gv}, v{Gv}")
    A(f"v_mul_f32 v{T1}, v{T1}, v{Gv}")
    A(f"v_mov_b32 v{T2}, v{Gv}")
    A(f"v_fmac_f32 v{T2}, 0x3d372713, v{T1}")
    A(f"v_mul_f32 v{T2}, 0xc0135761, v{T2}")
    A(f"v_exp_f32 v{T2}, v{T2}")
    A(f"v_add_f32 v{T2}, 1.0, v{T2}")
    A(f"v_rcp_f32 v{T2}, v{T2}")
    A(f"v_mul_f32 v{Gv}, v{Gv}, v{T2}")
    rbf(Gv, Gv)
    A(f"v_mul_f32 v{Gv}, v{Gv}, v{Uv}")
    pack_pairs(Gv, Z + 4)
    gemv_publish(vWd, 8, lambda p: (Z + 4, 2 * p))
    stamp(14)
    A(f"s_cmp_lt_u32 s{sA}, 12")
    A("s_cbranch_scc1 L_end")
    A("s_branch L_final")
    A.label("L_final0")
    A.vm = []
    if opt.get("dwatch", False):
        A(f"v_subrev_u32 v{vGE}, 256, v{vGE}")
        poll(Z, vGE, [WS_E], sT10, 0x3ff, Z + 8, sleep=2, alt=(WS_EF - WS_E, efast) if efast else None)
        if opt.get("dD0", 0):
            A(f"s_sleep {opt['dD0']}")
    A.label("L_final")
    if opt.get("dD", 0):
        A(f"s_sleep {opt['dD']}")
    A.vm = []
    reduce32(WS_D, {1: 0xffff, 3: 0xffff}, 1536, opt.get("backD"))
    A(f"s_cmp_lg_u32 s{sHW}, 0")
    A("s_cbranch_scc1 L_end")
    A(f"v_lshrrev_b32 v{Z}, 16, v{vX0}")
    A(f"s_lshl_b32 s{sT0}, s{sRID}, 6")
    A("s_mov_b64 exec, 0xffffffff")
    A(f"buffer_store_short v{Z}, v{vOA}, {srd(rOUT)}, s{sT0} offen")
    A("s_mov_b64 exec, -1")
    stamp(15)
    A(f"s_cmp_lg_u32 s{sRID}, 0")
    A("s_cbranch_scc1 L_end")
    A(f"v_mov_b32 v{Z}, s{sE}")
    A("s_mov_b64 exec, 1")
    A(f"buffer_store_dword v{Z}, v{vZ}, {srd(rWS)}, 0 offen offset:{WS_EPOCH} sc1")
    A("s_mov_b64 exec, -1")
    A("s_branch L_end")

    A.label("L_roleM")
    A.vm = []
    A("s_setprio 3")
    A(f"s_lshl_b32 s{sT0}, s{sG}, 5")
    A(f"s_add_u32 s{sRI}, s{sRI}, s{sT0}")
    mk_srd(rW1, 22, 0 if opt.get("noq") else 0x800000)
    XR = vWa + 64
    A(f"v_lshlrev_b32 v{vT}, 5, v{vL}")
    A(f"buffer_load_dwordx4 {v4(XR)}, v{vT}, {srd(rX)}, 0 offen", "x")
    A(f"buffer_load_dwordx4 {v4(XR+4)}, v{vT}, {srd(rX)}, 0 offen offset:16", "x")
    A(f"v_lshrrev_b32 v{vT+1}, 2, v{vL}")
    A(f"v_lshlrev_b32 v{vT+1}, 4, v{vT+1}")
    A(f"s_lshl_b32 s{sT0}, s{sHW}, 8")
    A(f"v_add_u32 v{vT+1}, s{sT0}, v{vT+1}")
    A(f"v_lshlrev_b32 v{vT+2}, 1, v{vT+1}")
    stq = 8 if opt.get("stagq", True) else 0
    A(f"s_and_b32 s{sT2}, s{sRI}, 1")
    A(f"s_mul_i32 s{sT3}, s{sT2}, {2*stq}")
    A(f"s_sub_u32 s{sT0}, 16, s{sT3}")
    A(f"buffer_load_dwordx4 {v4(XR+8)}, v{vT+2}, {srd(rX)}, s{sT3} offen", "x")
    A(f"buffer_load_dwordx4 {v4(XR+12)}, v{vT+2}, {srd(rX)}, s{sT0} offen", "x")
    A(f"v_lshlrev_b32 v{vT+2}, 13, v{vT+1}")
    A(f"v_and_b32 v{vT+3}, 3, v{vL}")
    A(f"v_lshl_add_u32 v{vT+2}, v{vT+3}, 4, v{vT+2}")
    A(f"s_lshl_b32 s{sT1}, s{sRI}, 6")
    A(f"s_mul_i32 s{sT2}, s{sT2}, {stq*8192}")
    A(f"s_sub_u32 s{sT3}, s{sT1}, s{sT2}")
    A(f"s_add_u32 s{sT1}, s{sT1}, s{sT2}")
    for i in range(16):
        A(f"s_add_u32 s{sT0}, s{sT3 if (i & 8) else sT1}, {i*8192}")
        A(f"buffer_load_dwordx4 {v4(vWa+4*i)}, v{vT+2}, {srd(rW1)}, s{sT0} offen{ntq}", f"wq{i//2}")
    if opt.get("qbar_early", True):
        A("s_barrier")
    A.wait_vm("x")
    F = XR + 16
    for i in range(8):
        unpack(F + 2 * i, F + 2 * i + 1, XR + i)
    MB, RD = XR + 32, XR + 33
    ln_stats([F + i for i in range(16)], XR + 34, XR + 35, XR + 36, MB, RD)
    XP = XR + 40
    for p in range(8):
        unpack(XR + 38, XR + 39, XR + 8 + p)
        ln_apply_pair(XP + p, XR + 38, XR + 39, MB, RD)
    for p in range(8):
        A.wait_vm(f"wq{p}")
        for t in range(4):
            a = vWa + (2 * p) * 4 + t
            b = vWa + (2 * p + 1) * 4 + t
            A(f"v_perm_b32 v{Z+8+2*t}, v{b}, v{a}, s{sPLO}")
            A(f"v_perm_b32 v{Z+8+2*t+1}, v{b}, v{a}, s{sPHI}")
        for c in range(8):
            src = "0" if p == 0 else f"v{Z+c}"
            A(f"v_dot2_f32_bf16 v{Z+c}, v{Z+8+c}, v{XP+p}, {src}")
    red8_rows(Z)
    for r in (8, 4):
        for c in range(2):
            A(f"v_add_f32_dpp v{Z+c}, v{Z+c}, v{Z+c} row_ror:{r} {DPPALL}")
    A(f"v_and_b32 v{vT+3}, 3, v{vL}")
    A(f"v_lshlrev_b32 v{vT+3}, 5, v{vT+3}")
    A(f"v_lshl_add_u32 v{vT+3}, v{vGq}, 3, v{vT+3}")
    A(f"s_lshl_b32 s{sT0}, s{sHW}, 7")
    A(f"v_add_u32 v{vT+3}, s{sT0}, v{vT+3}")
    A(f"ds_write_b64 v{vT+3}, {v2(Z)} offset:{L_QPART}")
    A("s_waitcnt lgkmcnt(0)")
    if not opt.get("qbar_early", True):
        A("s_barrier")
    tags()
    lds_arrive(L_CNTQ, sT0)
    A(f"s_cmp_lg_u32 s{sT0}, 3")
    A("s_cbranch_scc1 L_qpub_done")
    A("s_mov_b64 exec, 0xff")
    for w in range(4):
        A(f"ds_read_b128 {v4(Z+4*w)}, v{vOV} offset:{L_QPART+128*w}")
    A("s_waitcnt lgkmcnt(0)")
    for st in (2, 1):
        for w in range(st):
            for c in range(4):
                A(f"v_add_f32 v{Z+4*w+c}, v{Z+4*w+c}, v{Z+4*(w+st)+c}")
    for c in range(4):
        rbf(Z + c, Z + c)
        A(f"v_or_b32 v{Z+c}, s{sT16}, v{Z+c}")
    A(f"s_lshl_b32 s{sT0}, s{sRI}, 7")
    A(f"s_add_u32 s{sT0}, s{sT0}, {WS_Q}")
    A(f"buffer_store_dwordx4 {v4(Z)}, v{vOV}, {srd(rWS)}, s{sT0} offen sc1")
    A("s_mov_b64 exec, -1")
    A.label("L_qpub_done")
    A.vm = []
    stamp(1)
    A("s_setprio 0")
    A(f"s_mul_i32 s{sRI}, s{sX_}, 14")
    A(f"s_add_u32 s{sRI}, s{sRI}, s{sA}")
    A(f"s_sub_u32 s{sRI}, s{sRI}, 16")
    A(f"s_cmp_lt_u32 s{sHW}, 2")
    A(f"s_cselect_b32 s{rW1}, s28, s30")
    A(f"s_cselect_b32 s{rW1+1}, s29, s31")
    A(f"s_and_b32 s{rW1+1}, s{rW1+1}, 0xffff")
    A(f"s_mov_b32 s{rW1+2}, {hex(0 if opt.get('now') else 1024*3584*2)}")
    A(f"s_mov_b32 s{rW1+3}, 0x20000")
    common_addr()
    sKC, sCG = 16, 17
    A(f"s_sub_u32 s{sKC}, s{sA}, 16")
    A(f"v_lshrrev_b32 v{vA2}, 5, v{vL}")
    A(f"v_mul_u32_u24 v{vA2}, {32*7168}, v{vA2}")
    A(f"v_lshl_add_u32 v{vA2}, v{vC4}, 2, v{vA2}")
    A(f"s_mul_i32 s{sKB}, s{sKC}, {64*7168}")
    A(f"s_mul_i32 s{sT2}, s{sX_}, 896")
    A(f"s_add_u32 s{sKB}, s{sKB}, s{sT2}")
    A(f"s_and_b32 s{sT3}, s{sHW}, 1")
    A(f"s_lshl_b32 s{sT2}, s{sT3}, 9")
    A(f"s_add_u32 s{sKB}, s{sKB}, s{sT2}")
    A(f"s_cmp_eq_u32 s{sT3}, 0")
    A(f"s_cselect_b32 s{sMK}, -1, 0x00ffffff")
    A(f"s_mov_b32 s{sMK+1}, s{sMK}")
    gu1 = opt.get("gu1", 0)

    gst = {"done": 0}
    CS, vONE = 200, 208
    for c in range(8):
        A(f"v_mov_b32 v{CS+c}, 0")
    A(f"v_mov_b32 v{vONE}, 0x3f803f80")

    def gu_perm(p):
        for t in range(4):
            a = vWa + 8 + (2 * p) * 4 + t
            b = vWa + 8 + (2 * p + 1) * 4 + t
            A(f"v_perm_b32 v{vWa+(2*p)*4+t}, v{b}, v{a}, s{sPLO}")
            A(f"v_perm_b32 v{vWa+(2*p+1)*4+t}, v{b}, v{a}, s{sPHI}")
        for c in range(8):
            w = vWa + (2 * p + (c & 1)) * 4 + (c >> 1)
            A(f"v_dot2c_f32_bf16 v{CS+c}, v{vONE}, v{w}")
        gst["done"] = p + 1

    def gu_loads(rng, d):
        for i in rng:
            A(f"s_add_u32 s{sT0}, s{sKB}, {i*7168}")
            throttle(d)
            A(f"s_mov_b64 exec, s[{sMK}:{sMK+1}]")
            A(f"buffer_load_dwordx4 {v4(vWa+8+4*i)}, v{vA2}, {srd(rW1)}, s{sT0} offen{ntg}", f"gu{i//2}")
            A("s_mov_b64 exec, -1")
            p = gst["done"]
            if 2 * p + 1 < i and f"gu{p}" not in A.vm:
                gu_perm(p)

    def gu_finish(n):
        while gst["done"] < n // 2:
            A.wait_vm(f"gu{gst['done']}")
            gu_perm(gst["done"])

    gu_loads(range(gu1), opt.get("DG1", 2))
    gu_finish(gu1)
    A(f"s_lshl_b32 s{sPUB}, s{sX_}, 4")
    A(f"s_add_u32 s{sPUB}, s{sPUB}, s{sKC}")
    A(f"s_mul_i32 s{sPUB}, s{sPUB}, 3584")
    A(f"s_lshr_b32 s{sT1}, s{sHW}, 1")
    A(f"s_mul_i32 s{sT1}, s{sT1}, 1792")
    A(f"s_add_u32 s{sPUB}, s{sPUB}, s{sT1}")
    A(f"s_lshl_b32 s{sT1}, s{sT3}, 10")
    A(f"s_add_u32 s{sPUB}, s{sPUB}, s{sT1}")
    A(f"s_add_u32 s{sPUB}, s{sPUB}, {WS_E}")
    A(f"s_lshl_b32 s{sT1}, s{sX_}, 12")
    A(f"s_lshl_b32 s{sT2}, s{sHW}, 10")
    A(f"s_add_u32 s{sT2}, s{sT1}, s{sT2}")
    A(f"v_add_u32 v{vGA}, s{sT2}, v{vOV}")
    A(f"v_and_b32 v{vGE}, 7, v{vL}")
    A(f"v_lshlrev_b32 v{vGE}, 4, v{vGE}")
    A(f"v_lshrrev_b32 v{vT}, 5, v{vL}")
    A(f"v_lshl_add_u32 v{vGE}, v{vT}, 7, v{vGE}")
    A(f"s_lshl_b32 s{sT2}, s{sKC}, 8")
    A(f"s_add_u32 s{sT2}, s{sT1}, s{sT2}")
    A(f"v_add_u32 v{vGE}, s{sT2}, v{vGE}")
    A(f"s_lshl_b32 s{sT0}, s{sHW}, 3")
    A(f"v_mov_b32 v{vLW}, s{sT0}")
    zero_acc()
    service("M")
    pretouch(WS_PT + [(vA2, rW1, (sKB, i * 7168)) for i in (0, 8, 16, 24, 31)])
    ga = opt.get("gu_after", "p")
    if ga == "flag":
        lds_wait(L_FLAGW, 4, opt.get("wcnt", 4))
    elif ga == "o":
        lds_wait(L_CNTO, 4, 4)
    else:
        lds_wait(L_CNTP, 4, 4)
    gu2 = gu1
    if ga == "g":
        gu2 = opt.get("gu2", gu1)
        gu_loads(range(gu1, gu2), opt.get("DLG", 10))
        A(f"s_cmp_lg_u32 s{sHW}, 0")
        A("s_cbranch_scc1 L_gwait")
        svm = list(A.vm)
        A(f"v_lshlrev_b32 v{vT+4}, 12, v{vL}")
        A(f"s_lshl_b32 s{sT1}, s{sG}, 18")
        A(f"s_lshl_b32 s{sT2}, s{sC}, 6")
        A(f"s_add_u32 s{sT1}, s{sT1}, s{sT2}")
        A(f"v_add_u32 v{vT+4}, s{sT1}, v{vT+4}")
        poll(Z, vT + 4, [WS_A], sT10, 0x3ff, Z + 8, sleep=opt.get("sleepG", 6))
        lds_setflag(L_FLAGG)
        A.label("L_gwait")
        A.vm = svm
        lds_wait(L_FLAGG, 2)
    stamp(3)
    gu_loads(range(gu2, 32), opt.get("DLG", 10))
    stamp(4)
    gu_finish(32)
    A(f"s_add_u32 s{sKB}, s{sPUB}, {WS_EF - WS_E}")
    for c in range(4):
        A(f"v_permlane32_swap_b32 v{CS+c}, v{CS+c+4}")
    for c in range(4):
        A(f"v_add_f32 v{CS+c}, v{CS+c}, v{CS+c+4}")
    for c in range(4):
        tag10(CS + c)
    A(f"s_add_u32 s20, s{sPUB}, {WS_C - WS_E}")
    A(f"s_add_u32 s21, s{sKB}, {WS_C - WS_E}")
    if efast:
        A(f"s_mov_b64 exec, s[{sMK}:{sMK+1}]")
        A(f"buffer_store_dwordx4 {v4(CS)}, v{vA3}, {srd(rWS)}, s21 offen")
        A("s_mov_b64 exec, -1")
    stamp(6)
    if opt.get("hint", False):
        hint_wait(opt.get("dC", 0))
    poll(Z, vGE, [WS_H], sT16, 0xffff, Z + 8)
    stamp(13)
    A(f"v_perm_b32 v{Z+12}, v{Z+1}, v{Z}, s{sPHI}")
    A(f"v_perm_b32 v{Z+13}, v{Z+3}, v{Z+2}, s{sPHI}")
    gemv_publish(vWa, 16, lambda p: (Z + 12 + (p & 1), p >> 1), True)
    A(f"s_mov_b64 exec, s[{sMK}:{sMK+1}]")
    A(f"buffer_store_dwordx4 {v4(CS)}, v{vA3}, {srd(rWS)}, s20 offen sc1")
    A("s_mov_b64 exec, -1")
    stamp(15)

    A.label("L_end")
    if stamps:
        A("s_mov_b64 exec, 1")
        A(f"s_lshl_b32 s{sT0}, s2, 3")
        A(f"s_add_u32 s{sT0}, s{sT0}, s{sW}")
        A(f"s_lshl_b32 s{sT0}, s{sT0}, 6")
        A(f"s_add_u32 s{sT0}, s{sT0}, {WS_STAMP}")
        for q in range(4):
            for k in range(4):
                A(f"v_mov_b32 v{vT+k}, s{sSTAMP+4*q+k}")
            A(f"buffer_store_dwordx4 {v4(vT)}, v{vZ}, {srd(rWS)}, s{sT0} offen offset:{16*q}")
            A("s_nop 2")
    A.label("L_exit")
    A("s_endpgm")
    A.raw('.section .rodata,"a"')
    A.raw(".p2align 6")
    A.raw(f".amdhsa_kernel {NAME}_kernel")
    A.raw("  .amdhsa_next_free_vgpr 256")
    A.raw("  .amdhsa_next_free_sgpr 102")
    A.raw("  .amdhsa_accum_offset 256")
    A.raw("  .amdhsa_group_segment_fixed_size 0")
    A.raw("  .amdhsa_kernarg_size 96")
    A.raw("  .amdhsa_user_sgpr_count 2")
    A.raw("  .amdhsa_user_sgpr_kernarg_segment_ptr 1")
    A.raw("  .amdhsa_system_sgpr_workgroup_id_x 1")
    A.raw("  .amdhsa_float_denorm_mode_32 3")
    A.raw(".end_amdhsa_kernel")
    return A.text()


if __name__ == "__main__":
    import json
    opt = json.loads(sys.argv[2]) if len(sys.argv) > 2 else {}
    out = sys.argv[1] if len(sys.argv) > 1 else "k.s"
    open(out, "w").write(gen(opt))
```

```python
import sys
from asmlib import Asm

NAME = "sequential_preLN__gqa_block_cached__glu_gated_geglu__decode"

HEADER = """; Kernarg layout for this problem (96 bytes, ptrs only, base s[0:1]):
; Generated by a script of my own. One persistent launch, one 8-wave workgroup per CU (wg = 8a + x).
"""

STAMP_NAMES = ["start", "qpub", "qgath", "kiss", "qrdy", "qk", "wland", "s_glob", "viss", "prdy", "pv", "apub",
               "hopA", "h", "hopC", "end"]

WS_EPOCH = 0x0
WS_Q = 0x1000
WS_S = 0x8000
WS_H = 0x10000
WS_HINT = 0x20000
WS_A = 0x100000
WS_B = 0x200000
WS_D = 0x300000
WS_STAMP = 0x400000
WS_B2 = 0x380000
FAST_B = 0
FAST_H = 0
WS_E = 0x500000
WS_C = 0x580000
WS_EF = WS_E
WS_SIZE = 0x600000

L_CNTQ, L_FLAGQ, L_CNTS, L_FLAGS = 0, 4, 8, 12
L_FLAGW = 16
L_CNTO = 20
L_CNTB = 24
L_CNTP = 28
L_PRGK, L_PRGV, L_FLAGG = 32, 36, 40
L_LVL = 44
L_LOC = 52
L_CK = 48
L_Q = 0x200
L_SP = 0xC00
L_SG = 0x1400
L_F = 0x1480
L_LN = 0x1800
L_GP = 0x2000
L_QPART = 0x2C00
L_O = 0x3000
L_KV = 0x8000
NLDS = 3
LDS_BYTES = L_KV + 4 * NLDS * 8192

sW = 3
sX_, sA, sJ, sRI, sG, sC = 4, 5, 6, 7, 8, 9
sT16, sT10 = 10, 11
sPLO, sPHI = 12, 13
sM10, sM16 = 14, 15
rX, rK, rV, rW1, rW2, rW3, rOUT, rWS = 40, 44, 48, 52, 56, 60, 68, 72
sTO, sKB, sE, sLOG2E = 76, 77, 78, 79
sSTAMP = 80
sT0, sT1, sT2, sT3 = 96, 97, 98, 99
sP0, sP1 = 100, 101
sSCALE, sLDSB, sPUB, sHW = 64, 65, 66, 67

vL, vN, vGq, vOK, vOV, vM, vH, vZ = 0, 1, 2, 3, 4, 5, 6, 7
vT = 8
vQ = 16
vS = 32
vR = 96


def srd(r):
    return f"s[{r}:{r+3}]"


def v4(r):
    return f"v[{r}:{r+3}]"


def v2(r):
    return f"v[{r}:{r+1}]"


DPPALL = "row_mask:0xf bank_mask:0xf"


def gen(opt):
    A = Asm()
    stamps = opt.get("stamps", False)
    pol = lambda k, d: (" " + opt.get(k, d)).rstrip()
    ntq, nto, ntg, ntd = pol("pq", ""), pol("po", ""), pol("pg", "nt"), pol("pd", "nt")
    ntk, ntv = pol("pk", "nt"), pol("pv", "nt")
    D = opt.get("D", 5)
    DC = opt.get("DC", 7)
    DG = opt.get("DG", 1)

    def stamp(k):
        if not stamps:
            return
        A(f"s_memrealtime s[{sP0}:{sP1}]")
        A("s_waitcnt lgkmcnt(0)")
        A(f"s_mov_b32 s{sSTAMP+k}, s{sP0}")

    def mk_srd(r, ptr, size):
        A(f"s_mov_b32 s{r}, s{ptr}")
        A(f"s_and_b32 s{r+1}, s{ptr+1}, 0xffff")
        A(f"s_mov_b32 s{r+2}, {hex(size)}")
        A(f"s_mov_b32 s{r+3}, 0x20000")

    def rbf(dst, src):
        A(f"v_cvt_pk_bf16_f32 v{dst}, v{src}, v{src}")
        A(f"v_and_b32 v{dst}, s{sM16}, v{dst}")

    def row_red(op, x, rors):
        for r in rors:
            A(f"{op}_dpp v{x}, v{x}, v{x} row_ror:{r} {DPPALL}")

    def xrow_red(op, x, t):
        A(f"v_mov_b32 v{t}, v{x}")
        A(f"v_permlane16_swap_b32 v{t}, v{x}")
        A(f"{op} v{x}, v{x}, v{t}")
        A(f"v_mov_b32 v{t}, v{x}")
        A(f"v_permlane32_swap_b32 v{t}, v{x}")
        A(f"{op} v{x}, v{x}, v{t}")

    def wave_sum(x, t):
        row_red("v_add_f32", x, (8, 4, 2, 1))
        xrow_red("v_add_f32", x, t)

    def ln_finish(mean, var, out_mb, out_r):
        rbf(out_mb, mean)
        rbf(var, var)
        A(f"v_add_f32 v{var}, 0x3727c5ac, v{var}")
        rbf(var, var)
        A(f"v_sqrt_f32 v{var}, v{var}")
        rbf(var, var)
        A(f"v_rcp_f32 v{out_r}, v{var}")

    def ln_stats(vals, t0, t1, t2, out_mb, out_r):
        A(f"v_add_f32 v{t0}, v{vals[0]}, v{vals[1]}")
        A(f"v_add_f32 v{t1}, v{vals[2]}, v{vals[3]}")
        for i in range(4, 16, 2):
            A(f"v_add_f32 v{t0}, v{t0}, v{vals[i]}")
            A(f"v_add_f32 v{t1}, v{t1}, v{vals[i+1]}")
        A(f"v_add_f32 v{t0}, v{t0}, v{t1}")
        wave_sum(t0, t1)
        A(f"v_mul_f32 v{t0}, 0x3a800000, v{t0}")
        A(f"v_sub_f32 v{t1}, v{vals[0]}, v{t0}")
        A(f"v_mul_f32 v{t2}, v{t1}, v{t1}")
        for i in range(1, 16):
            A(f"v_sub_f32 v{t1}, v{vals[i]}, v{t0}")
            A(f"v_fmac_f32 v{t2}, v{t1}, v{t1}")
        wave_sum(t2, t1)
        A(f"v_mul_f32 v{t2}, 0x3a800000, v{t2}")
        ln_finish(t0, t2, out_mb, out_r)

    def ln_apply_pair(dst, a, b, mb, r):
        A(f"v_sub_f32 v{a}, v{a}, v{mb}")
        A(f"v_sub_f32 v{b}, v{b}, v{mb}")
        A(f"v_cvt_pk_bf16_f32 v{b}, v{a}, v{b}")
        A(f"v_lshlrev_b32 v{a}, 16, v{b}")
        A(f"v_and_b32 v{b}, s{sM16}, v{b}")
        A(f"v_mul_f32 v{a}, v{a}, v{r}")
        A(f"v_mul_f32 v{b}, v{b}, v{r}")
        A(f"v_cvt_pk_bf16_f32 v{dst}, v{a}, v{b}")

    def unpack(dlo, dhi, src):
        A(f"v_lshlrev_b32 v{dlo}, 16, v{src}")
        A(f"v_and_b32 v{dhi}, s{sM16}, v{src}")

    def perm_inplace(src, nrows, tmp):
        for p in range(nrows // 2):
            for t in range(4):
                a = src + (2 * p) * 4 + t
                b = src + (2 * p + 1) * 4 + t
                A(f"v_perm_b32 v{tmp+t}, v{b}, v{a}, s{sPHI}")
                A(f"v_perm_b32 v{a}, v{b}, v{a}, s{sPLO}")
            for t in range(4):
                A(f"v_mov_b32 v{src+(2*p+1)*4+t}, v{tmp+t}")

    def dots(acc, wp, xp, npairs):
        for p in range(npairs):
            for c in range(8):
                src = "0" if p == 0 else f"v{acc+c}"
                w = wp + (2 * p + (c & 1)) * 4 + (c >> 1)
                A(f"v_dot2_f32_bf16 v{acc+c}, v{w}, v{xp+p}, {src}")

    def red8_rows(acc):
        for c in range(4):
            A(f"v_permlane32_swap_b32 v{acc+c}, v{acc+c+4}")
        for c in range(4):
            A(f"v_add_f32 v{acc+c}, v{acc+c}, v{acc+c+4}")
        for c in range(2):
            A(f"v_permlane16_swap_b32 v{acc+c}, v{acc+c+2}")
        for c in range(2):
            A(f"v_add_f32 v{acc+c}, v{acc+c}, v{acc+c+2}")

    def tag10(r):
        A(f"v_add_u32 v{r}, 0x200, v{r}")
        A(f"v_and_or_b32 v{r}, v{r}, s{sM10}, v{vTAG}")

    def lds_wait(off, sl=2, atleast=1):
        lp = A.newlabel("ldsw")
        dn = A.newlabel("ldsd")
        A.label(lp)
        A(f"ds_read_b32 v{vT}, v{vZ} offset:{off}")
        A("s_waitcnt lgkmcnt(0)")
        A(f"v_readfirstlane_b32 s{sT0}, v{vT}")
        A(f"s_cmp_ge_u32 s{sT0}, {atleast}")
        A(f"s_cbranch_scc1 {dn}")
        A(f"s_sleep {sl}")
        A(f"s_sub_u32 s{sTO}, s{sTO}, 1")
        A(f"s_cmp_lg_u32 s{sTO}, 0")
        A(f"s_cbranch_scc1 {lp}")
        A("s_branch L_end")
        A.label(dn)

    def lds_arrive(off, dst_s):
        A(f"v_mov_b32 v{vT+1}, 1")
        A("s_mov_b64 exec, 1")
        A(f"ds_add_rtn_u32 v{vT}, v{vZ}, v{vT+1} offset:{off}")
        A("s_waitcnt lgkmcnt(0)")
        A(f"v_readfirstlane_b32 s{dst_s}, v{vT}")
        A("s_mov_b64 exec, -1")

    def lds_inc(off):
        A(f"v_mov_b32 v{vT+1}, 1")
        A("s_mov_b64 exec, 1")
        A(f"ds_add_u32 v{vZ}, v{vT+1} offset:{off}")
        A("s_mov_b64 exec, -1")

    def lds_setflag(off):
        A(f"v_mov_b32 v{vT+1}, 1")
        A(f"ds_write_b32 v{vZ}, v{vT+1} offset:{off}")

    def poll(dst, voff, soffs, tagreg, mask, t, execs=None, sleep=0, alt=None, back=None, entry=None, hook=None):
        n = len(soffs)
        execs = execs or {}
        period = alt[1] if (alt and hook) else None
        alt = None
        masked = opt.get("masked", True)
        lp = A.newlabel("poll")
        dn = A.newlabel("polld")
        A(f"v_mov_b32 v{t+2*n}, s{tagreg}")
        for i in execs:
            for c in range(4):
                A(f"v_mov_b32 v{dst+4*i+c}, s{tagreg}")
        if period:
            A(f"s_mov_b32 s{sT3}, 0")
        A(f"s_mov_b64 s[{sP0}:{sP1}], -1")
        A.label(lp)
        if period:
            hk = A.newlabel("phk")
            A(f"s_add_u32 s{sT3}, s{sT3}, 1")
            A(f"s_and_b32 s{sT2}, s{sT3}, {period-1}")
            A(f"s_cbranch_scc1 {hk}")
            hook()
            A.label(hk)
        if alt:
            A(f"s_add_u32 s{sT3}, s{sT3}, 1")
            A(f"s_and_b32 s{sT2}, s{sT3}, {alt[1]-1}")
            A(f"s_cselect_b32 s{sT2}, {hex(alt[0])}, 0")
            if hook:
                hk = A.newlabel("phk")
                A(f"s_cbranch_scc1 {hk}")
                hook()
                A.label(hk)
        if masked:
            A(f"s_mov_b64 exec, s[{sP0}:{sP1}]")
        for i in range(n):
            if alt:
                A(f"s_add_u32 s{sT0}, s{sT2}, {hex(soffs[i])}")
            else:
                A(f"s_mov_b32 s{sT0}, {hex(soffs[i])}")
            sk = None
            if i in execs:
                A(f"s_and_b32 exec_hi, exec_hi, {hex(execs[i])}")
                sk = A.newlabel("psk")
                A(f"s_cbranch_execz {sk}")
            vo = voff[i] if isinstance(voff, (list, tuple)) else voff
            A(f"buffer_load_dwordx4 {v4(dst+4*i)}, v{vo}, {srd(rWS)}, s{sT0} offen sc1")
            if i in execs:
                A.label(sk)
                A(f"s_mov_b64 exec, s[{sP0}:{sP1}]" if masked else "s_mov_b64 exec, -1")
        if entry:
            A.label(entry)
        A("s_waitcnt vmcnt(0)")
        if entry == "L_bentry" and opt.get("csafe", False):
            A.label("L_bentry2")
        for i in range(2 * n):
            A(f"v_bitop3_b32 v{t+i}, v{dst+2*i}, v{dst+2*i+1}, v{t+2*n} bitop3:0x7e")
        regs = [t + i for i in range(2 * n)]
        while len(regs) > 1:
            nxt = []
            k = 0
            while k < len(regs):
                grp = regs[k:k + 3]
                if len(grp) == 3:
                    A(f"v_or3_b32 v{grp[0]}, v{grp[0]}, v{grp[1]}, v{grp[2]}")
                elif len(grp) == 2:
                    A(f"v_or_b32 v{grp[0]}, v{grp[0]}, v{grp[1]}")
                nxt.append(grp[0])
                k += 3
            regs = nxt
        A(f"v_and_b32 v{t}, {hex(mask)}, v{t}")
        A(f"v_cmp_ne_u32 s[{sP0}:{sP1}], 0, v{t}")
        if masked:
            A("s_mov_b64 exec, -1")
        A(f"s_cmp_eq_u64 s[{sP0}:{sP1}], 0")
        A(f"s_cbranch_scc1 {dn}")
        if sleep:
            A(f"s_sleep {sleep}")
        if back:
            nb = A.newlabel("pnb")
            A(f"s_bcnt1_i32_b64 s{sT0}, s[{sP0}:{sP1}]")
            A(f"s_cmp_le_u32 s{sT0}, {back[0]}")
            A(f"s_cbranch_scc1 {nb}")
            A(f"s_sleep {back[1]}")
            A.label(nb)
        A(f"s_sub_u32 s{sTO}, s{sTO}, 1")
        A(f"s_cmp_lg_u32 s{sTO}, 0")
        A(f"s_cbranch_scc1 {lp}")
        A("s_branch L_end")
        A.label(dn)

    def throttle(d):
        if d and len(A.vm) >= d:
            A(f"s_waitcnt vmcnt({d-1})")

    LV0 = opt.get("LV", [5, 6, 8, 8])
    LV1 = opt.get("LV1", [5, 7, 8, 8])
    tcount = [0]
    sLVL, sCLS = 36, 37

    def throttle2(on):
        if not on:
            return
        if on < 0:
            throttle(-on)
            return
        tcount[0] += 1
        LV = LV1 if tcount[0] & 1 else LV0
        if len(A.vm) >= LV[-1]:
            A(f"s_waitcnt vmcnt({LV[-1]-1})")
        sv = list(A.vm)
        lab = None
        for lv in range(len(LV) - 2, -1, -1):
            if len(sv) >= LV[lv] and LV[lv] < LV[lv + 1]:
                lab = lab or A.newlabel("th")
                A(f"s_cmp_gt_u32 s{sLVL}, {lv}")
                A(f"s_cbranch_scc1 {lab}")
                A(f"s_waitcnt vmcnt({LV[lv]-1})")
        if lab:
            A.label(lab)
        A.vm = sv

    def tok(item):
        return f"{item[0]}{item[1]}"

    st = {}

    def blk_reg(b):
        return vR + (b - NLDS) * 32

    def issue(item, d):
        kind, b, i = item
        ps = {("k", 0, 0): 2, ("k", 0, 4): 7, ("k", 1, 0): 1, ("k", 2, 0): 12, ("k", 4, 0): 13, ("k", 6, 0): 14, ("v", 2, 0): 6, ("v", 4, 0): 15}
        if item in ps and opt.get("pstamps", False):
            stamp(ps[item])
        idx = (0 if kind == "k" else 64) + 8 * b + i
        if opt.get("rank") and idx > 64 and idx < 64 + opt.get("rank_end", 64) and d:
            if i % 4 == 0:
                A(f"ds_read_b32 v{vT+7}, v{vZ} offset:{L_LVL}")
                st["pend"] = True
            elif st.get("pend"):
                A("s_waitcnt lgkmcnt(0)")
                A(f"v_readfirstlane_b32 s{sT1}, v{vT+7}")
                A(f"s_sub_u32 s{sT1}, s{sT1}, 1")
                A(f"s_cselect_b32 s{sLVL}, s{sLVL}, s{sT1}")
                st["pend"] = False
        if opt.get("rank") and idx == 64 + opt.get("rank_end", 64):
            A(f"s_mov_b32 s{sLVL}, {opt.get('rank_base', 1)}")
        blk = (0 if kind == "k" else 8) + b
        if opt.get("bt") and i == 0 and blk in set(opt["bt"]) and blk > 0:
            A(f"s_cmp_eq_u32 s35, {blk}")
            A(f"s_cselect_b32 s{sLVL}, s{sCLS}, s{sLVL}")
        if kind == "k":
            off = (i >> 2) * 4096 + ((i >> 1) & 1) * 512 + (i & 1) * 128
            va, rs, nt = vOK, rK, ntk
        else:
            off = i * 1024
            va, rs, nt = vOV, rV, ntv
        if b < NLDS:
            A(f"s_add_u32 s{sT0}, s{sKB}, {hex((b<<21) + off)}")
            A(f"s_add_u32 m0, s{sLDSB}, {hex(b*8192 + i*1024)}")
            throttle2(d)
            A(f"buffer_load_dwordx4 v{va}, {srd(rs)}, s{sT0} offen{nt} lds", tok(item))
        else:
            A(f"s_add_u32 s{sT0}, s{sKB}, {hex((b<<21) + (off & ~4095))}")
            throttle2(d)
            A(f"buffer_load_dwordx4 {v4(blk_reg(b)+4*i)}, v{va}, {srd(rs)}, s{sT0} offen offset:{off & 4095}{nt}",
              tok(item))

    vTAG = vH

    def tags():
        A(f"s_add_u32 s{sE}, s{sE}, 1")
        A(f"s_and_b32 s{sT16}, s{sE}, 0xffff")
        A(f"s_and_b32 s{sT10}, s{sE}, 0x3ff")
        A(f"v_mov_b32 v{vTAG}, s{sT10}")

    A.raw(HEADER.rstrip("\n"))
    A.raw(f"; @launch grid=(256,1,1) block=(512,1,1) lds={LDS_BYTES}")
    A.raw('.amdgcn_target "amdgcn-amd-amdhsa--gfx950"')
    A.raw(".text")
    A.raw(f".globl {NAME}_kernel")
    A.raw(".p2align 8")
    A.raw(f".type {NAME}_kernel,@function")
    A.raw(f"{NAME}_kernel:")
    A("s_cmp_ge_u32 s2, 256")
    A("s_cbranch_scc1 L_exit")
    A("s_load_dwordx16 s[16:31], s[0:1], 0")
    A("s_load_dwordx8 s[32:39], s[0:1], 64")
    if stamps:
        A(f"s_memrealtime s[{sP0}:{sP1}]")
        for k in range(16):
            A(f"s_mov_b32 s{sSTAMP+k}, 0")
    A(f"v_lshrrev_b32 v{vT}, 6, v0")
    A(f"v_and_b32 v{vL}, 63, v0")
    A(f"v_readfirstlane_b32 s{sW}, v{vT}")
    A(f"v_mov_b32 v{vZ}, 0")
    A(f"v_and_b32 v{vN}, 15, v{vL}")
    A(f"v_lshrrev_b32 v{vGq}, 4, v{vL}")
    for i in range(4):
        A(f"v_mov_b32 v{vT+i}, 0")
    A(f"s_cmp_lg_u32 s{sW}, 0")
    A("s_cbranch_scc1 L_nozero")
    A(f"ds_write_b128 v{vZ}, {v4(vT)}")
    A(f"ds_write_b128 v{vZ}, {v4(vT)} offset:16")
    A(f"ds_write_b128 v{vZ}, {v4(vT)} offset:32")
    A(f"ds_write_b128 v{vZ}, {v4(vT)} offset:48")
    A.label("L_nozero")
    A(f"s_and_b32 s{sX_}, s2, 7")
    A(f"s_lshr_b32 s{sA}, s2, 3")
    sWL = 35
    gmap = opt.get("gmap", "x")
    if gmap == "a2":
        A(f"s_and_b32 s{sG}, s{sA}, 3")
        A(f"s_lshr_b32 s{sT0}, s{sA}, 2")
        A(f"s_lshl_b32 s{sC}, s{sT0}, 3")
        A(f"s_add_u32 s{sC}, s{sC}, s{sX_}")
        A(f"s_lshl_b32 s{sRI}, s{sX_}, 2")
        A(f"s_add_u32 s{sRI}, s{sRI}, s{sT0}")
    else:
        A(f"s_lshr_b32 s{sG}, s{sX_}, 1")
        A(f"s_and_b32 s{sC}, s{sX_}, 1")
        A(f"s_lshl_b32 s{sRI}, s{sC}, 4")
        A(f"s_and_b32 s{sT0}, s{sA}, 15")
        A(f"s_add_u32 s{sRI}, s{sRI}, s{sT0}")
        A(f"s_lshl_b32 s{sC}, s{sC}, 5")
        A(f"s_add_u32 s{sC}, s{sC}, s{sA}")
    A(f"s_lshl_b32 s{sJ}, s{sG}, 6")
    A(f"s_add_u32 s{sJ}, s{sJ}, s{sC}")
    A(f"s_and_b32 s{sHW}, s{sW}, 3")
    A(f"s_mov_b32 s{sPLO}, 0x05040100")
    A(f"s_mov_b32 s{sPHI}, 0x07060302")
    A(f"s_mov_b32 s{sM10}, 0xfffffc00")
    A(f"s_mov_b32 s{sM16}, 0xffff0000")
    A(f"s_mov_b32 s{sTO}, 200000")
    A(f"s_mov_b32 s{sLOG2E}, 0x3fb8aa3b")
    A(f"s_mov_b32 s{sSCALE}, 0x3db504f3")
    A(f"s_lshl_b32 s{sKB}, s{sG}, 24")
    A(f"s_lshl_b32 s{sT0}, s{sC}, 2")
    A(f"s_add_u32 s{sT0}, s{sT0}, s{sHW}")
    A(f"s_lshl_b32 s{sT0}, s{sT0}, 13")
    A(f"s_add_u32 s{sKB}, s{sKB}, s{sT0}")
    A(f"s_mul_i32 s{sLDSB}, s{sHW}, {NLDS*8192}")
    A(f"s_add_u32 s{sLDSB}, s{sLDSB}, {L_KV}")
    A(f"v_and_b32 v{vT+4}, 3, v{vN}")
    A(f"v_lshlrev_b32 v{vT+4}, 10, v{vT+4}")
    A(f"v_bfe_u32 v{vT+5}, v{vN}, 2, 1")
    A(f"v_lshl_add_u32 v{vT+4}, v{vT+5}, 8, v{vT+4}")
    A(f"v_lshrrev_b32 v{vT+5}, 3, v{vN}")
    A(f"v_lshl_add_u32 v{vT+4}, v{vT+5}, 6, v{vT+4}")
    A(f"v_lshl_add_u32 v{vOK}, v{vGq}, 4, v{vT+4}")
    A(f"v_lshlrev_b32 v{vOV}, 4, v{vL}")
    A("s_waitcnt lgkmcnt(0)")
    if stamps:
        A(f"s_mov_b32 s{sSTAMP}, s{sP0}")
    A(f"s_load_dword s{sE}, s[38:39], {WS_EPOCH}")
    mk_srd(rWS, 38, WS_SIZE)
    A(f"s_cmp_ge_u32 s{sW}, 4")
    A("s_cbranch_scc1 L_helper")

    mk_srd(rK, 18, 0x4000000)
    mk_srd(rV, 20, 0x4000000)
    k_items = [("k", b, i) for b in range(8) for i in range(8)]
    v_items = [("v", b, i) for b in range(8) for i in range(8)]
    lvO, lvQ, lvQs = opt.get("lv", [0, 1, 2])
    A(f"s_and_b32 s{sT0}, s{sRI}, 14")
    A(f"s_cmp_eq_u32 s{sT0}, 6")
    A(f"s_cselect_b32 s{sCLS}, {lvQs}, {lvQ}")
    A(f"s_cmp_ge_u32 s{sJ}, 254")
    A(f"s_cselect_b32 s{sCLS}, {lvQs}, s{sCLS}")
    A(f"s_cmp_lt_u32 s{sA}, 16")
    A(f"s_cselect_b32 s{sCLS}, {lvO}, s{sCLS}")
    A(f"s_mov_b32 s{sLVL}, s{sCLS}")
    sBST = 35
    bt = opt.get("bt")
    if bt:
        packed = sum((v & 15) << (4 * i) for i, v in enumerate(bt))
        A(f"s_getreg_b32 s{sT0}, hwreg(HW_REG_XCC_ID, 0, 3)")
        A(f"s_lshl_b32 s{sT0}, s{sT0}, 2")
        A(f"s_lshr_b32 s{sBST}, {hex(packed)}, s{sT0}")
        A(f"s_and_b32 s{sBST}, s{sBST}, 15")
        A(f"s_cselect_b32 s{sT0}, 1, 0")
        A(f"s_add_u32 s{sLVL}, s{sLVL}, s{sT0}")
    npre = opt.get("bpos", 4)
    nun = opt.get("nun", 0)
    for k, it in enumerate(k_items[:npre]):
        issue(it, 0 if k < nun else 1)
    A("s_barrier")
    A("s_waitcnt lgkmcnt(0)")
    tags()

    qpos = opt.get("qpos", 48)
    for k, it in enumerate(k_items):
        if k >= npre:
            issue(it, 1)
            if k + 1 == qpos:
                lds_inc(L_PRGK)
    stamp(3)
    lds_wait(L_FLAGQ)
    A(f"v_and_b32 v{vT}, 7, v{vN}")
    A(f"v_mul_u32_u24 v{vT}, 272, v{vT}")
    A(f"v_lshl_add_u32 v{vT}, v{vGq}, 4, v{vT}")
    A(f"v_lshrrev_b32 v{vT+1}, 3, v{vN}")
    A(f"v_lshl_add_u32 v{vT}, v{vT+1}, 6, v{vT}")
    for h in range(2):
        A(f"ds_read_b128 {v4(vQ+4*h)}, v{vT} offset:{L_Q+128*h}")
    A(f"v_add_u32 v{vM}, s{sLDSB}, v{vOV}")
    A("s_waitcnt lgkmcnt(0)")
    stamp(4)
    stream = list(v_items)

    def sprinkle(n=1):
        for _ in range(n):
            if stream:
                issue(stream.pop(0), 0)

    def score_round(a, b):
        A(f"v_cvt_pk_bf16_f32 v{b}, v{a}, v{b}")
        A(f"v_lshlrev_b32 v{a}, 16, v{b}")
        A(f"v_and_b32 v{b}, s{sM16}, v{b}")
        A(f"v_mul_f32 v{a}, s{sSCALE}, v{a}")
        A(f"v_mul_f32 v{b}, s{sSCALE}, v{b}")
        A(f"v_cvt_pk_bf16_f32 v{b}, v{a}, v{b}")
        A(f"v_lshlrev_b32 v{a}, 16, v{b}")
        A(f"v_and_b32 v{b}, s{sM16}, v{b}")

    def combine(t):
        d0, d1 = vS + 4 * t, vQ + 8 + 4 * (t & 1)
        for r in range(4):
            A(f"v_permlane32_swap_b32 v{d0+r}, v{d1+r}")
        for r in range(4):
            A(f"v_add_f32_dpp v{d0+r}, v{d1+r}, v{d0+r} row_ror:8 {DPPALL}")
        score_round(d0, d0 + 1)
        score_round(d0 + 2, d0 + 3)

    STG = vS + 32
    for b in range(8):
        A.wait_vm(f"k{b}")
        if b < NLDS:
            for i in range(8):
                A(f"ds_read_b128 {v4(STG+4*i)}, v{vM} offset:{b*8192+i*1024}")
            A("s_waitcnt lgkmcnt(0)")
            base = STG
        else:
            base = blk_reg(b)
        for tt in range(2):
            t = 2 * b + tt
            d0, d1 = vS + 4 * t, vQ + 8 + 4 * (t & 1)
            r = base + tt * 16
            A(f"v_mfma_f32_16x16x32_bf16 {v4(d0)}, {v4(r)}, {v4(vQ)}, 0")
            A(f"v_mfma_f32_16x16x32_bf16 {v4(d1)}, {v4(r+8)}, {v4(vQ)}, 0")
            A(f"v_mfma_f32_16x16x32_bf16 {v4(d0)}, {v4(r+4)}, {v4(vQ+4)}, {v4(d0)}")
            A(f"v_mfma_f32_16x16x32_bf16 {v4(d1)}, {v4(r+12)}, {v4(vQ+4)}, {v4(d1)}")
            if t > 0:
                combine(t - 1)
        sprinkle(opt.get("spr_qk", 2))
    combine(15)
    stamp(5)
    vLA = vQ
    A(f"v_mov_b32 v{vLA}, v{vM}")
    A(f"v_max_f32 v{vM}, v{vS}, v{vS+1}")
    for i in range(2, 64, 2):
        A(f"v_max3_f32 v{vM}, v{vM}, v{vS+i}, v{vS+i+1}")
    xrow_red("v_max_f32", vM, vT + 2)
    sprinkle()
    for i in range(64):
        A(f"v_sub_f32 v{vS+i}, v{vS+i}, v{vM}")
        A(f"v_mul_f32 v{vS+i}, s{sLOG2E}, v{vS+i}")
        A(f"v_exp_f32 v{vS+i}, v{vS+i}")
        if i % 16 == 15:
            sprinkle()
    A(f"v_add_f32 v{vT+2}, v{vS}, v{vS+1}")
    A(f"v_add_f32 v{vT+3}, v{vS+2}, v{vS+3}")
    for i in range(4, 64, 2):
        A(f"v_add_f32 v{vT+2}, v{vT+2}, v{vS+i}")
        A(f"v_add_f32 v{vT+3}, v{vT+3}, v{vS+i+1}")
    A(f"v_add_f32 v{vT+3}, v{vT+2}, v{vT+3}")
    A(f"v_mov_b32 v{vT+2}, v{vM}")
    sprinkle()
    A(f"v_lshlrev_b32 v{vT+4}, 3, v{vN}")
    A(f"v_lshl_add_u32 v{vT+4}, v{vGq}, 6, v{vT+4}")
    A(f"s_lshl_b32 s{sT0}, s{sW}, 8")
    A(f"v_add_u32 v{vT+4}, s{sT0}, v{vT+4}")
    A("s_mov_b32 exec_lo, 0x00ff00ff")
    A("s_mov_b32 exec_hi, 0x00ff00ff")
    A(f"ds_write_b64 v{vT+4}, {v2(vT+2)} offset:{L_SP}")
    A("s_mov_b64 exec, -1")
    lds_inc(L_CNTS)
    if "lvV" in opt:
        A(f"s_mov_b32 s{sLVL}, {opt['lvV']}")

    vP = vS
    vO = vS + 32
    for i in range(32):
        A(f"v_cvt_pk_bf16_f32 v{vP+i}, v{vS+2*i}, v{vS+2*i+1}")
    spos = opt.get("spos", 32)
    wpos = opt.get("wpos", 64)
    cnt = [64 - len(stream)]
    assert cnt[0] < spos
    work = []
    nxt = [0]

    def pv_chunks(b):
        R = blk_reg(7) if b < NLDS else blk_reg(b)
        ch = []
        if b < NLDS:
            def stage():
                for i in range(8):
                    A(f"ds_read_b128 {v4(R+4*i)}, v{vLA} offset:{b*8192+i*1024}")
            ch.append(stage)
        for t in range(4):
            def chunk(t=t):
                if b < NLDS and t == 0:
                    A("s_waitcnt lgkmcnt(0)")
                for u in range(4):
                    A(f"v_perm_b32 v{vQ+8+u}, v{R+(2*u+1)*4+t}, v{R+(2*u)*4+t}, s{sPLO}")
                for u in range(4):
                    A(f"v_perm_b32 v{vQ+12+u}, v{R+(2*u+1)*4+t}, v{R+(2*u)*4+t}, s{sPHI}")
                for hh in range(2):
                    m = 2 * t + hh
                    c = "0" if b == 0 else v4(vO + 4 * m)
                    A(f"v_mfma_f32_16x16x32_bf16 {v4(vO+4*m)}, {v4(vP+4*b)}, {v4(vQ+8+4*hh)}, {c}")
            ch.append(chunk)
        return ch

    while stream:
        if stream[0][1] == 7:
            assert nxt[0] >= NLDS
            while work and nxt[0] <= NLDS:
                work.pop(0)()
        issue(stream.pop(0), 1)
        cnt[0] += 1
        if cnt[0] == spos:
            lds_inc(L_PRGV)
        if cnt[0] == opt.get("lvpos", 0):
            A(f"s_max_u32 s{sLVL}, s{sLVL}, {opt.get('lvmin', 1)}")
        if cnt[0] == wpos:
            lds_inc(L_FLAGW)
        if not work and cnt[0] >= 8 * (nxt[0] + 1) and f"v{nxt[0]}" not in A.vm:
            work.extend(pv_chunks(nxt[0]))
            nxt[0] += 1
        for _ in range(2):
            if work:
                work.pop(0)()
    while work:
        work.pop(0)()
    while nxt[0] < 7:
        A.wait_vm(f"v{nxt[0]}")
        for c in pv_chunks(nxt[0]):
            c()
        nxt[0] += 1
    vF = blk_reg(3)
    lds_wait(L_FLAGS)
    A(f"v_and_b32 v{vT}, 1, v{vL}")
    A(f"v_lshlrev_b32 v{vT}, 4, v{vT}")
    for w in range(4):
        A(f"ds_read_b128 {v4(vF+4*w)}, v{vT} offset:{L_F+32*w}")
    vOW, vOR = vQ + 1, vQ + 2
    A(f"v_mul_u32_u24 v{vOW}, 272, v{vN}")
    A(f"v_lshl_add_u32 v{vOW}, v{vGq}, 4, v{vOW}")
    A(f"s_mul_i32 s{sT0}, s{sW}, 4352")
    A(f"v_add_u32 v{vOW}, s{sT0}, v{vOW}")
    A(f"s_lshl_b32 s{sT0}, s{sW}, 2")
    A(f"v_add_u32 v{vOR}, s{sT0}, v{vGq}")
    A(f"v_mul_u32_u24 v{vOR}, 272, v{vOR}")
    A(f"v_lshl_add_u32 v{vOR}, v{vN}, 4, v{vOR}")
    A(f"s_lshl_b32 s{sT3}, s{sJ}, 12")
    A(f"s_lshl_b32 s{sT1}, s{sW}, 10")
    A(f"s_add_u32 s{sT3}, s{sT3}, s{sT1}")
    A(f"s_add_u32 s{sT3}, s{sT3}, {WS_A}")
    A(f"v_mov_b32 v{vT+1}, 1")
    stamp(9)
    A.wait_vm("v7")
    stamp(8)

    def o_write(t):
        A("s_mov_b64 exec, 0xffffffff")
        for m in (2 * t, 2 * t + 1):
            A(f"ds_write_b128 v{vOW}, {v4(vO+4*m)} offset:{L_O+32*m}")
        A("s_mov_b64 exec, -1")

    for t, c in enumerate(pv_chunks(7)):
        c()
        if t > 0:
            o_write(t - 1)
    o_write(3)
    stamp(10)
    Z = blk_reg(4)
    A("s_mov_b64 exec, 1")
    A(f"ds_add_u32 v{vZ}, v{vT+1} offset:{L_CNTO}")
    A("s_mov_b64 exec, -1")
    A.label("L_owait")
    A(f"ds_read_b32 v{vT}, v{vZ} offset:{L_CNTO}")
    for w in range(4):
        A(f"ds_read_b128 {v4(Z+4*w)}, v{vOR} offset:{L_O+4352*w}")
    A("s_waitcnt lgkmcnt(0)")
    A(f"v_readfirstlane_b32 s{sT0}, v{vT}")
    A(f"s_cmp_eq_u32 s{sT0}, 4")
    A("s_cbranch_scc1 L_oready")
    A(f"s_sub_u32 s{sTO}, s{sTO}, 1")
    A(f"s_cmp_lg_u32 s{sTO}, 0")
    A("s_cbranch_scc1 L_owait")
    A("s_branch L_end")
    A.label("L_oready")
    for c in range(4):
        A(f"v_mul_f32 v{Z+c}, v{Z+c}, v{vF+c}")
    for w in range(1, 4):
        for c in range(4):
            A(f"v_fmac_f32 v{Z+c}, v{Z+4*w+c}, v{vF+4*w+c}")
    for c in range(4):
        tag10(Z + c)
    A(f"buffer_store_dwordx4 {v4(Z)}, v{vOV}, {srd(rWS)}, s{sT3} offen sc1")
    if opt.get("pubwait", False):
        A("s_waitcnt vmcnt(0)")
    lds_inc(L_CNTP)
    stamp(11)
    A("s_branch L_end")

    A.label("L_helper")
    A.vm = []
    vTAG = vM
    Z = 16
    ACC = 48
    vA1, vA2, vA3 = vOK, vH, 15
    vWa = 64
    vWb = 192
    vGA, vLW, vLR, vX0, vC4, vGE, vLE = 56, 57, 58, 59, 60, 61, 62
    sRID = sLDSB
    mk_srd(rX, 16, 2048)
    mk_srd(rOUT, 34, 2048)

    def rowsplit_loads(dst, rs, sbase, row_off, rng, d, token, ntw):
        for i in rng:
            off = row_off(i)
            A(f"s_add_u32 s{sT0}, s{sbase}, {off & ~4095}")
            throttle(d)
            A(f"buffer_load_dwordx4 {v4(dst+4*i)}, v{vA2}, {srd(rs)}, s{sT0} offen offset:{off & 4095}{ntw}",
              token or f"r{i//2}")

    def perm_to(dst, src, nrows):
        for p in range(nrows // 2):
            A.wait_vm(f"r{p}")
            for t in range(4):
                a = src + (2 * p) * 4 + t
                b = src + (2 * p + 1) * 4 + t
                A(f"v_perm_b32 v{dst+(2*p)*4+t}, v{b}, v{a}, s{sPLO}")
                A(f"v_perm_b32 v{dst+(2*p+1)*4+t}, v{b}, v{a}, s{sPHI}")

    def zero_acc():
        for c in range(8):
            A(f"v_mov_b32 v{ACC+c}, 0")

    sMK = 18
    efast = opt.get("efast", 64)

    def gemv_publish(wp, npairs, xsrc, emode=False):
        for p in range(npairs):
            xr, ln = xsrc(p)
            for c in range(8):
                w = wp + (2 * p + (c & 1)) * 4 + (c >> 1)
                A(f"v_dot2c_f32_bf16_dpp v{ACC+c}, v{xr}, v{w} row_newbcast:{ln} {DPPALL}")
        for c in range(4):
            A(f"v_permlane32_swap_b32 v{ACC+c}, v{ACC+c+4}")
        for c in range(4):
            A(f"v_add_f32 v{ACC+c}, v{ACC+c}, v{ACC+c+4}")
        for c in range(4):
            tag10(ACC + c)
        if emode == "none":
            return
        if emode:
            A(f"s_mov_b64 exec, s[{sMK}:{sMK+1}]")
            store_loc(ACC, vA3, sPUB)
        else:
            A(f"buffer_store_dwordx4 {v4(ACC)}, v{vA3}, {srd(rWS)}, s{sPUB} offen sc1")
        if emode:
            A("s_mov_b64 exec, -1")

    sLOC = 26

    def read_loc():
        lds_wait(L_FLAGS, 8)
        A(f"ds_read_b32 v{vT}, v{vZ} offset:{L_LOC}")
        A("s_waitcnt lgkmcnt(0)")
        A(f"v_readfirstlane_b32 s{sLOC}, v{vT}")

    def store_loc(data, va, sreg):
        l1, l2 = A.newlabel("sl"), A.newlabel("sl")
        A(f"s_cmp_eq_u32 s{sLOC}, 0")
        A(f"s_cbranch_scc1 {l1}")
        sv = list(A.vm)
        A(f"buffer_store_dwordx4 {v4(data)}, v{va}, {srd(rWS)}, s{sreg} offen")
        A(f"s_branch {l2}")
        A.label(l1)
        A.vm = sv
        A(f"buffer_store_dwordx4 {v4(data)}, v{va}, {srd(rWS)}, s{sreg} offen sc1")
        A.label(l2)

    def pack_pairs(src, dst):
        A(f"v_mov_b32_dpp v{dst}, v{src} quad_perm:[1,0,3,2] {DPPALL}")
        A(f"v_cvt_pk_bf16_f32 v{dst}, v{src}, v{dst}")

    def red4_to_lds(waddr, ldsoff):
        A(f"v_permlane32_swap_b32 v{Z}, v{Z+2}")
        A(f"v_permlane32_swap_b32 v{Z+1}, v{Z+3}")
        A(f"v_add_f32 v{Z}, v{Z}, v{Z+2}")
        A(f"v_add_f32 v{Z+1}, v{Z+1}, v{Z+3}")
        A(f"v_permlane16_swap_b32 v{Z}, v{Z+1}")
        A(f"v_add_f32 v{Z}, v{Z}, v{Z+1}")
        row_red("v_add_f32", Z, (8,))
        A(f"ds_write_b32 v{waddr}, v{Z} offset:{L_GP+ldsoff}")
        A("s_waitcnt lgkmcnt(0)")
        A("s_barrier")

    def read4_from_lds(addr):
        for k in range(2):
            A(f"ds_read2_b32 {v2(Z+2*k)}, v{addr} offset0:{64*k} offset1:{64*k+32}")
        A("s_waitcnt lgkmcnt(0)")
        A(f"v_add_f32 v{Z}, v{Z}, v{Z+1}")
        A(f"v_add_f32 v{Z+2}, v{Z+2}, v{Z+3}")

    def common_addr():
        A(f"v_and_b32 v{vA3}, 31, v{vL}")
        A(f"v_lshlrev_b32 v{vC4}, 2, v{vA3}")
        A(f"v_lshlrev_b32 v{vA3}, 5, v{vA3}")
        A(f"v_lshrrev_b32 v{vT}, 5, v{vL}")
        A(f"v_lshl_add_u32 v{vA3}, v{vT}, 4, v{vA3}")
        A(f"v_lshrrev_b32 v{vA1}, 3, v{vL}")
        A(f"v_lshlrev_b32 v{vA1}, 12, v{vA1}")
        A(f"v_and_b32 v{vT+1}, 7, v{vL}")
        A(f"v_lshl_add_u32 v{vA1}, v{vT+1}, 4, v{vA1}")
        A(f"v_lshlrev_b32 v{vLW}, 4, v{vT+1}")
        A(f"v_lshl_add_u32 v{vLW}, v{vGq}, 2, v{vLW}")
        A(f"s_lshl_b32 s{sT0}, s{sHW}, 7")
        A(f"v_add_u32 v{vLW}, s{sT0}, v{vLW}")

    def pretouch(items):
        if not opt.get("pretouch", False):
            return
        lds_wait(L_PRGV, 8)
        A("s_mov_b32 exec_lo, 1")
        A("s_mov_b32 exec_hi, 1")
        for k, (va, rs, so) in enumerate(items):
            if isinstance(so, tuple):
                A(f"s_add_u32 s{sT0}, s{so[0]}, {so[1]}")
            else:
                A(f"s_mov_b32 s{sT0}, {hex(so)}")
            A(f"buffer_load_dword v{Z+k}, v{va}, {srd(rs)}, s{sT0} offen")
        A("s_mov_b64 exec, -1")
        A("s_waitcnt vmcnt(0)")

    WS_PT = [(vZ, rWS, 0x1f0000 - 0x1000 + 0x100000), (vZ, rWS, 0x3f8000), (vZ, rWS, 0x20000)]

    def watch(va, base, name):
        A("s_mov_b64 exec, 0xff")
        A(f"v_mov_b32 v{Z+8}, s{sT10}")
        A(f"s_mov_b32 s{sT1}, {hex(base)}")
        A.label(f"L_{name}")
        A(f"buffer_load_dwordx4 {v4(Z)}, v{va}, {srd(rWS)}, s{sT1} offen sc1")
        A("s_waitcnt vmcnt(0)")
        A(f"v_bitop3_b32 v{Z+4}, v{Z}, v{Z+1}, v{Z+8} bitop3:0x7e")
        A(f"v_and_b32 v{Z+4}, 0x3ff, v{Z+4}")
        A(f"v_cmp_ne_u32 s[{sP0}:{sP1}], 0, v{Z+4}")
        A(f"s_cmp_eq_u64 s[{sP0}:{sP1}], 0")
        A(f"s_cbranch_scc1 L_{name}d")
        A("s_sleep 2")
        A(f"s_sub_u32 s{sTO}, s{sTO}, 1")
        A(f"s_cmp_lg_u32 s{sTO}, 0")
        A(f"s_cbranch_scc1 L_{name}")
        A.label(f"L_{name}d")
        A("s_mov_b64 exec, -1")

    def hint_wait(delay):
        A(f"s_lshl_b32 s{sT1}, s{sX_}, 7")
        A(f"v_mov_b32 v{vT+4}, s{sT1}")
        poll(Z, vT + 4, [WS_HINT], sT16, 0xffff, Z + 8, sleep=opt.get("sleepH", 2))
        if delay:
            A(f"s_sleep {delay}")

    def service(name):
        A(f"s_cmp_lg_u32 s{sHW}, 0")
        A(f"s_cbranch_scc1 L_svc_{name}")
        X = Z
        lds_wait(L_PRGK, 8)
        A(f"s_lshl_b32 s{sT1}, s{sG}, 12")
        A(f"v_add_u32 v{vT+4}, s{sT1}, v{vOV}")
        poll(X, vT + 4, [WS_Q + i * 1024 for i in range(4)], sT16, 0xffff, X + 16, sleep=opt.get("sleepq", 8))
        A(f"v_lshrrev_b32 v{vT+1}, 5, v{vL}")
        A(f"v_mul_u32_u24 v{vT+1}, 272, v{vT+1}")
        A(f"v_and_b32 v{vT+2}, 31, v{vL}")
        A(f"v_lshl_add_u32 v{vT+1}, v{vT+2}, 3, v{vT+1}")
        for i in range(4):
            A(f"v_perm_b32 v{X+16+2*i}, v{X+4*i+1}, v{X+4*i}, s{sPHI}")
            A(f"v_perm_b32 v{X+16+2*i+1}, v{X+4*i+3}, v{X+4*i+2}, s{sPHI}")
            A(f"ds_write_b64 v{vT+1}, {v2(X+16+2*i)} offset:{L_Q+i*2*272}")
        lds_setflag(L_FLAGQ)
        stamp(2)
        lds_wait(L_CNTS, 4, 4)
        Y = Z
        A(f"v_and_b32 v{vT}, 7, v{vL}")
        A(f"v_lshlrev_b32 v{vT}, 3, v{vT}")
        A(f"v_lshrrev_b32 v{vT+1}, 3, v{vL}")
        A(f"v_lshl_add_u32 v{vT}, v{vT+1}, 7, v{vT}")
        for g in range(2):
            A(f"ds_read_b64 {v2(Y+2*g)}, v{vT} offset:{L_SP+64*g}")
        A("s_waitcnt lgkmcnt(0)")
        MM, LL, TT = vT + 2, vT + 3, Y + 6
        A(f"v_max_f32 v{MM}, v{Y}, v{Y+2}")
        row_red("v_max_f32", MM, (8,))
        xrow_red("v_max_f32", MM, TT)
        for g in range(2):
            A(f"v_sub_f32 v{Y+2*g}, v{Y+2*g}, v{MM}")
            A(f"v_mul_f32 v{Y+2*g}, s{sLOG2E}, v{Y+2*g}")
            A(f"v_exp_f32 v{Y+2*g}, v{Y+2*g}")
        A(f"v_mul_f32 v{LL}, v{Y}, v{Y+1}")
        A(f"v_fmac_f32 v{LL}, v{Y+2}, v{Y+3}")
        row_red("v_add_f32", LL, (8,))
        xrow_red("v_add_f32", LL, TT)
        A(f"v_or_b32 v{MM}, s{sT10}, v{MM}")
        tag10(LL)
        A(f"s_getreg_b32 s{sT1}, hwreg(HW_REG_XCC_ID, 0, 4)")
        A(f"s_lshl_b32 s{sT1}, s{sT1}, 16")
        A(f"s_or_b32 s23, s{sT1}, s{sT10}")
        A("s_mov_b64 exec, 0xff00")
        A(f"v_mov_b32 v{MM}, s23")
        A(f"v_mov_b32 v{LL}, s23")
        A("s_mov_b64 exec, -1")
        A(f"v_lshlrev_b32 v{vT}, 3, v{vL}")
        sfull = opt.get("sfull", True)
        A(f"s_lshl_b32 s{sT0}, s{sJ}, {7 if sfull else 6}")
        A(f"s_add_u32 s{sT0}, s{sT0}, {WS_S}")
        A(f"s_mov_b64 exec, {'0xffff' if sfull else '0xff'}")
        A(f"buffer_store_dwordx2 {v2(MM)}, v{vT}, {srd(rWS)}, s{sT0} offen sc1")
        A("s_mov_b64 exec, -1")
        if opt.get("rank"):
            A(f"v_lshlrev_b32 v{vT}, 8, v{vL}")
            A(f"s_and_b32 s{sT0}, s{sJ}, 3")
            A(f"s_lshl_b32 s{sT0}, s{sT0}, 6")
            A(f"s_add_u32 s{sT0}, s{sT0}, {WS_S}")
            A(f"buffer_load_dwordx2 {v2(Z)}, v{vT}, {srd(rWS)}, s{sT0} offen sc1")
            A("s_waitcnt vmcnt(0)")
            A(f"v_bitop3_b32 v{Z}, v{Z}, v{Z+1}, v{vTAG} bitop3:0x7e")
            A(f"v_and_b32 v{Z}, 0x3ff, v{Z}")
            A(f"v_cmp_eq_u32 s[{sP0}:{sP1}], 0, v{Z}")
            A(f"s_bcnt1_i32_b64 s{sT1}, s[{sP0}:{sP1}]")
            A(f"s_mov_b32 s{sT2}, 1")
            for q, t in enumerate(opt["rank"]):
                A(f"s_cmp_ge_u32 s{sT1}, {t}")
                A(f"s_cselect_b32 s{sT2}, {q+2}, s{sT2}")
            A(f"v_mov_b32 v{Z}, s{sT2}")
            A(f"ds_write_b32 v{vZ}, v{Z} offset:{L_LVL}")
            if stamps:
                A(f"s_add_u32 s{sSTAMP+8}, s{sSTAMP}, s{sT1}")
        lds_wait(L_PRGV, 8)
        Dd = Z
        TP = Z + 16
        if sfull:
            A(f"v_lshrrev_b32 v{vT+4}, 2, v{vL}")
            A(f"v_lshlrev_b32 v{vT+4}, 7, v{vT+4}")
            A(f"v_and_b32 v{vT+5}, 3, v{vL}")
            A(f"v_lshl_add_u32 v{vT+4}, v{vT+5}, 4, v{vT+4}")
            A(f"s_lshl_b32 s{sT1}, s{sG}, 13")
            A(f"v_add_u32 v{vT+4}, s{sT1}, v{vT+4}")
        A(f"v_and_b32 v{vT+5}, 31, v{vL}")
        A(f"v_lshlrev_b32 v{vT+5}, 7, v{vT+5}")
        A(f"s_lshl_b32 s{sT1}, s{sX_}, 12")
        A(f"v_add_u32 v{vT+5}, s{sT1}, v{vT+5}")
        TP = 236
        poll(Dd, [vT + 4] * 4 + [vT + 5], [WS_S + i * 2048 for i in range(4)] + [WS_S + 64], sT10, 0x3ff, TP,
             sleep=opt.get("sleeps", 8))
        A(f"v_cmp_ne_u32 s[{sP0}:{sP1}], s23, v{Dd+16}")
        A(f"s_cmp_eq_u64 s[{sP0}:{sP1}], 0")
        A(f"s_cselect_b32 s{sT1}, {1 if efast else 0}, 0")
        A(f"v_mov_b32 v{Dd+16}, s{sT1}")
        A(f"ds_write_b32 v{vZ}, v{Dd+16} offset:{L_LOC}")
        for i in range(16):
            A(f"v_and_b32 v{Dd+i}, s{sM10}, v{Dd+i}")
        Yy = TP
        Tt = TP + 4
        M0, M1, L0, L1 = Yy, Yy + 2, Yy + 1, Yy + 3
        for (Mx, o) in ((M0, 0), (M1, 2)):
            A(f"v_max_f32 v{Mx}, v{Dd+o}, v{Dd+4+o}")
            A(f"v_max3_f32 v{Mx}, v{Mx}, v{Dd+8+o}, v{Dd+12+o}")
        for Mx in (M0, M1):
            row_red("v_max_f32", Mx, (8, 4))
            xrow_red("v_max_f32", Mx, Tt)
        for (Mx, Lx, o) in ((M0, L0, 0), (M1, L1, 2)):
            for i in range(4):
                r = Dd + 4 * i + o
                A(f"v_sub_f32 v{r}, v{r}, v{Mx}")
                A(f"v_mul_f32 v{r}, s{sLOG2E}, v{r}")
                A(f"v_exp_f32 v{r}, v{r}")
            A(f"v_mul_f32 v{Lx}, v{Dd+o}, v{Dd+o+1}")
            for i in range(1, 4):
                A(f"v_fmac_f32 v{Lx}, v{Dd+4*i+o}, v{Dd+4*i+o+1}")
        for Lx in (L0, L1):
            row_red("v_add_f32", Lx, (8, 4))
            xrow_red("v_add_f32", Lx, Tt)
            A(f"v_rcp_f32 v{Lx}, v{Lx}")
        A(f"v_and_b32 v{vT}, 3, v{vL}")
        A(f"v_lshlrev_b32 v{vT}, 4, v{vT}")
        A(f"ds_write_b128 v{vT}, {v4(Yy)} offset:{L_SG}")
        A(f"v_and_b32 v{vT}, 7, v{vL}")
        A(f"v_lshlrev_b32 v{vT}, 3, v{vT}")
        A(f"v_bfe_u32 v{vT+2}, v{vL}, 3, 2")
        A(f"v_lshl_add_u32 v{vT+2}, v{vT+2}, 8, v{vT}")
        A(f"ds_read_b64 {v2(Dd)}, v{vT} offset:{L_SG}")
        A(f"ds_read_b32 v{Dd+2}, v{vT+2} offset:{L_SP}")
        A(f"v_and_b32 v{vT+3}, 31, v{vL}")
        A(f"v_lshlrev_b32 v{vT+3}, 2, v{vT+3}")
        A("s_waitcnt lgkmcnt(0)")
        A(f"v_sub_f32 v{Dd+2}, v{Dd+2}, v{Dd}")
        A(f"v_mul_f32 v{Dd+2}, s{sLOG2E}, v{Dd+2}")
        A(f"v_exp_f32 v{Dd+2}, v{Dd+2}")
        A(f"v_mul_f32 v{Dd+2}, v{Dd+2}, v{Dd+1}")
        A(f"ds_write_b32 v{vT+3}, v{Dd+2} offset:{L_F}")
        lds_setflag(L_FLAGS)
        stamp(7)
        A.label(f"L_svc_{name}")
        A.vm = []

    A(f"s_cmp_ge_u32 s{sA}, 16")
    A("s_cbranch_scc1 L_roleM")

    mk_srd(rW2, 24, 0 if opt.get("now") else 0x800000)
    mk_srd(rW3, 32, 0 if opt.get("now") else 3584 * 1024 * 2)
    common_addr()
    A(f"v_lshrrev_b32 v{vA2}, 5, v{vL}")
    A(f"v_lshlrev_b32 v{vA2}, 20, v{vA2}")
    A(f"v_lshl_add_u32 v{vA2}, v{vC4}, 2, v{vA2}")
    A(f"s_lshl_b32 s{sKB}, s{sG}, 21")
    A(f"s_and_b32 s{sT2}, s{sRI}, 31")
    A(f"s_lshl_b32 s{sT2}, s{sT2}, 13")
    A(f"s_add_u32 s{sKB}, s{sKB}, s{sT2}")
    A(f"s_lshl_b32 s{sT2}, s{sHW}, 9")
    A(f"s_add_u32 s{sKB}, s{sKB}, s{sT2}")
    wo_off = lambda i: (i >> 2) * 128 * 2048 + (i & 3) * 2048
    wo1 = opt.get("wo1", 16)
    rowsplit_loads(vWb, rW2, sKB, wo_off, range(min(4, wo1)), 0, None, nto)
    A("s_barrier")
    rowsplit_loads(vWb, rW2, sKB, wo_off, range(min(4, wo1), wo1), opt.get("DE", 0), None, nto)
    A("s_waitcnt lgkmcnt(0)")
    tags()
    A(f"s_lshl_b32 s{sPUB}, s{sX_}, 4")
    A(f"s_add_u32 s{sPUB}, s{sPUB}, s{sA}")
    A(f"s_lshl_b32 s{sPUB}, s{sPUB}, 12")
    A(f"s_lshl_b32 s{sT1}, s{sHW}, 10")
    A(f"s_add_u32 s{sPUB}, s{sPUB}, s{sT1}")
    A(f"s_add_u32 s{sPUB}, s{sPUB}, {WS_B}")
    A(f"s_lshl_b32 s{sT1}, s{sG}, 18")
    A(f"s_lshl_b32 s{sT2}, s{sHW}, 16")
    A(f"s_add_u32 s{sT1}, s{sT1}, s{sT2}")
    A(f"s_and_b32 s{sT2}, s{sRI}, 31")
    A(f"s_lshl_b32 s{sT2}, s{sT2}, 7")
    A(f"s_add_u32 s{sT1}, s{sT1}, s{sT2}")
    A(f"v_add_u32 v{vGA}, s{sT1}, v{vA1}")
    A(f"v_and_b32 v{vLR}, 3, v{vN}")
    A(f"v_lshlrev_b32 v{vLR}, 3, v{vLR}")
    A(f"v_lshrrev_b32 v{vT}, 5, v{vL}")
    A(f"v_lshl_add_u32 v{vLR}, v{vT}, 2, v{vLR}")
    A(f"v_lshrrev_b32 v{vT+1}, 2, v{vN}")
    A(f"v_add_u32 v{vLR}, v{vLR}, v{vT+1}")
    A(f"v_lshlrev_b32 v{vLR}, 2, v{vLR}")
    A(f"v_add_u32 v{vLR}, {L_GP}, v{vLR}")
    A(f"v_lshl_add_u32 v{vLE}, v{vT}, 4, v{vN}")
    A(f"v_lshlrev_b32 v{vLE}, 2, v{vLE}")
    A(f"v_add_u32 v{vLE}, {L_GP+1024}, v{vLE}")
    sDI = 16
    A(f"s_mul_i32 s{sDI}, s{sX_}, 14")
    A(f"s_add_u32 s{sDI}, s{sDI}, s{sA}")
    A(f"v_lshrrev_b32 v{vGE}, 3, v{vL}")
    A(f"v_mul_u32_u24 v{vGE}, 3584, v{vGE}")
    A(f"v_and_b32 v{vT+1}, 7, v{vL}")
    A(f"v_lshl_add_u32 v{vGE}, v{vT+1}, 4, v{vGE}")
    A(f"s_and_b32 s{sT0}, s{sHW}, 1")
    A(f"s_mul_i32 s{sT0}, s{sT0}, {8*3584}")
    A(f"s_lshr_b32 s{sT1}, s{sHW}, 1")
    A(f"s_mul_i32 s{sT1}, s{sT1}, 1792")
    A(f"s_add_u32 s{sT0}, s{sT0}, s{sT1}")
    A(f"s_mul_i32 s{sT1}, s{sX_}, {16*3584}")
    A(f"s_add_u32 s{sT0}, s{sT0}, s{sT1}")
    A(f"s_lshl_b32 s{sT1}, s{sA}, 7")
    A(f"s_add_u32 s{sT0}, s{sT0}, s{sT1}")
    A(f"v_add_u32 v{vGE}, s{sT0}, v{vGE}")
    vGB, vHP, vOA, vLB, vGL, vL2 = 44, 45, 46, 47, 43, 63
    sHB = 20
    A(f"v_lshlrev_b32 v{vGL}, 12, v{vGq}")
    A(f"v_lshl_add_u32 v{vGL}, v{vN}, 4, v{vGL}")
    A(f"s_lshl_b32 s{sT0}, s{sX_}, 16")
    A(f"s_lshl_b32 s{sT1}, s{sHW}, 14")
    A(f"s_add_u32 s{sT0}, s{sT0}, s{sT1}")
    A(f"s_lshl_b32 s{sT1}, s{sA}, 8")
    A(f"s_add_u32 s{sT0}, s{sT0}, s{sT1}")
    A(f"v_add_u32 v{vGL}, s{sT0}, v{vGL}")
    A(f"v_lshlrev_b32 v{vL2}, 4, v{vN}")
    A(f"v_lshl_add_u32 v{vL2}, v{vGq}, 2, v{vL2}")
    A(f"s_lshl_b32 s{sT0}, s{sHW}, 8")
    A(f"v_add_u32 v{vL2}, s{sT0}, v{vL2}")
    A(f"v_lshrrev_b32 v{vT}, 5, v{vL}")
    A(f"v_lshlrev_b32 v{vHP}, 15, v{vT}")
    A(f"v_lshl_add_u32 v{vHP}, v{vN}, 4, v{vHP}")
    A(f"s_lshl_b32 s{sHB}, s{sHW}, 16")
    A(f"s_lshl_b32 s{sT1}, s{sA}, 11")
    A(f"s_add_u32 s{sHB}, s{sHB}, s{sT1}")
    A(f"s_lshl_b32 s{sT1}, s{sX_}, 8")
    A(f"s_add_u32 s{sHB}, s{sHB}, s{sT1}")
    A(f"s_add_u32 s{sHB}, s{sHB}, {WS_B2}")
    zero_acc()
    assert wo1 == 16
    pt = opt.get("pt", "")
    vWd = vWa + 64
    vGH, vLN = 41, 42
    perm_to(vWa, vWb, 16)
    A(f"v_lshrrev_b32 v{vA2}, 5, v{vL}")
    A(f"v_lshlrev_b32 v{vA2}, 15, v{vA2}")
    A(f"v_lshl_add_u32 v{vA2}, v{vC4}, 2, v{vA2}")
    A(f"s_lshl_b32 s{sKB}, s{sDI}, 16")
    A(f"s_lshl_b32 s{sT2}, s{sHW}, 9")
    A(f"s_add_u32 s{sKB}, s{sKB}, s{sT2}")
    A(f"s_lshl_b32 s{sT1}, s{sX_}, 12")
    A(f"s_lshl_b32 s{sT2}, s{sHW}, 10")
    A(f"s_add_u32 s{sT2}, s{sT1}, s{sT2}")
    A(f"v_add_u32 v{vGH}, s{sT2}, v{vOV}")
    A(f"s_lshl_b32 s{sT0}, s{sHW}, 3")
    A(f"v_mov_b32 v{vLN}, s{sT0}")
    A(f"s_cmp_lt_u32 s{sA}, 14")
    A(f"s_cselect_b32 s{rW3+2}, s{rW3+2}, 0")
    A.vm = []
    service("W")
    read_loc()
    stamp(6)
    a2 = 0
    d0 = opt.get("d0", 6)
    lds_wait(L_FLAGW, 4, opt.get("wcnt", 4))
    rowsplit_loads(vWb, rW3, sKB, lambda i: i * 2048, range(d0), opt.get("DL0", 0), None, ntd)
    if efast:
        for i, (va, base) in enumerate(((vGL, WS_B + FAST_B),)):
            A(f"s_mov_b32 s{sT0}, {hex(base)}")
            A(f"buffer_load_dwordx4 {v4(vWd+48+4*i)}, v{va}, {srd(rWS)}, s{sT0} offen sc1")
    for p in range(d0 // 2):
        A.wait_vm(f"r{p}")
        for t in range(4):
            a_ = vWb + (2 * p) * 4 + t
            b_ = vWb + (2 * p + 1) * 4 + t
            A(f"v_perm_b32 v{vWd+(2*p)*4+t}, v{b_}, v{a_}, s{sPLO}")
            A(f"v_perm_b32 v{vWd+(2*p+1)*4+t}, v{b_}, v{a_}, s{sPHI}")
    assert d0 <= 8
    aw = "p"
    lds_wait(L_CNTP, 2, 4)
    if opt.get("a1", True):
        A(f"s_mov_b64 exec, {hex(opt.get('a1m', 0xff))}")
        A(f"v_mov_b32 v{Z+8}, s{sT10}")
        A.label("L_a1")
        A(f"s_mov_b32 s{sT0}, {hex(WS_A + opt.get('a1off', 0))}")
        A(f"buffer_load_dwordx4 {v4(Z)}, v{vGA}, {srd(rWS)}, s{sT0} offen sc1")
        A("s_waitcnt vmcnt(0)")
        A(f"v_bitop3_b32 v{Z+4}, v{Z}, v{Z+1}, v{Z+8} bitop3:0x7e")
        A(f"v_and_b32 v{Z+4}, 0x3ff, v{Z+4}")
        A(f"v_cmp_ne_u32 s[{sP0}:{sP1}], 0, v{Z+4}")
        A(f"s_cmp_eq_u64 s[{sP0}:{sP1}], 0")
        A("s_cbranch_scc1 L_a1d")
        A("s_sleep 4")
        A(f"s_sub_u32 s{sTO}, s{sTO}, 1")
        A(f"s_cmp_lg_u32 s{sTO}, 0")
        A("s_cbranch_scc1 L_a1")
        A.label("L_a1d")
        A("s_mov_b64 exec, -1")
    if aw == "f":
        lds_wait(L_CNTP, 1, 4)
    poll(Z, vGA, [WS_A, WS_A + 32768], sT10, 0x3ff, Z + 8, sleep=opt.get("sleepA", 0), back=opt.get("backA"),
         entry="L_a2_entry" if (a2 and wo1 < 16) else None)
    for i in range(8):
        A(f"v_and_b32 v{Z+i}, s{sM10}, v{Z+i}")
    for c in range(4):
        A(f"v_add_f32 v{Z+c}, v{Z+c}, v{Z+4+c}")
    red4_to_lds(vLW, 0)
    stamp(12)
    read4_from_lds(vLR)
    A(f"v_add_f32 v{Z}, v{Z}, v{Z+2}")
    pack_pairs(Z, Z + 4)
    gemv_publish(vWa, 8, lambda p: (Z + 4, 2 * p), "none")

    store_loc(ACC, vA3, sPUB)
    stamp(3)
    poll(Z, vGL, [WS_B], sT10, 0x3ff, Z + 8)
    for i in range(4):
        A(f"v_and_b32 v{Z+i}, s{sM10}, v{Z+i}")
    A(f"v_permlane32_swap_b32 v{Z}, v{Z+2}")
    A(f"v_permlane32_swap_b32 v{Z+1}, v{Z+3}")
    A(f"v_pk_add_f32 {v2(Z)}, {v2(Z)}, {v2(Z+2)}")
    A(f"v_permlane16_swap_b32 v{Z}, v{Z+1}")
    A(f"v_add_f32 v{Z}, v{Z}, v{Z+1}")
    A(f"ds_write_b32 v{vL2}, v{Z} offset:{L_O}")
    A(f"v_lshlrev_b32 v{vT+2}, 4, v{vN}")
    A.vm = []
    dmid = (d0 + 16) // 2 if opt.get("dpre", False) else d0
    dend = 16 if opt.get("dpre", False) else d0
    rowsplit_loads(vWb, rW3, sKB, lambda i: i * 2048, range(d0, dmid), 0, None, ntd)
    A("s_waitcnt lgkmcnt(0)")
    A("s_barrier")
    for w in range(4):
        A(f"ds_read_b128 {v4(Z+4*w)}, v{vT+2} offset:{L_O+256*w}")
    rowsplit_loads(vWb, rW3, sKB, lambda i: i * 2048, range(dmid, dend), 0, None, ntd)
    A("s_waitcnt lgkmcnt(0)")
    for (d_, s_) in ((0, 4), (8, 12), (0, 8)):
        for c in range(0, 4, 2):
            A(f"v_pk_add_f32 {v2(Z+d_+c)}, {v2(Z+d_+c)}, {v2(Z+s_+c)}")
    for c in range(4):
        tag10(Z + c)
    A("s_mov_b32 exec_lo, 0xffff")
    A("s_mov_b32 exec_hi, 0xffff")
    A(f"buffer_store_dwordx4 {v4(Z)}, v{vHP}, {srd(rWS)}, s{sHB} offen sc1")
    A("s_mov_b64 exec, -1")
    stamp(13)
    rowsplit_loads(vWb, rW3, sKB, lambda i: i * 2048, range(dend, 16), opt.get("DLD", 0), None, ntd)
    if efast:
        for i, (va, base) in enumerate(((vGH, WS_H + FAST_H), (vGE, WS_EF), (vGE, WS_C + WS_EF - WS_E))):
            A(f"s_mov_b32 s{sT0}, {hex(base)}")
            A(f"buffer_load_dwordx4 {v4(vWa+48+4*i)}, v{va}, {srd(rWS)}, s{sT0} offen sc1")
    A(f"s_add_u32 s{sPUB}, s{sPUB}, {WS_D - WS_B}")
    A(f"s_cmp_ge_u32 s{sA}, 14")
    A("s_cbranch_scc1 L_final0")
    for p in range(d0 // 2, 8):
        A.wait_vm(f"r{p}")
        for t in range(4):
            a_ = vWb + (2 * p) * 4 + t
            b_ = vWb + (2 * p + 1) * 4 + t
            A(f"v_perm_b32 v{vWd+(2*p)*4+t}, v{b_}, v{a_}, s{sPLO}")
            A(f"v_perm_b32 v{vWd+(2*p+1)*4+t}, v{b_}, v{a_}, s{sPHI}")
    zero_acc()
    stamp(9)
    H_ = vWa
    poll(H_, vGH, [WS_H], sT16, 0xffff, H_ + 8)
    A(f"v_mov_b32 v{Z+12}, s{sT10}")
    A(f"s_mov_b32 s{sT3}, 1")
    for i, so in enumerate([WS_E, WS_C]):
        A(f"s_mov_b32 s{sT0}, {hex(so + ((WS_EF - WS_E) if efast else 0))}")
        A(f"buffer_load_dwordx4 {v4(Z+4*i)}, v{vGE}, {srd(rWS)}, s{sT0} offen sc1")
    for i in range(4):
        A(f"v_and_b32 v{H_+i}, s{sM16}, v{H_+i}")
    A(f"v_readfirstlane_b32 s{sT1}, v{H_}")
    S1, S2, TT = H_ + 8, H_ + 9, H_ + 10
    for i in range(4):
        A(f"v_subrev_f32 v{H_+i}, s{sT1}, v{H_+i}")
    A(f"v_add_f32 v{S1}, v{H_}, v{H_+1}")
    A(f"v_mul_f32 v{S2}, v{H_}, v{H_}")
    A(f"v_add_f32 v{TT}, v{H_+2}, v{H_+3}")
    A(f"v_fmac_f32 v{S2}, v{H_+1}, v{H_+1}")
    A(f"v_add_f32 v{S1}, v{S1}, v{TT}")
    A(f"v_fmac_f32 v{S2}, v{H_+2}, v{H_+2}")
    A(f"v_fmac_f32 v{S2}, v{H_+3}, v{H_+3}")
    A(f"v_permlane32_swap_b32 v{S1}, v{S2}")
    A(f"v_add_f32 v{S1}, v{S1}, v{S2}")
    row_red("v_add_f32", S1, (8, 4, 2, 1))
    A(f"v_mov_b32 v{TT}, v{S1}")
    A(f"v_permlane16_swap_b32 v{TT}, v{S1}")
    A(f"v_add_f32 v{S1}, v{S1}, v{TT}")
    A(f"v_mov_b32 v{S2}, v{S1}")
    A(f"v_permlane32_swap_b32 v{S1}, v{S2}")
    A(f"v_mul_f32 v{TT}, 0x3b800000, v{S1}")
    A(f"v_fma_f32 v{S2}, -v{TT}, v{S1}, v{S2}")
    A(f"v_add_f32 v{S1}, s{sT1}, v{TT}")
    A(f"ds_write_b64 v{vLN}, {v2(S1)} offset:{L_LN}")
    stamp(4)
    A("s_branch L_eentry")
    poll(Z, vGE, [WS_E, WS_C], sT10, 0x3ff, Z + 8, alt=(WS_EF - WS_E, efast) if efast else None, entry="L_eentry")
    for i in range(8):
        A(f"v_and_b32 v{Z+i}, s{sM10}, v{Z+i}")
    for R in (Z, Z + 4):
        A(f"v_permlane32_swap_b32 v{R}, v{R+2}")
        A(f"v_permlane32_swap_b32 v{R+1}, v{R+3}")
    for R in (Z, Z + 4):
        A(f"v_pk_add_f32 {v2(R)}, {v2(R)}, {v2(R+2)}")
    for R in (Z, Z + 4):
        A(f"v_permlane16_swap_b32 v{R}, v{R+1}")
    for R in (Z, Z + 4):
        A(f"v_add_f32 v{R}, v{R}, v{R+1}")
    for R in (Z, Z + 4):
        A(f"v_add_f32_dpp v{R}, v{R}, v{R} row_ror:8 {DPPALL}")
    A(f"ds_write_b32 v{vLW}, v{Z} offset:{L_GP+1024}")
    A(f"ds_write_b32 v{vLW}, v{Z+4} offset:{L_GP+1536}")
    A("s_waitcnt lgkmcnt(0)")
    A("s_barrier")
    stamp(10)
    A(f"ds_read_b128 {v4(H_+12)}, v{vZ} offset:{L_LN}")
    A(f"ds_read_b128 {v4(H_+16)}, v{vZ} offset:{L_LN+16}")
    for k in range(2):
        A(f"ds_read2_b32 {v2(Z+2*k)}, v{vLE} offset0:{64*k} offset1:{64*k+32}")
        A(f"ds_read2_b32 {v2(Z+4+2*k)}, v{vLE} offset0:{128+64*k} offset1:{128+64*k+32}")
    A("s_waitcnt lgkmcnt(4)")
    MEAN, VAR = H_ + 8, H_ + 9
    A(f"v_pk_add_f32 {v2(MEAN)}, {v2(H_+12)}, {v2(H_+14)}")
    A(f"v_pk_add_f32 {v2(H_+10)}, {v2(H_+16)}, {v2(H_+18)}")
    A(f"v_pk_add_f32 {v2(MEAN)}, {v2(MEAN)}, {v2(H_+10)}")
    A(f"v_mul_f32 v{MEAN}, 0x3e800000, v{MEAN}")
    A(f"v_mul_f32 v{VAR}, 0x3b800000, v{VAR}")
    for k in range(4):
        A(f"v_sub_f32 v{H_+12+2*k}, v{H_+12+2*k}, v{MEAN}")
    for k in range(4):
        A(f"v_fmac_f32 v{VAR}, v{H_+12+2*k}, v{H_+12+2*k}")
    A(f"v_mul_f32 v{VAR}, 0x3e800000, v{VAR}")
    MB, RS = H_ + 22, H_ + 23
    ln_finish(MEAN, VAR, MB, RS)
    A("s_waitcnt lgkmcnt(0)")
    Gv, Uv = Z, Z + 2
    for k in range(4):
        A(f"v_add_f32 v{Z+2*k}, v{Z+2*k}, v{Z+2*k+1}")
    A(f"v_fma_f32 v{Gv}, -v{MB}, v{Z+4}, v{Gv}")
    A(f"v_fma_f32 v{Uv}, -v{MB}, v{Z+6}, v{Uv}")
    A(f"v_mul_f32 v{Gv}, v{Gv}, v{RS}")
    A(f"v_mul_f32 v{Uv}, v{Uv}, v{RS}")
    rbf(Gv, Gv)
    rbf(Uv, Uv)
    T1, T2 = Z + 1, Z + 3
    A(f"v_mul_f32 v{T1}, v{Gv}, v{Gv}")
    A(f"v_mul_f32 v{T1}, v{T1}, v{Gv}")
    A(f"v_mov_b32 v{T2}, v{Gv}")
    A(f"v_fmac_f32 v{T2}, 0x3d372713, v{T1}")
    A(f"v_mul_f32 v{T2}, 0xc0135761, v{T2}")
    A(f"v_exp_f32 v{T2}, v{T2}")
    A(f"v_add_f32 v{T2}, 1.0, v{T2}")
    A(f"v_rcp_f32 v{T2}, v{T2}")
    A(f"v_mul_f32 v{Gv}, v{Gv}, v{T2}")
    rbf(Gv, Gv)
    A(f"v_mul_f32 v{Gv}, v{Gv}, v{Uv}")
    pack_pairs(Gv, Z + 4)
    gemv_publish(vWd, 8, lambda p: (Z + 4, 2 * p))
    stamp(14)
    A.label("L_final0")
    A("s_branch L_end")

    A.label("L_roleM")
    A.vm = []
    A("s_setprio 3")
    A(f"s_lshl_b32 s{sT0}, s{sG}, 5")
    A(f"s_add_u32 s{sRI}, s{sRI}, s{sT0}")
    mk_srd(rW1, 22, 0 if opt.get("noq") else 0x800000)
    XR = vWa + 64
    A(f"v_lshlrev_b32 v{vT}, 5, v{vL}")
    A(f"buffer_load_dwordx4 {v4(XR)}, v{vT}, {srd(rX)}, 0 offen", "x")
    A(f"buffer_load_dwordx4 {v4(XR+4)}, v{vT}, {srd(rX)}, 0 offen offset:16", "x")
    A(f"v_lshrrev_b32 v{vT+1}, 2, v{vL}")
    A(f"v_lshlrev_b32 v{vT+1}, 4, v{vT+1}")
    A(f"s_lshl_b32 s{sT0}, s{sHW}, 8")
    A(f"v_add_u32 v{vT+1}, s{sT0}, v{vT+1}")
    A(f"v_lshlrev_b32 v{vT+2}, 1, v{vT+1}")
    stq = 8 if opt.get("stagq", True) else 0
    A(f"s_and_b32 s{sT2}, s{sRI}, 1")
    A(f"s_mul_i32 s{sT3}, s{sT2}, {2*stq}")
    A(f"s_sub_u32 s{sT0}, 16, s{sT3}")
    A(f"buffer_load_dwordx4 {v4(XR+8)}, v{vT+2}, {srd(rX)}, s{sT3} offen", "x")
    A(f"buffer_load_dwordx4 {v4(XR+12)}, v{vT+2}, {srd(rX)}, s{sT0} offen", "x")
    A(f"v_lshlrev_b32 v{vT+2}, 13, v{vT+1}")
    A(f"v_and_b32 v{vT+3}, 3, v{vL}")
    A(f"v_lshl_add_u32 v{vT+2}, v{vT+3}, 4, v{vT+2}")
    A(f"s_lshl_b32 s{sT1}, s{sRI}, 6")
    A(f"s_mul_i32 s{sT2}, s{sT2}, {stq*8192}")
    A(f"s_sub_u32 s{sT3}, s{sT1}, s{sT2}")
    A(f"s_add_u32 s{sT1}, s{sT1}, s{sT2}")
    for i in range(16):
        A(f"s_add_u32 s{sT0}, s{sT3 if (i & 8) else sT1}, {i*8192}")
        A(f"buffer_load_dwordx4 {v4(vWa+4*i)}, v{vT+2}, {srd(rW1)}, s{sT0} offen{ntq}", f"wq{i//2}")
    if opt.get("qbar_early", True):
        A("s_barrier")
    A.wait_vm("x")
    F = XR + 16
    for i in range(8):
        unpack(F + 2 * i, F + 2 * i + 1, XR + i)
    MB, RD = XR + 32, XR + 33
    ln_stats([F + i for i in range(16)], XR + 34, XR + 35, XR + 36, MB, RD)
    XP = XR + 40
    for p in range(8):
        unpack(XR + 38, XR + 39, XR + 8 + p)
        ln_apply_pair(XP + p, XR + 38, XR + 39, MB, RD)
    for p in range(8):
        A.wait_vm(f"wq{p}")
        for t in range(4):
            a = vWa + (2 * p) * 4 + t
            b = vWa + (2 * p + 1) * 4 + t
            A(f"v_perm_b32 v{Z+8+2*t}, v{b}, v{a}, s{sPLO}")
            A(f"v_perm_b32 v{Z+8+2*t+1}, v{b}, v{a}, s{sPHI}")
        for c in range(8):
            src = "0" if p == 0 else f"v{Z+c}"
            A(f"v_dot2_f32_bf16 v{Z+c}, v{Z+8+c}, v{XP+p}, {src}")
    red8_rows(Z)
    for r in (8, 4):
        for c in range(2):
            A(f"v_add_f32_dpp v{Z+c}, v{Z+c}, v{Z+c} row_ror:{r} {DPPALL}")
    A(f"v_and_b32 v{vT+3}, 3, v{vL}")
    A(f"v_lshlrev_b32 v{vT+3}, 5, v{vT+3}")
    A(f"v_lshl_add_u32 v{vT+3}, v{vGq}, 3, v{vT+3}")
    A(f"s_lshl_b32 s{sT0}, s{sHW}, 7")
    A(f"v_add_u32 v{vT+3}, s{sT0}, v{vT+3}")
    A(f"ds_write_b64 v{vT+3}, {v2(Z)} offset:{L_QPART}")
    A("s_waitcnt lgkmcnt(0)")
    if not opt.get("qbar_early", True):
        A("s_barrier")
    tags()
    lds_arrive(L_CNTQ, sT0)
    A(f"s_cmp_lg_u32 s{sT0}, 3")
    A("s_cbranch_scc1 L_qpub_done")
    A("s_mov_b64 exec, 0xff")
    for w in range(4):
        A(f"ds_read_b128 {v4(Z+4*w)}, v{vOV} offset:{L_QPART+128*w}")
    A("s_waitcnt lgkmcnt(0)")
    for st in (2, 1):
        for w in range(st):
            for c in range(4):
                A(f"v_add_f32 v{Z+4*w+c}, v{Z+4*w+c}, v{Z+4*(w+st)+c}")
    for c in range(4):
        rbf(Z + c, Z + c)
        A(f"v_or_b32 v{Z+c}, s{sT16}, v{Z+c}")
    A(f"s_lshl_b32 s{sT0}, s{sRI}, 7")
    A(f"s_add_u32 s{sT0}, s{sT0}, {WS_Q}")
    A(f"buffer_store_dwordx4 {v4(Z)}, v{vOV}, {srd(rWS)}, s{sT0} offen sc1")
    A("s_mov_b64 exec, -1")
    A.label("L_qpub_done")
    A.vm = []
    stamp(1)
    A("s_setprio 0")
    A(f"s_mul_i32 s{sRI}, s{sX_}, 14")
    A(f"s_add_u32 s{sRI}, s{sRI}, s{sA}")
    A(f"s_sub_u32 s{sRI}, s{sRI}, 16")
    A(f"s_cmp_lt_u32 s{sHW}, 2")
    A(f"s_cselect_b32 s{rW1}, s28, s30")
    A(f"s_cselect_b32 s{rW1+1}, s29, s31")
    A(f"s_and_b32 s{rW1+1}, s{rW1+1}, 0xffff")
    A(f"s_mov_b32 s{rW1+2}, {hex(0 if opt.get('now') else 1024*3584*2)}")
    A(f"s_mov_b32 s{rW1+3}, 0x20000")
    common_addr()
    sKC, sCG = 16, 17
    A(f"s_sub_u32 s{sKC}, s{sA}, 16")
    A(f"v_lshrrev_b32 v{vA2}, 5, v{vL}")
    A(f"v_mul_u32_u24 v{vA2}, {32*7168}, v{vA2}")
    A(f"v_lshl_add_u32 v{vA2}, v{vC4}, 2, v{vA2}")
    A(f"s_mul_i32 s{sKB}, s{sKC}, {64*7168}")
    A(f"s_mul_i32 s{sT2}, s{sX_}, 896")
    A(f"s_add_u32 s{sKB}, s{sKB}, s{sT2}")
    A(f"s_and_b32 s{sT3}, s{sHW}, 1")
    A(f"s_lshl_b32 s{sT2}, s{sT3}, 9")
    A(f"s_add_u32 s{sKB}, s{sKB}, s{sT2}")
    A(f"s_cmp_eq_u32 s{sT3}, 0")
    A(f"s_cselect_b32 s{sMK}, -1, 0x00ffffff")
    A(f"s_mov_b32 s{sMK+1}, s{sMK}")
    gu1 = opt.get("gu1", 0)

    gst = {"done": 0}
    CS, vONE = 200, 208
    for c in range(8):
        A(f"v_mov_b32 v{CS+c}, 0")
    A(f"v_mov_b32 v{vONE}, 0x3f803f80")

    def gu_perm(p):
        for t in range(4):
            a = vWa + 8 + (2 * p) * 4 + t
            b = vWa + 8 + (2 * p + 1) * 4 + t
            A(f"v_perm_b32 v{vWa+(2*p)*4+t}, v{b}, v{a}, s{sPLO}")
            A(f"v_perm_b32 v{vWa+(2*p+1)*4+t}, v{b}, v{a}, s{sPHI}")
        for c in range(8):
            w = vWa + (2 * p + (c & 1)) * 4 + (c >> 1)
            A(f"v_dot2c_f32_bf16 v{CS+c}, v{vONE}, v{w}")
        gst["done"] = p + 1

    def gu_loads(rng, d):
        for i in rng:
            A(f"s_add_u32 s{sT0}, s{sKB}, {i*7168}")
            throttle(d)
            A(f"s_mov_b64 exec, s[{sMK}:{sMK+1}]")
            A(f"buffer_load_dwordx4 {v4(vWa+8+4*i)}, v{vA2}, {srd(rW1)}, s{sT0} offen{ntg}", f"gu{i//2}")
            A("s_mov_b64 exec, -1")
            p = gst["done"]
            if 2 * p + 1 < i and f"gu{p}" not in A.vm:
                gu_perm(p)

    def gu_finish(n):
        while gst["done"] < n // 2:
            A.wait_vm(f"gu{gst['done']}")
            gu_perm(gst["done"])

    gu_loads(range(gu1), opt.get("DG1", 2))
    gu_finish(gu1)
    A(f"s_lshl_b32 s{sPUB}, s{sX_}, 4")
    A(f"s_add_u32 s{sPUB}, s{sPUB}, s{sKC}")
    A(f"s_mul_i32 s{sPUB}, s{sPUB}, 3584")
    A(f"s_lshr_b32 s{sT1}, s{sHW}, 1")
    A(f"s_mul_i32 s{sT1}, s{sT1}, 1792")
    A(f"s_add_u32 s{sPUB}, s{sPUB}, s{sT1}")
    A(f"s_lshl_b32 s{sT1}, s{sT3}, 10")
    A(f"s_add_u32 s{sPUB}, s{sPUB}, s{sT1}")
    A(f"s_add_u32 s{sPUB}, s{sPUB}, {WS_E}")
    A(f"v_and_b32 v{vGE}, 7, v{vL}")
    A(f"v_lshlrev_b32 v{vGE}, 4, v{vGE}")
    A(f"v_lshrrev_b32 v{vT}, 5, v{vL}")
    A(f"v_lshl_add_u32 v{vGE}, v{vT}, 7, v{vGE}")
    A(f"v_bfe_u32 v{vT+1}, v{vL}, 3, 2")
    A(f"v_lshl_add_u32 v{vGA}, v{vT+1}, 8, v{vGE}")
    A(f"s_lshl_b32 s{sT1}, s{sX_}, 15")
    A(f"s_lshl_b32 s{sT2}, s{sKC}, 11")
    A(f"s_add_u32 s{sT1}, s{sT1}, s{sT2}")
    A(f"v_add_u32 v{vGA}, s{sT1}, v{vGA}")
    XH = 212
    A(f"v_lshrrev_b32 v{vT+2}, 1, v{vGE}")
    A(f"s_lshl_b32 s{sT0}, s{sKC}, 7")
    A(f"buffer_load_dwordx2 {v2(XH+4)}, v{vT+2}, {srd(rX)}, s{sT0} offen")
    A(f"s_lshl_b32 s{sCG}, s{sX_}, 12")
    A(f"s_lshl_b32 s{sT2}, s{sKC}, 8")
    A(f"s_add_u32 s{sCG}, s{sCG}, s{sT2}")
    A(f"s_add_u32 s{sCG}, s{sCG}, {WS_H}")
    A(f"s_lshl_b32 s{sT0}, s{sKC}, 1")
    A(f"s_sub_u32 s{sT0}, s{sX_}, s{sT0}")
    A(f"s_and_b32 s22, s{sT0}, 7")
    A(f"s_lshl_b32 s{sRID}, s{sKC}, 1")
    A(f"s_add_u32 s{sRID}, s{sRID}, s22")
    A(f"s_and_b32 s{sRID}, s{sRID}, 31")
    A(f"s_lshl_b32 s{sT0}, s{sHW}, 17")
    A(f"s_lshl_b32 s{sT1}, s{sRID}, 7")
    A(f"s_add_u32 s{sT0}, s{sT0}, s{sT1}")
    A(f"v_add_u32 v{vGB}, s{sT0}, v{vA1}")
    A(f"v_and_b32 v{vLB}, 7, v{vL}")
    A(f"v_lshlrev_b32 v{vOA}, 3, v{vLB}")
    A(f"v_lshlrev_b32 v{vLB}, 4, v{vLB}")
    A("s_waitcnt vmcnt(0)")
    unpack(XH, XH + 1, XH + 4)
    unpack(XH + 2, XH + 3, XH + 5)
    zero_acc()
    service("M")
    read_loc()
    pretouch(WS_PT + [(vA2, rW1, (sKB, i * 7168)) for i in (0, 8, 16, 24, 31)])
    ga = opt.get("gu_after", "o")
    if ga == "flag":
        lds_wait(L_FLAGW, 4, opt.get("wcnt", 4))
    elif ga == "o":
        lds_wait(L_CNTO, 4, 4)
    else:
        lds_wait(L_CNTP, 4, 4)
    gu2 = gu1
    if ga == "g":
        gu2 = opt.get("gu2", gu1)
        gu_loads(range(gu1, gu2), opt.get("DLG", 12))
        A(f"s_cmp_lg_u32 s{sHW}, 0")
        A("s_cbranch_scc1 L_gwait")
        svm = list(A.vm)
        A(f"v_lshlrev_b32 v{vT+4}, 12, v{vL}")
        A(f"s_lshl_b32 s{sT1}, s{sG}, 18")
        A(f"s_lshl_b32 s{sT2}, s{sC}, 6")
        A(f"s_add_u32 s{sT1}, s{sT1}, s{sT2}")
        A(f"v_add_u32 v{vT+4}, s{sT1}, v{vT+4}")
        poll(Z, vT + 4, [WS_A], sT10, 0x3ff, Z + 8, sleep=opt.get("sleepG", 6))
        lds_setflag(L_FLAGG)
        A.label("L_gwait")
        A.vm = svm
        lds_wait(L_FLAGG, 2)
    stamp(3)
    if "d" in opt.get("pt", ""):
        A("s_cmp_ge_u32 s22, 2")
        A("s_cbranch_scc1 L_nopt")
        svm = list(A.vm)
        for i in range(4):
            A(f"s_mov_b32 s{sT0}, {hex(WS_D + i * 32768)}")
            A(f"buffer_load_dwordx4 {v4(220+4*i)}, v{vGB}, {srd(rWS)}, s{sT0} offen sc1")
        A.label("L_nopt")
        A.vm = svm
    gu_loads(range(gu2, 32), opt.get("DLG", 12))
    stamp(4)
    A(f"s_add_u32 s{sKB}, s{sPUB}, {WS_EF - WS_E}")
    A(f"s_add_u32 s20, s{sPUB}, {WS_C - WS_E}")
    A(f"s_add_u32 s21, s{sKB}, {WS_C - WS_E}")

    def cs_final():
        for c in range(4):
            A(f"v_permlane32_swap_b32 v{CS+c}, v{CS+c+4}")
        for c in range(0, 4, 2):
            A(f"v_pk_add_f32 {v2(CS+c)}, {v2(CS+c)}, {v2(CS+c+4)}")
        for c in range(4):
            tag10(CS + c)

    bpipe = opt.get("bpipe", True)
    if bpipe:
        A(f"v_mov_b32 v{Z+12}, s{sT10}")
        for i, so in enumerate([WS_B2, WS_B2 + 1024]):
            A(f"s_mov_b32 s{sT0}, {hex(so)}")
            A(f"buffer_load_dwordx4 {v4(Z+4*i)}, v{vGA}, {srd(rWS)}, s{sT0} offen sc1")
    gu_finish(32)
    cs_final()
    if opt.get("csafe", False):
        A(f"s_mov_b64 exec, s[{sMK}:{sMK+1}]")
        A(f"buffer_store_dwordx4 {v4(CS)}, v{vA3}, {srd(rWS)}, s20 offen sc1")
        A("s_mov_b64 exec, -1")
        A("s_waitcnt vmcnt(1)")
        A("s_branch L_bentry2")
    stamp(6)
    if bpipe:
        A("s_branch L_bentry")
    poll(Z, vGA, [WS_B2, WS_B2 + 1024], sT10, 0x3ff, Z + 8, entry="L_bentry" if bpipe else None)
    if not opt.get("csafe", False):
        A(f"s_mov_b64 exec, s[{sMK}:{sMK+1}]")
        store_loc(CS, vA3, 20)
        A("s_mov_b64 exec, -1")
    stamp(13)
    for i in range(8):
        A(f"v_and_b32 v{Z+i}, s{sM10}, v{Z+i}")
    for c in range(0, 4, 2):
        A(f"v_pk_add_f32 {v2(Z+c)}, {v2(Z+c)}, {v2(Z+4+c)}")
    for c in range(4):
        A(f"v_add_f32_dpp v{Z+c}, v{Z+c}, v{Z+c} row_ror:8 {DPPALL}")
    for c in range(4):
        A(f"v_mov_b32 v{Z+4+c}, v{Z+c}")
    for c in range(4):
        A(f"v_permlane16_swap_b32 v{Z+4+c}, v{Z+c}")
    for c in range(0, 4, 2):
        A(f"v_pk_add_f32 {v2(Z+c)}, {v2(Z+c)}, {v2(Z+4+c)}")
    A(f"v_cvt_pk_bf16_f32 v{Z+4}, v{Z}, v{Z+1}")
    A(f"v_cvt_pk_bf16_f32 v{Z+5}, v{Z+2}, v{Z+3}")
    unpack(Z, Z + 1, Z + 4)
    unpack(Z + 2, Z + 3, Z + 5)
    for c in range(0, 4, 2):
        A(f"v_pk_add_f32 {v2(Z+c)}, {v2(Z+c)}, {v2(XH+c)}")
    A(f"v_cvt_pk_bf16_f32 v{Z+12}, v{Z}, v{Z+1}")
    A(f"v_cvt_pk_bf16_f32 v{Z+13}, v{Z+2}, v{Z+3}")
    A(f"s_cmp_lg_u32 s{sHW}, 3")
    A("s_cbranch_scc1 L_hrep")
    A(f"v_mov_b32 v{Z+8}, s{sT16}")
    for k in range(2):
        A(f"v_lshl_or_b32 v{Z+2*k}, v{Z+12+k}, 16, v{Z+8}")
        A(f"v_and_or_b32 v{Z+2*k+1}, v{Z+12+k}, s{sM16}, v{Z+8}")
    A("s_mov_b32 exec_lo, 0xff")
    A("s_mov_b32 exec_hi, 0xff")
    store_loc(Z, vGE, sCG)
    A("s_mov_b64 exec, -1")
    A.label("L_hrep")
    gemv_publish(vWa, 16, lambda p: (Z + 12 + (p & 1), p >> 1), True)
    stamp(12)
    A("s_cmp_ge_u32 s22, 2")
    A("s_cbranch_scc1 L_end")
    HH = XH
    unpack(HH, HH + 1, Z + 12)
    unpack(HH + 2, HH + 3, Z + 13)
    A("s_cmp_eq_u32 s22, 0")
    A("s_cselect_b32 s24, 0xff, 0")
    A("s_cselect_b32 s25, 0, 0xff")
    if opt.get("dback", False):
        A("s_waitcnt vmcnt(0)")
    poll(Z, vGB, [WS_D + i * 32768 for i in range(4)], sT10, 0x3ff, Z + 16, {1: 0xffff, 3: 0xffff})
    for i in range(16):
        A(f"v_and_b32 v{Z+i}, s{sM10}, v{Z+i}")
    for (d_, s_) in ((0, 4), (8, 12), (0, 8)):
        for c in range(0, 4, 2):
            A(f"v_pk_add_f32 {v2(Z+d_+c)}, {v2(Z+d_+c)}, {v2(Z+s_+c)}")
    red4_to_lds(vLW, 1536)
    A(f"s_cmp_lg_u32 s{sHW}, 0")
    A("s_cbranch_scc1 L_end")
    for w in range(4):
        A(f"ds_read_b128 {v4(Z+4*w)}, v{vLB} offset:{L_GP+1536+128*w}")
    A(f"s_lshl_b32 s{sT0}, s{sRID}, 6")
    A("s_waitcnt lgkmcnt(0)")
    for (d_, s_) in ((0, 4), (8, 12), (0, 8)):
        for c in range(0, 4, 2):
            A(f"v_pk_add_f32 {v2(Z+d_+c)}, {v2(Z+d_+c)}, {v2(Z+s_+c)}")
    A(f"v_cvt_pk_bf16_f32 v{Z+4}, v{Z}, v{Z+1}")
    A(f"v_cvt_pk_bf16_f32 v{Z+5}, v{Z+2}, v{Z+3}")
    unpack(Z, Z + 1, Z + 4)
    unpack(Z + 2, Z + 3, Z + 5)
    for c in range(0, 4, 2):
        A(f"v_pk_add_f32 {v2(Z+c)}, {v2(Z+c)}, {v2(HH+c)}")
    A(f"v_cvt_pk_bf16_f32 v{Z+4}, v{Z}, v{Z+1}")
    A(f"v_cvt_pk_bf16_f32 v{Z+5}, v{Z+2}, v{Z+3}")
    A("s_mov_b64 exec, s[24:25]")
    A(f"buffer_store_dwordx2 {v2(Z+4)}, v{vOA}, {srd(rOUT)}, s{sT0} offen{pol('pout', '')}")
    A("s_mov_b64 exec, -1")
    stamp(15)
    A(f"s_cmp_lg_u32 s{sRID}, 0")
    A("s_cbranch_scc1 L_end")
    A(f"v_mov_b32 v{Z}, s{sE}")
    A("s_mov_b64 exec, 1")
    A(f"buffer_store_dword v{Z}, v{vZ}, {srd(rWS)}, 0 offen offset:{WS_EPOCH} sc1")
    A("s_mov_b64 exec, -1")

    A.label("L_end")
    if stamps:
        A("s_mov_b64 exec, 1")
        A(f"s_lshl_b32 s{sT0}, s2, 3")
        A(f"s_add_u32 s{sT0}, s{sT0}, s{sW}")
        A(f"s_lshl_b32 s{sT0}, s{sT0}, 6")
        A(f"s_add_u32 s{sT0}, s{sT0}, {WS_STAMP}")
        for q in range(4):
            for k in range(4):
                A(f"v_mov_b32 v{vT+k}, s{sSTAMP+4*q+k}")
            A(f"buffer_store_dwordx4 {v4(vT)}, v{vZ}, {srd(rWS)}, s{sT0} offen offset:{16*q}")
            A("s_nop 2")
    A.label("L_exit")
    A("s_endpgm")
    A.raw('.section .rodata,"a"')
    A.raw(".p2align 6")
    A.raw(f".amdhsa_kernel {NAME}_kernel")
    A.raw("  .amdhsa_next_free_vgpr 256")
    A.raw("  .amdhsa_next_free_sgpr 102")
    A.raw("  .amdhsa_accum_offset 256")
    A.raw("  .amdhsa_group_segment_fixed_size 0")
    A.raw("  .amdhsa_kernarg_size 96")
    A.raw("  .amdhsa_user_sgpr_count 2")
    A.raw("  .amdhsa_user_sgpr_kernarg_segment_ptr 1")
    A.raw("  .amdhsa_system_sgpr_workgroup_id_x 1")
    A.raw("  .amdhsa_float_denorm_mode_32 3")
    A.raw(".end_amdhsa_kernel")
    return A.text()


if __name__ == "__main__":
    import json
    opt = json.loads(sys.argv[2]) if len(sys.argv) > 2 else {}
    out = sys.argv[1] if len(sys.argv) > 1 else "k.s"
    open(out, "w").write(gen(opt))
```

```python
import sys
from asmlib import Asm

NAME = "sequential_preLN__gqa_block_cached__glu_gated_geglu__decode"

HEADER = """; Kernarg layout for this problem (96 bytes, ptrs only, base s[0:1]):
; Generated by a script of my own. One persistent launch, one 8-wave workgroup per CU (wg = 8a + x).
"""

STAMP_NAMES = ["start", "qpub", "qgath", "kiss", "qrdy", "qk", "wland", "s_glob", "viss", "prdy", "pv", "apub",
               "hopA", "h", "hopC", "end"]

WS_EPOCH = 0x0
WS_Q = 0x1000
WS_S = 0x8000
WS_H = 0x10000
WS_HINT = 0x20000
WS_A = 0x100000
WS_B = 0x200000
WS_D = 0x300000
WS_STAMP = 0x400000
WS_B2 = 0x380000
FAST_B = 0
FAST_H = 0
WS_E = 0x500000
WS_C = 0x580000
WS_EF = WS_E
WS_SIZE = 0x600000

L_CNTQ, L_FLAGQ, L_CNTS, L_FLAGS = 0, 4, 8, 12
L_FLAGW = 16
L_CNTO = 20
L_CNTB = 24
L_CNTP = 28
L_PRGK, L_PRGV, L_FLAGG = 32, 36, 40
L_LVL = 44
L_LOC = 52
L_CK = 48
L_Q = 0x200
L_SP = 0xC00
L_SG = 0x1400
L_F = 0x1480
L_LN = 0x1800
L_GP = 0x2000
L_QPART = 0x2C00
L_O = 0x3000
L_KV = 0x8000
NLDS = 3
LDS_BYTES = L_KV + 4 * NLDS * 8192

sW = 3
sX_, sA, sJ, sRI, sG, sC = 4, 5, 6, 7, 8, 9
sT16, sT10 = 10, 11
sPLO, sPHI = 12, 13
sM10, sM16 = 14, 15
rX, rK, rV, rW1, rW2, rW3, rOUT, rWS = 40, 44, 48, 52, 56, 60, 68, 72
sTO, sKB, sE, sLOG2E = 76, 77, 78, 79
sSTAMP = 80
sT0, sT1, sT2, sT3 = 96, 97, 98, 99
sP0, sP1 = 100, 101
sSCALE, sLDSB, sPUB, sHW = 64, 65, 66, 67

vL, vN, vGq, vOK, vOV, vM, vH, vZ = 0, 1, 2, 3, 4, 5, 6, 7
vT = 8
vQ = 16
vS = 32
vR = 96


def srd(r):
    return f"s[{r}:{r+3}]"


def v4(r):
    return f"v[{r}:{r+3}]"


def v2(r):
    return f"v[{r}:{r+1}]"


DPPALL = "row_mask:0xf bank_mask:0xf"


def gen(opt):
    A = Asm()
    stamps = opt.get("stamps", False)
    pol = lambda k, d: (" " + opt.get(k, d)).rstrip()
    ntq, nto, ntg, ntd = pol("pq", ""), pol("po", ""), pol("pg", "nt"), pol("pd", "nt")
    ntk, ntv = pol("pk", "nt"), pol("pv", "nt")
    D = opt.get("D", 5)
    DC = opt.get("DC", 7)
    DG = opt.get("DG", 1)

    def stamp(k):
        if not stamps:
            return
        A(f"s_memrealtime s[{sP0}:{sP1}]")
        A("s_waitcnt lgkmcnt(0)")
        A(f"s_mov_b32 s{sSTAMP+k}, s{sP0}")

    def mk_srd(r, ptr, size):
        A(f"s_mov_b32 s{r}, s{ptr}")
        A(f"s_and_b32 s{r+1}, s{ptr+1}, 0xffff")
        A(f"s_mov_b32 s{r+2}, {hex(size)}")
        A(f"s_mov_b32 s{r+3}, 0x20000")

    def rbf(dst, src):
        A(f"v_cvt_pk_bf16_f32 v{dst}, v{src}, v{src}")
        A(f"v_and_b32 v{dst}, s{sM16}, v{dst}")

    def row_red(op, x, rors):
        for r in rors:
            A(f"{op}_dpp v{x}, v{x}, v{x} row_ror:{r} {DPPALL}")

    def xrow_red(op, x, t):
        A(f"v_mov_b32 v{t}, v{x}")
        A(f"v_permlane16_swap_b32 v{t}, v{x}")
        A(f"{op} v{x}, v{x}, v{t}")
        A(f"v_mov_b32 v{t}, v{x}")
        A(f"v_permlane32_swap_b32 v{t}, v{x}")
        A(f"{op} v{x}, v{x}, v{t}")

    def wave_sum(x, t):
        row_red("v_add_f32", x, (8, 4, 2, 1))
        xrow_red("v_add_f32", x, t)

    def ln_finish(mean, var, out_mb, out_r):
        rbf(out_mb, mean)
        rbf(var, var)
        A(f"v_add_f32 v{var}, 0x3727c5ac, v{var}")
        rbf(var, var)
        A(f"v_sqrt_f32 v{var}, v{var}")
        rbf(var, var)
        A(f"v_rcp_f32 v{out_r}, v{var}")

    def ln_stats(vals, t0, t1, t2, out_mb, out_r):
        A(f"v_add_f32 v{t0}, v{vals[0]}, v{vals[1]}")
        A(f"v_add_f32 v{t1}, v{vals[2]}, v{vals[3]}")
        for i in range(4, 16, 2):
            A(f"v_add_f32 v{t0}, v{t0}, v{vals[i]}")
            A(f"v_add_f32 v{t1}, v{t1}, v{vals[i+1]}")
        A(f"v_add_f32 v{t0}, v{t0}, v{t1}")
        wave_sum(t0, t1)
        A(f"v_mul_f32 v{t0}, 0x3a800000, v{t0}")
        A(f"v_sub_f32 v{t1}, v{vals[0]}, v{t0}")
        A(f"v_mul_f32 v{t2}, v{t1}, v{t1}")
        for i in range(1, 16):
            A(f"v_sub_f32 v{t1}, v{vals[i]}, v{t0}")
            A(f"v_fmac_f32 v{t2}, v{t1}, v{t1}")
        wave_sum(t2, t1)
        A(f"v_mul_f32 v{t2}, 0x3a800000, v{t2}")
        ln_finish(t0, t2, out_mb, out_r)

    def ln_apply_pair(dst, a, b, mb, r):
        A(f"v_sub_f32 v{a}, v{a}, v{mb}")
        A(f"v_sub_f32 v{b}, v{b}, v{mb}")
        A(f"v_cvt_pk_bf16_f32 v{b}, v{a}, v{b}")
        A(f"v_lshlrev_b32 v{a}, 16, v{b}")
        A(f"v_and_b32 v{b}, s{sM16}, v{b}")
        A(f"v_mul_f32 v{a}, v{a}, v{r}")
        A(f"v_mul_f32 v{b}, v{b}, v{r}")
        A(f"v_cvt_pk_bf16_f32 v{dst}, v{a}, v{b}")

    def unpack(dlo, dhi, src):
        A(f"v_lshlrev_b32 v{dlo}, 16, v{src}")
        A(f"v_and_b32 v{dhi}, s{sM16}, v{src}")

    def perm_inplace(src, nrows, tmp):
        for p in range(nrows // 2):
            for t in range(4):
                a = src + (2 * p) * 4 + t
                b = src + (2 * p + 1) * 4 + t
                A(f"v_perm_b32 v{tmp+t}, v{b}, v{a}, s{sPHI}")
                A(f"v_perm_b32 v{a}, v{b}, v{a}, s{sPLO}")
            for t in range(4):
                A(f"v_mov_b32 v{src+(2*p+1)*4+t}, v{tmp+t}")

    def dots(acc, wp, xp, npairs):
        for p in range(npairs):
            for c in range(8):
                src = "0" if p == 0 else f"v{acc+c}"
                w = wp + (2 * p + (c & 1)) * 4 + (c >> 1)
                A(f"v_dot2_f32_bf16 v{acc+c}, v{w}, v{xp+p}, {src}")

    def red8_rows(acc):
        for c in range(4):
            A(f"v_permlane32_swap_b32 v{acc+c}, v{acc+c+4}")
        for c in range(4):
            A(f"v_add_f32 v{acc+c}, v{acc+c}, v{acc+c+4}")
        for c in range(2):
            A(f"v_permlane16_swap_b32 v{acc+c}, v{acc+c+2}")
        for c in range(2):
            A(f"v_add_f32 v{acc+c}, v{acc+c}, v{acc+c+2}")

    def tag10(r):
        A(f"v_add_u32 v{r}, 0x200, v{r}")
        A(f"v_and_or_b32 v{r}, v{r}, s{sM10}, v{vTAG}")

    def lds_wait(off, sl=2, atleast=1):
        lp = A.newlabel("ldsw")
        dn = A.newlabel("ldsd")
        A.label(lp)
        A(f"ds_read_b32 v{vT}, v{vZ} offset:{off}")
        A("s_waitcnt lgkmcnt(0)")
        A(f"v_readfirstlane_b32 s{sT0}, v{vT}")
        A(f"s_cmp_ge_u32 s{sT0}, {atleast}")
        A(f"s_cbranch_scc1 {dn}")
        A(f"s_sleep {sl}")
        A(f"s_sub_u32 s{sTO}, s{sTO}, 1")
        A(f"s_cmp_lg_u32 s{sTO}, 0")
        A(f"s_cbranch_scc1 {lp}")
        A("s_branch L_end")
        A.label(dn)

    def lds_arrive(off, dst_s):
        A(f"v_mov_b32 v{vT+1}, 1")
        A("s_mov_b64 exec, 1")
        A(f"ds_add_rtn_u32 v{vT}, v{vZ}, v{vT+1} offset:{off}")
        A("s_waitcnt lgkmcnt(0)")
        A(f"v_readfirstlane_b32 s{dst_s}, v{vT}")
        A("s_mov_b64 exec, -1")

    def lds_inc(off):
        A(f"v_mov_b32 v{vT+1}, 1")
        A("s_mov_b64 exec, 1")
        A(f"ds_add_u32 v{vZ}, v{vT+1} offset:{off}")
        A("s_mov_b64 exec, -1")

    def lds_setflag(off):
        A(f"v_mov_b32 v{vT+1}, 1")
        A(f"ds_write_b32 v{vZ}, v{vT+1} offset:{off}")

    def poll(dst, voff, soffs, tagreg, mask, t, execs=None, sleep=0, alt=None, back=None, entry=None, hook=None):
        n = len(soffs)
        execs = execs or {}
        period = alt[1] if (alt and hook) else None
        alt = None
        masked = opt.get("masked", True)
        lp = A.newlabel("poll")
        dn = A.newlabel("polld")
        A(f"v_mov_b32 v{t+2*n}, s{tagreg}")
        for i in execs:
            for c in range(4):
                A(f"v_mov_b32 v{dst+4*i+c}, s{tagreg}")
        if period:
            A(f"s_mov_b32 s{sT3}, 0")
        A(f"s_mov_b64 s[{sP0}:{sP1}], -1")
        A.label(lp)
        if period:
            hk = A.newlabel("phk")
            A(f"s_add_u32 s{sT3}, s{sT3}, 1")
            A(f"s_and_b32 s{sT2}, s{sT3}, {period-1}")
            A(f"s_cbranch_scc1 {hk}")
            hook()
            A.label(hk)
        if alt:
            A(f"s_add_u32 s{sT3}, s{sT3}, 1")
            A(f"s_and_b32 s{sT2}, s{sT3}, {alt[1]-1}")
            A(f"s_cselect_b32 s{sT2}, {hex(alt[0])}, 0")
            if hook:
                hk = A.newlabel("phk")
                A(f"s_cbranch_scc1 {hk}")
                hook()
                A.label(hk)
        if masked:
            A(f"s_mov_b64 exec, s[{sP0}:{sP1}]")
        for i in range(n):
            if alt:
                A(f"s_add_u32 s{sT0}, s{sT2}, {hex(soffs[i])}")
            else:
                A(f"s_mov_b32 s{sT0}, {hex(soffs[i])}")
            sk = None
            if i in execs:
                A(f"s_and_b32 exec_hi, exec_hi, {hex(execs[i])}")
                sk = A.newlabel("psk")
                A(f"s_cbranch_execz {sk}")
            vo = voff[i] if isinstance(voff, (list, tuple)) else voff
            A(f"buffer_load_dwordx4 {v4(dst+4*i)}, v{vo}, {srd(rWS)}, s{sT0} offen sc1")
            if i in execs:
                A.label(sk)
                A(f"s_mov_b64 exec, s[{sP0}:{sP1}]" if masked else "s_mov_b64 exec, -1")
        if entry:
            A.label(entry)
        A("s_waitcnt vmcnt(0)")
        if entry == "L_bentry" and opt.get("csafe", False):
            A.label("L_bentry2")
        for i in range(2 * n):
            A(f"v_bitop3_b32 v{t+i}, v{dst+2*i}, v{dst+2*i+1}, v{t+2*n} bitop3:0x7e")
        regs = [t + i for i in range(2 * n)]
        while len(regs) > 1:
            nxt = []
            k = 0
            while k < len(regs):
                grp = regs[k:k + 3]
                if len(grp) == 3:
                    A(f"v_or3_b32 v{grp[0]}, v{grp[0]}, v{grp[1]}, v{grp[2]}")
                elif len(grp) == 2:
                    A(f"v_or_b32 v{grp[0]}, v{grp[0]}, v{grp[1]}")
                nxt.append(grp[0])
                k += 3
            regs = nxt
        A(f"v_and_b32 v{t}, {hex(mask)}, v{t}")
        A(f"v_cmp_ne_u32 s[{sP0}:{sP1}], 0, v{t}")
        if masked:
            A("s_mov_b64 exec, -1")
        A(f"s_cmp_eq_u64 s[{sP0}:{sP1}], 0")
        A(f"s_cbranch_scc1 {dn}")
        if sleep:
            A(f"s_sleep {sleep}")
        if back:
            nb = A.newlabel("pnb")
            A(f"s_bcnt1_i32_b64 s{sT0}, s[{sP0}:{sP1}]")
            A(f"s_cmp_le_u32 s{sT0}, {back[0]}")
            A(f"s_cbranch_scc1 {nb}")
            A(f"s_sleep {back[1]}")
            A.label(nb)
        A(f"s_sub_u32 s{sTO}, s{sTO}, 1")
        A(f"s_cmp_lg_u32 s{sTO}, 0")
        A(f"s_cbranch_scc1 {lp}")
        A("s_branch L_end")
        A.label(dn)

    def throttle(d):
        if d and len(A.vm) >= d:
            A(f"s_waitcnt vmcnt({d-1})")

    LV0 = opt.get("LV", [5, 6, 8, 8])
    LV1 = opt.get("LV1", [5, 7, 8, 8])
    tcount = [0]
    sLVL, sCLS = 36, 37

    def throttle2(on):
        if not on:
            return
        if on < 0:
            throttle(-on)
            return
        tcount[0] += 1
        LV = LV1 if tcount[0] & 1 else LV0
        if len(A.vm) >= LV[-1]:
            A(f"s_waitcnt vmcnt({LV[-1]-1})")
        sv = list(A.vm)
        lab = None
        for lv in range(len(LV) - 2, -1, -1):
            if len(sv) >= LV[lv] and LV[lv] < LV[lv + 1]:
                lab = lab or A.newlabel("th")
                A(f"s_cmp_gt_u32 s{sLVL}, {lv}")
                A(f"s_cbranch_scc1 {lab}")
                A(f"s_waitcnt vmcnt({LV[lv]-1})")
        if lab:
            A.label(lab)
        A.vm = sv

    def tok(item):
        return f"{item[0]}{item[1]}"

    st = {}

    def blk_reg(b):
        return vR + (b - NLDS) * 32

    def issue(item, d):
        kind, b, i = item
        ps = {("k", 0, 0): 2, ("k", 0, 4): 7, ("k", 1, 0): 1, ("k", 2, 0): 12, ("k", 4, 0): 13, ("k", 6, 0): 14, ("v", 2, 0): 6, ("v", 4, 0): 15}
        if item in ps and opt.get("pstamps", False):
            stamp(ps[item])
        idx = (0 if kind == "k" else 64) + 8 * b + i
        if opt.get("rank") and idx > 64 and idx < 64 + opt.get("rank_end", 64) and d:
            if i % 4 == 0:
                A(f"ds_read_b32 v{vT+7}, v{vZ} offset:{L_LVL}")
                st["pend"] = True
            elif st.get("pend"):
                A("s_waitcnt lgkmcnt(0)")
                A(f"v_readfirstlane_b32 s{sT1}, v{vT+7}")
                A(f"s_sub_u32 s{sT1}, s{sT1}, 1")
                A(f"s_cselect_b32 s{sLVL}, s{sLVL}, s{sT1}")
                st["pend"] = False
        if opt.get("rank") and idx == 64 + opt.get("rank_end", 64):
            A(f"s_mov_b32 s{sLVL}, {opt.get('rank_base', 1)}")
        blk = (0 if kind == "k" else 8) + b
        if opt.get("bt") and i == 0 and blk in set(opt["bt"]) and blk > 0:
            A(f"s_cmp_eq_u32 s35, {blk}")
            A(f"s_cselect_b32 s{sLVL}, s{sCLS}, s{sLVL}")
        if kind == "k":
            off = (i >> 2) * 4096 + ((i >> 1) & 1) * 512 + (i & 1) * 128
            va, rs, nt = vOK, rK, ntk
        else:
            off = i * 1024
            va, rs, nt = vOV, rV, ntv
        if b < NLDS:
            A(f"s_add_u32 s{sT0}, s{sKB}, {hex((b<<21) + off)}")
            A(f"s_add_u32 m0, s{sLDSB}, {hex(b*8192 + i*1024)}")
            throttle2(d)
            A(f"buffer_load_dwordx4 v{va}, {srd(rs)}, s{sT0} offen{nt} lds", tok(item))
        else:
            A(f"s_add_u32 s{sT0}, s{sKB}, {hex((b<<21) + (off & ~4095))}")
            throttle2(d)
            A(f"buffer_load_dwordx4 {v4(blk_reg(b)+4*i)}, v{va}, {srd(rs)}, s{sT0} offen offset:{off & 4095}{nt}",
              tok(item))

    vTAG = vH

    def tags():
        A(f"s_add_u32 s{sE}, s{sE}, 1")
        A(f"s_and_b32 s{sT16}, s{sE}, 0xffff")
        A(f"s_and_b32 s{sT10}, s{sE}, 0x3ff")
        A(f"v_mov_b32 v{vTAG}, s{sT10}")

    A.raw(HEADER.rstrip("\n"))
    A.raw(f"; @launch grid=(256,1,1) block=(512,1,1) lds={LDS_BYTES}")
    A.raw('.amdgcn_target "amdgcn-amd-amdhsa--gfx950"')
    A.raw(".text")
    A.raw(f".globl {NAME}_kernel")
    A.raw(".p2align 8")
    A.raw(f".type {NAME}_kernel,@function")
    A.raw(f"{NAME}_kernel:")
    A("s_cmp_ge_u32 s2, 256")
    A("s_cbranch_scc1 L_exit")
    A("s_load_dwordx16 s[16:31], s[0:1], 0")
    A("s_load_dwordx8 s[32:39], s[0:1], 64")
    if stamps:
        A(f"s_memrealtime s[{sP0}:{sP1}]")
        for k in range(16):
            A(f"s_mov_b32 s{sSTAMP+k}, 0")
    A(f"v_lshrrev_b32 v{vT}, 6, v0")
    A(f"v_and_b32 v{vL}, 63, v0")
    A(f"v_readfirstlane_b32 s{sW}, v{vT}")
    A(f"v_mov_b32 v{vZ}, 0")
    A(f"v_and_b32 v{vN}, 15, v{vL}")
    A(f"v_lshrrev_b32 v{vGq}, 4, v{vL}")
    for i in range(4):
        A(f"v_mov_b32 v{vT+i}, 0")
    A(f"s_cmp_lg_u32 s{sW}, 0")
    A("s_cbranch_scc1 L_nozero")
    A(f"ds_write_b128 v{vZ}, {v4(vT)}")
    A(f"ds_write_b128 v{vZ}, {v4(vT)} offset:16")
    A(f"ds_write_b128 v{vZ}, {v4(vT)} offset:32")
    A(f"ds_write_b128 v{vZ}, {v4(vT)} offset:48")
    A.label("L_nozero")
    A(f"s_and_b32 s{sX_}, s2, 7")
    A(f"s_lshr_b32 s{sA}, s2, 3")
    sWL = 35
    gmap = opt.get("gmap", "x")
    if gmap == "a2":
        A(f"s_and_b32 s{sG}, s{sA}, 3")
        A(f"s_lshr_b32 s{sT0}, s{sA}, 2")
        A(f"s_lshl_b32 s{sC}, s{sT0}, 3")
        A(f"s_add_u32 s{sC}, s{sC}, s{sX_}")
        A(f"s_lshl_b32 s{sRI}, s{sX_}, 2")
        A(f"s_add_u32 s{sRI}, s{sRI}, s{sT0}")
    else:
        A(f"s_lshr_b32 s{sG}, s{sX_}, 1")
        A(f"s_and_b32 s{sC}, s{sX_}, 1")
        A(f"s_lshl_b32 s{sRI}, s{sC}, 4")
        A(f"s_and_b32 s{sT0}, s{sA}, 15")
        A(f"s_add_u32 s{sRI}, s{sRI}, s{sT0}")
        A(f"s_lshl_b32 s{sC}, s{sC}, 5")
        A(f"s_add_u32 s{sC}, s{sC}, s{sA}")
    A(f"s_lshl_b32 s{sJ}, s{sG}, 6")
    A(f"s_add_u32 s{sJ}, s{sJ}, s{sC}")
    A(f"s_and_b32 s{sHW}, s{sW}, 3")
    A(f"s_mov_b32 s{sPLO}, 0x05040100")
    A(f"s_mov_b32 s{sPHI}, 0x07060302")
    A(f"s_mov_b32 s{sM10}, 0xfffffc00")
    A(f"s_mov_b32 s{sM16}, 0xffff0000")
    A(f"s_mov_b32 s{sTO}, 200000")
    A(f"s_mov_b32 s{sLOG2E}, 0x3fb8aa3b")
    A(f"s_mov_b32 s{sSCALE}, 0x3db504f3")
    A(f"s_lshl_b32 s{sKB}, s{sG}, 24")
    A(f"s_lshl_b32 s{sT0}, s{sC}, 2")
    A(f"s_add_u32 s{sT0}, s{sT0}, s{sHW}")
    A(f"s_lshl_b32 s{sT0}, s{sT0}, 13")
    A(f"s_add_u32 s{sKB}, s{sKB}, s{sT0}")
    A(f"s_mul_i32 s{sLDSB}, s{sHW}, {NLDS*8192}")
    A(f"s_add_u32 s{sLDSB}, s{sLDSB}, {L_KV}")
    A(f"v_and_b32 v{vT+4}, 3, v{vN}")
    A(f"v_lshlrev_b32 v{vT+4}, 10, v{vT+4}")
    A(f"v_bfe_u32 v{vT+5}, v{vN}, 2, 1")
    A(f"v_lshl_add_u32 v{vT+4}, v{vT+5}, 8, v{vT+4}")
    A(f"v_lshrrev_b32 v{vT+5}, 3, v{vN}")
    A(f"v_lshl_add_u32 v{vT+4}, v{vT+5}, 6, v{vT+4}")
    A(f"v_lshl_add_u32 v{vOK}, v{vGq}, 4, v{vT+4}")
    A(f"v_lshlrev_b32 v{vOV}, 4, v{vL}")
    A("s_waitcnt lgkmcnt(0)")
    if stamps:
        A(f"s_mov_b32 s{sSTAMP}, s{sP0}")
    A(f"s_load_dword s{sE}, s[38:39], {WS_EPOCH}")
    mk_srd(rWS, 38, WS_SIZE)
    A(f"s_cmp_ge_u32 s{sW}, 4")
    A("s_cbranch_scc1 L_helper")

    mk_srd(rK, 18, 0x4000000)
    mk_srd(rV, 20, 0x4000000)
    k_items = [("k", b, i) for b in range(8) for i in range(8)]
    v_items = [("v", b, i) for b in range(8) for i in range(8)]
    lvO, lvQ, lvQs = opt.get("lv", [0, 1, 2])
    A(f"s_and_b32 s{sT0}, s{sRI}, 14")
    A(f"s_cmp_eq_u32 s{sT0}, 6")
    A(f"s_cselect_b32 s{sCLS}, {lvQs}, {lvQ}")
    A(f"s_cmp_ge_u32 s{sJ}, 254")
    A(f"s_cselect_b32 s{sCLS}, {lvQs}, s{sCLS}")
    A(f"s_cmp_lt_u32 s{sA}, 16")
    A(f"s_cselect_b32 s{sCLS}, {lvO}, s{sCLS}")
    A(f"s_mov_b32 s{sLVL}, s{sCLS}")
    sBST = 35
    bt = opt.get("bt")
    if bt:
        packed = sum((v & 15) << (4 * i) for i, v in enumerate(bt))
        A(f"s_getreg_b32 s{sT0}, hwreg(HW_REG_XCC_ID, 0, 3)")
        A(f"s_lshl_b32 s{sT0}, s{sT0}, 2")
        A(f"s_lshr_b32 s{sBST}, {hex(packed)}, s{sT0}")
        A(f"s_and_b32 s{sBST}, s{sBST}, 15")
        A(f"s_cselect_b32 s{sT0}, 1, 0")
        A(f"s_add_u32 s{sLVL}, s{sLVL}, s{sT0}")
    npre = opt.get("bpos", 4)
    nun = opt.get("nun", 0)
    for k, it in enumerate(k_items[:npre]):
        issue(it, 0 if k < nun else 1)
    A("s_barrier")
    A("s_waitcnt lgkmcnt(0)")
    tags()

    qpos = opt.get("qpos", 48)
    for k, it in enumerate(k_items):
        if k >= npre:
            issue(it, 1)
            if k + 1 == qpos:
                lds_inc(L_PRGK)
    stamp(3)
    lds_wait(L_FLAGQ)
    A(f"v_and_b32 v{vT}, 7, v{vN}")
    A(f"v_mul_u32_u24 v{vT}, 272, v{vT}")
    A(f"v_lshl_add_u32 v{vT}, v{vGq}, 4, v{vT}")
    A(f"v_lshrrev_b32 v{vT+1}, 3, v{vN}")
    A(f"v_lshl_add_u32 v{vT}, v{vT+1}, 6, v{vT}")
    for h in range(2):
        A(f"ds_read_b128 {v4(vQ+4*h)}, v{vT} offset:{L_Q+128*h}")
    A(f"v_add_u32 v{vM}, s{sLDSB}, v{vOV}")
    A("s_waitcnt lgkmcnt(0)")
    stamp(4)
    stream = list(v_items)

    def sprinkle(n=1):
        for _ in range(n):
            if stream:
                issue(stream.pop(0), 0)

    def score_round(a, b):
        A(f"v_cvt_pk_bf16_f32 v{b}, v{a}, v{b}")
        A(f"v_lshlrev_b32 v{a}, 16, v{b}")
        A(f"v_and_b32 v{b}, s{sM16}, v{b}")
        A(f"v_mul_f32 v{a}, s{sSCALE}, v{a}")
        A(f"v_mul_f32 v{b}, s{sSCALE}, v{b}")
        A(f"v_cvt_pk_bf16_f32 v{b}, v{a}, v{b}")
        A(f"v_lshlrev_b32 v{a}, 16, v{b}")
        A(f"v_and_b32 v{b}, s{sM16}, v{b}")

    def combine(t):
        d0, d1 = vS + 4 * t, vQ + 8 + 4 * (t & 1)
        for r in range(4):
            A(f"v_permlane32_swap_b32 v{d0+r}, v{d1+r}")
        for r in range(4):
            A(f"v_add_f32_dpp v{d0+r}, v{d1+r}, v{d0+r} row_ror:8 {DPPALL}")
        score_round(d0, d0 + 1)
        score_round(d0 + 2, d0 + 3)

    STG = vS + 32
    for b in range(8):
        A.wait_vm(f"k{b}")
        if b < NLDS:
            for i in range(8):
                A(f"ds_read_b128 {v4(STG+4*i)}, v{vM} offset:{b*8192+i*1024}")
            A("s_waitcnt lgkmcnt(0)")
            base = STG
        else:
            base = blk_reg(b)
        for tt in range(2):
            t = 2 * b + tt
            d0, d1 = vS + 4 * t, vQ + 8 + 4 * (t & 1)
            r = base + tt * 16
            A(f"v_mfma_f32_16x16x32_bf16 {v4(d0)}, {v4(r)}, {v4(vQ)}, 0")
            A(f"v_mfma_f32_16x16x32_bf16 {v4(d1)}, {v4(r+8)}, {v4(vQ)}, 0")
            A(f"v_mfma_f32_16x16x32_bf16 {v4(d0)}, {v4(r+4)}, {v4(vQ+4)}, {v4(d0)}")
            A(f"v_mfma_f32_16x16x32_bf16 {v4(d1)}, {v4(r+12)}, {v4(vQ+4)}, {v4(d1)}")
            if t > 0:
                combine(t - 1)
        sprinkle(opt.get("spr_qk", 2))
    combine(15)
    stamp(5)
    vLA = vQ
    A(f"v_mov_b32 v{vLA}, v{vM}")
    A(f"v_max_f32 v{vM}, v{vS}, v{vS+1}")
    for i in range(2, 64, 2):
        A(f"v_max3_f32 v{vM}, v{vM}, v{vS+i}, v{vS+i+1}")
    xrow_red("v_max_f32", vM, vT + 2)
    sprinkle()
    for i in range(64):
        A(f"v_sub_f32 v{vS+i}, v{vS+i}, v{vM}")
        A(f"v_mul_f32 v{vS+i}, s{sLOG2E}, v{vS+i}")
        A(f"v_exp_f32 v{vS+i}, v{vS+i}")
        if i % 16 == 15:
            sprinkle()
    A(f"v_add_f32 v{vT+2}, v{vS}, v{vS+1}")
    A(f"v_add_f32 v{vT+3}, v{vS+2}, v{vS+3}")
    for i in range(4, 64, 2):
        A(f"v_add_f32 v{vT+2}, v{vT+2}, v{vS+i}")
        A(f"v_add_f32 v{vT+3}, v{vT+3}, v{vS+i+1}")
    A(f"v_add_f32 v{vT+3}, v{vT+2}, v{vT+3}")
    A(f"v_mov_b32 v{vT+2}, v{vM}")
    sprinkle()
    A(f"v_lshlrev_b32 v{vT+4}, 3, v{vN}")
    A(f"v_lshl_add_u32 v{vT+4}, v{vGq}, 6, v{vT+4}")
    A(f"s_lshl_b32 s{sT0}, s{sW}, 8")
    A(f"v_add_u32 v{vT+4}, s{sT0}, v{vT+4}")
    A("s_mov_b32 exec_lo, 0x00ff00ff")
    A("s_mov_b32 exec_hi, 0x00ff00ff")
    A(f"ds_write_b64 v{vT+4}, {v2(vT+2)} offset:{L_SP}")
    A("s_mov_b64 exec, -1")
    lds_inc(L_CNTS)
    if "lvV" in opt:
        A(f"s_mov_b32 s{sLVL}, {opt['lvV']}")

    vP = vS
    vO = vS + 32
    for i in range(32):
        A(f"v_cvt_pk_bf16_f32 v{vP+i}, v{vS+2*i}, v{vS+2*i+1}")
    spos = opt.get("spos", 32)
    wpos = opt.get("wpos", 64)
    cnt = [64 - len(stream)]
    assert cnt[0] < spos
    work = []
    nxt = [0]

    def pv_chunks(b):
        R = blk_reg(7) if b < NLDS else blk_reg(b)
        ch = []
        if b < NLDS:
            def stage():
                for i in range(8):
                    A(f"ds_read_b128 {v4(R+4*i)}, v{vLA} offset:{b*8192+i*1024}")
            ch.append(stage)
        for t in range(4):
            def chunk(t=t):
                if b < NLDS and t == 0:
                    A("s_waitcnt lgkmcnt(0)")
                for u in range(4):
                    A(f"v_perm_b32 v{vQ+8+u}, v{R+(2*u+1)*4+t}, v{R+(2*u)*4+t}, s{sPLO}")
                for u in range(4):
                    A(f"v_perm_b32 v{vQ+12+u}, v{R+(2*u+1)*4+t}, v{R+(2*u)*4+t}, s{sPHI}")
                for hh in range(2):
                    m = 2 * t + hh
                    c = "0" if b == 0 else v4(vO + 4 * m)
                    A(f"v_mfma_f32_16x16x32_bf16 {v4(vO+4*m)}, {v4(vP+4*b)}, {v4(vQ+8+4*hh)}, {c}")
            ch.append(chunk)
        return ch

    while stream:
        if stream[0][1] == 7:
            assert nxt[0] >= NLDS
            while work and nxt[0] <= NLDS:
                work.pop(0)()
        issue(stream.pop(0), 1)
        cnt[0] += 1
        if cnt[0] == spos:
            lds_inc(L_PRGV)
        if cnt[0] == opt.get("lvpos", 0):
            A(f"s_max_u32 s{sLVL}, s{sLVL}, {opt.get('lvmin', 1)}")
        if cnt[0] == wpos:
            lds_inc(L_FLAGW)
        if not work and cnt[0] >= 8 * (nxt[0] + 1) and f"v{nxt[0]}" not in A.vm:
            work.extend(pv_chunks(nxt[0]))
            nxt[0] += 1
        for _ in range(2):
            if work:
                work.pop(0)()
    while work:
        work.pop(0)()
    while nxt[0] < 7:
        A.wait_vm(f"v{nxt[0]}")
        for c in pv_chunks(nxt[0]):
            c()
        nxt[0] += 1
    vF = blk_reg(3)
    lds_wait(L_FLAGS)
    A(f"v_and_b32 v{vT}, 1, v{vL}")
    A(f"v_lshlrev_b32 v{vT}, 4, v{vT}")
    for w in range(4):
        A(f"ds_read_b128 {v4(vF+4*w)}, v{vT} offset:{L_F+32*w}")
    vOW, vOR = vQ + 1, vQ + 2
    A(f"v_mul_u32_u24 v{vOW}, 272, v{vN}")
    A(f"v_lshl_add_u32 v{vOW}, v{vGq}, 4, v{vOW}")
    A(f"s_mul_i32 s{sT0}, s{sW}, 4352")
    A(f"v_add_u32 v{vOW}, s{sT0}, v{vOW}")
    A(f"s_lshl_b32 s{sT0}, s{sW}, 2")
    A(f"v_add_u32 v{vOR}, s{sT0}, v{vGq}")
    A(f"v_mul_u32_u24 v{vOR}, 272, v{vOR}")
    A(f"v_lshl_add_u32 v{vOR}, v{vN}, 4, v{vOR}")
    A(f"s_lshl_b32 s{sT3}, s{sJ}, 12")
    A(f"s_lshl_b32 s{sT1}, s{sW}, 10")
    A(f"s_add_u32 s{sT3}, s{sT3}, s{sT1}")
    A(f"s_add_u32 s{sT3}, s{sT3}, {WS_A}")
    A(f"v_mov_b32 v{vT+1}, 1")
    stamp(9)
    A.wait_vm("v7")
    stamp(8)

    def o_write(t):
        A("s_mov_b64 exec, 0xffffffff")
        for m in (2 * t, 2 * t + 1):
            A(f"ds_write_b128 v{vOW}, {v4(vO+4*m)} offset:{L_O+32*m}")
        A("s_mov_b64 exec, -1")

    for t, c in enumerate(pv_chunks(7)):
        c()
        if t > 0:
            o_write(t - 1)
    o_write(3)
    stamp(10)
    Z = blk_reg(4)
    A("s_mov_b64 exec, 1")
    A(f"ds_add_u32 v{vZ}, v{vT+1} offset:{L_CNTO}")
    A("s_mov_b64 exec, -1")
    A.label("L_owait")
    A(f"ds_read_b32 v{vT}, v{vZ} offset:{L_CNTO}")
    for w in range(4):
        A(f"ds_read_b128 {v4(Z+4*w)}, v{vOR} offset:{L_O+4352*w}")
    A("s_waitcnt lgkmcnt(0)")
    A(f"v_readfirstlane_b32 s{sT0}, v{vT}")
    A(f"s_cmp_eq_u32 s{sT0}, 4")
    A("s_cbranch_scc1 L_oready")
    A(f"s_sub_u32 s{sTO}, s{sTO}, 1")
    A(f"s_cmp_lg_u32 s{sTO}, 0")
    A("s_cbranch_scc1 L_owait")
    A("s_branch L_end")
    A.label("L_oready")
    for c in range(4):
        A(f"v_mul_f32 v{Z+c}, v{Z+c}, v{vF+c}")
    for w in range(1, 4):
        for c in range(4):
            A(f"v_fmac_f32 v{Z+c}, v{Z+4*w+c}, v{vF+4*w+c}")
    for c in range(4):
        tag10(Z + c)
    A(f"buffer_store_dwordx4 {v4(Z)}, v{vOV}, {srd(rWS)}, s{sT3} offen sc1")
    if opt.get("pubwait", False):
        A("s_waitcnt vmcnt(0)")
    lds_inc(L_CNTP)
    stamp(11)
    A("s_branch L_end")

    A.label("L_helper")
    A.vm = []
    vTAG = vM
    Z = 16
    ACC = 48
    vA1, vA2, vA3 = vOK, vH, 15
    vWa = 64
    vWb = 192
    vGA, vLW, vLR, vX0, vC4, vGE, vLE = 56, 57, 58, 59, 60, 61, 62
    sRID = sLDSB
    mk_srd(rX, 16, 2048)
    mk_srd(rOUT, 34, 2048)

    def rowsplit_loads(dst, rs, sbase, row_off, rng, d, token, ntw):
        for i in rng:
            off = row_off(i)
            A(f"s_add_u32 s{sT0}, s{sbase}, {off & ~4095}")
            throttle(d)
            A(f"buffer_load_dwordx4 {v4(dst+4*i)}, v{vA2}, {srd(rs)}, s{sT0} offen offset:{off & 4095}{ntw}",
              token or f"r{i//2}")

    def perm_to(dst, src, nrows):
        for p in range(nrows // 2):
            A.wait_vm(f"r{p}")
            for t in range(4):
                a = src + (2 * p) * 4 + t
                b = src + (2 * p + 1) * 4 + t
                A(f"v_perm_b32 v{dst+(2*p)*4+t}, v{b}, v{a}, s{sPLO}")
                A(f"v_perm_b32 v{dst+(2*p+1)*4+t}, v{b}, v{a}, s{sPHI}")

    def zero_acc():
        for c in range(8):
            A(f"v_mov_b32 v{ACC+c}, 0")

    sMK = 18
    efast = opt.get("efast", 64)

    def gemv_publish(wp, npairs, xsrc, emode=False):
        for p in range(npairs):
            xr, ln = xsrc(p)
            for c in range(8):
                w = wp + (2 * p + (c & 1)) * 4 + (c >> 1)
                A(f"v_dot2c_f32_bf16_dpp v{ACC+c}, v{xr}, v{w} row_newbcast:{ln} {DPPALL}")
        for c in range(4):
            A(f"v_permlane32_swap_b32 v{ACC+c}, v{ACC+c+4}")
        for c in range(4):
            A(f"v_add_f32 v{ACC+c}, v{ACC+c}, v{ACC+c+4}")
        for c in range(4):
            tag10(ACC + c)
        if emode == "none":
            return
        if emode:
            A(f"s_mov_b64 exec, s[{sMK}:{sMK+1}]")
            store_loc(ACC, vA3, sPUB)
        else:
            A(f"buffer_store_dwordx4 {v4(ACC)}, v{vA3}, {srd(rWS)}, s{sPUB} offen sc1")
        if emode:
            A("s_mov_b64 exec, -1")

    sLOC = 26

    def read_loc():
        lds_wait(L_FLAGS, 8)
        A(f"ds_read_b32 v{vT}, v{vZ} offset:{L_LOC}")
        A("s_waitcnt lgkmcnt(0)")
        A(f"v_readfirstlane_b32 s{sLOC}, v{vT}")

    def store_loc(data, va, sreg):
        l1, l2 = A.newlabel("sl"), A.newlabel("sl")
        A(f"s_cmp_eq_u32 s{sLOC}, 0")
        A(f"s_cbranch_scc1 {l1}")
        sv = list(A.vm)
        A(f"buffer_store_dwordx4 {v4(data)}, v{va}, {srd(rWS)}, s{sreg} offen")
        A(f"s_branch {l2}")
        A.label(l1)
        A.vm = sv
        A(f"buffer_store_dwordx4 {v4(data)}, v{va}, {srd(rWS)}, s{sreg} offen sc1")
        A.label(l2)

    def pack_pairs(src, dst):
        A(f"v_mov_b32_dpp v{dst}, v{src} quad_perm:[1,0,3,2] {DPPALL}")
        A(f"v_cvt_pk_bf16_f32 v{dst}, v{src}, v{dst}")

    def red4_to_lds(waddr, ldsoff):
        A(f"v_permlane32_swap_b32 v{Z}, v{Z+2}")
        A(f"v_permlane32_swap_b32 v{Z+1}, v{Z+3}")
        A(f"v_add_f32 v{Z}, v{Z}, v{Z+2}")
        A(f"v_add_f32 v{Z+1}, v{Z+1}, v{Z+3}")
        A(f"v_permlane16_swap_b32 v{Z}, v{Z+1}")
        A(f"v_add_f32 v{Z}, v{Z}, v{Z+1}")
        row_red("v_add_f32", Z, (8,))
        A(f"ds_write_b32 v{waddr}, v{Z} offset:{L_GP+ldsoff}")
        A("s_waitcnt lgkmcnt(0)")
        A("s_barrier")

    def read4_from_lds(addr):
        for k in range(2):
            A(f"ds_read2_b32 {v2(Z+2*k)}, v{addr} offset0:{64*k} offset1:{64*k+32}")
        A("s_waitcnt lgkmcnt(0)")
        A(f"v_add_f32 v{Z}, v{Z}, v{Z+1}")
        A(f"v_add_f32 v{Z+2}, v{Z+2}, v{Z+3}")

    def common_addr():
        A(f"v_and_b32 v{vA3}, 31, v{vL}")
        A(f"v_lshlrev_b32 v{vC4}, 2, v{vA3}")
        A(f"v_lshlrev_b32 v{vA3}, 5, v{vA3}")
        A(f"v_lshrrev_b32 v{vT}, 5, v{vL}")
        A(f"v_lshl_add_u32 v{vA3}, v{vT}, 4, v{vA3}")
        A(f"v_lshrrev_b32 v{vA1}, 3, v{vL}")
        A(f"v_lshlrev_b32 v{vA1}, 12, v{vA1}")
        A(f"v_and_b32 v{vT+1}, 7, v{vL}")
        A(f"v_lshl_add_u32 v{vA1}, v{vT+1}, 4, v{vA1}")
        A(f"v_lshlrev_b32 v{vLW}, 4, v{vT+1}")
        A(f"v_lshl_add_u32 v{vLW}, v{vGq}, 2, v{vLW}")
        A(f"s_lshl_b32 s{sT0}, s{sHW}, 7")
        A(f"v_add_u32 v{vLW}, s{sT0}, v{vLW}")

    def pretouch(items):
        if not opt.get("pretouch", False):
            return
        lds_wait(L_PRGV, 8)
        A("s_mov_b32 exec_lo, 1")
        A("s_mov_b32 exec_hi, 1")
        for k, (va, rs, so) in enumerate(items):
            if isinstance(so, tuple):
                A(f"s_add_u32 s{sT0}, s{so[0]}, {so[1]}")
            else:
                A(f"s_mov_b32 s{sT0}, {hex(so)}")
            A(f"buffer_load_dword v{Z+k}, v{va}, {srd(rs)}, s{sT0} offen")
        A("s_mov_b64 exec, -1")
        A("s_waitcnt vmcnt(0)")

    WS_PT = [(vZ, rWS, 0x1f0000 - 0x1000 + 0x100000), (vZ, rWS, 0x3f8000), (vZ, rWS, 0x20000)]

    def watch(va, base, name):
        A("s_mov_b64 exec, 0xff")
        A(f"v_mov_b32 v{Z+8}, s{sT10}")
        A(f"s_mov_b32 s{sT1}, {hex(base)}")
        A.label(f"L_{name}")
        A(f"buffer_load_dwordx4 {v4(Z)}, v{va}, {srd(rWS)}, s{sT1} offen sc1")
        A("s_waitcnt vmcnt(0)")
        A(f"v_bitop3_b32 v{Z+4}, v{Z}, v{Z+1}, v{Z+8} bitop3:0x7e")
        A(f"v_and_b32 v{Z+4}, 0x3ff, v{Z+4}")
        A(f"v_cmp_ne_u32 s[{sP0}:{sP1}], 0, v{Z+4}")
        A(f"s_cmp_eq_u64 s[{sP0}:{sP1}], 0")
        A(f"s_cbranch_scc1 L_{name}d")
        A("s_sleep 2")
        A(f"s_sub_u32 s{sTO}, s{sTO}, 1")
        A(f"s_cmp_lg_u32 s{sTO}, 0")
        A(f"s_cbranch_scc1 L_{name}")
        A.label(f"L_{name}d")
        A("s_mov_b64 exec, -1")

    def hint_wait(delay):
        A(f"s_lshl_b32 s{sT1}, s{sX_}, 7")
        A(f"v_mov_b32 v{vT+4}, s{sT1}")
        poll(Z, vT + 4, [WS_HINT], sT16, 0xffff, Z + 8, sleep=opt.get("sleepH", 2))
        if delay:
            A(f"s_sleep {delay}")

    def service(name):
        A(f"s_cmp_lg_u32 s{sHW}, 0")
        A(f"s_cbranch_scc1 L_svc_{name}")
        X = Z
        lds_wait(L_PRGK, 8)
        A(f"s_lshl_b32 s{sT1}, s{sG}, 12")
        A(f"v_add_u32 v{vT+4}, s{sT1}, v{vOV}")
        poll(X, vT + 4, [WS_Q + i * 1024 for i in range(4)], sT16, 0xffff, X + 16, sleep=opt.get("sleepq", 8))
        A(f"v_lshrrev_b32 v{vT+1}, 5, v{vL}")
        A(f"v_mul_u32_u24 v{vT+1}, 272, v{vT+1}")
        A(f"v_and_b32 v{vT+2}, 31, v{vL}")
        A(f"v_lshl_add_u32 v{vT+1}, v{vT+2}, 3, v{vT+1}")
        for i in range(4):
            A(f"v_perm_b32 v{X+16+2*i}, v{X+4*i+1}, v{X+4*i}, s{sPHI}")
            A(f"v_perm_b32 v{X+16+2*i+1}, v{X+4*i+3}, v{X+4*i+2}, s{sPHI}")
            A(f"ds_write_b64 v{vT+1}, {v2(X+16+2*i)} offset:{L_Q+i*2*272}")
        lds_setflag(L_FLAGQ)
        stamp(2)
        lds_wait(L_CNTS, 4, 4)
        Y = Z
        A(f"v_and_b32 v{vT}, 7, v{vL}")
        A(f"v_lshlrev_b32 v{vT}, 3, v{vT}")
        A(f"v_lshrrev_b32 v{vT+1}, 3, v{vL}")
        A(f"v_lshl_add_u32 v{vT}, v{vT+1}, 7, v{vT}")
        for g in range(2):
            A(f"ds_read_b64 {v2(Y+2*g)}, v{vT} offset:{L_SP+64*g}")
        A("s_waitcnt lgkmcnt(0)")
        MM, LL, TT = vT + 2, vT + 3, Y + 6
        A(f"v_max_f32 v{MM}, v{Y}, v{Y+2}")
        row_red("v_max_f32", MM, (8,))
        xrow_red("v_max_f32", MM, TT)
        for g in range(2):
            A(f"v_sub_f32 v{Y+2*g}, v{Y+2*g}, v{MM}")
            A(f"v_mul_f32 v{Y+2*g}, s{sLOG2E}, v{Y+2*g}")
            A(f"v_exp_f32 v{Y+2*g}, v{Y+2*g}")
        A(f"v_mul_f32 v{LL}, v{Y}, v{Y+1}")
        A(f"v_fmac_f32 v{LL}, v{Y+2}, v{Y+3}")
        row_red("v_add_f32", LL, (8,))
        xrow_red("v_add_f32", LL, TT)
        A(f"v_or_b32 v{MM}, s{sT10}, v{MM}")
        tag10(LL)
        A(f"s_getreg_b32 s{sT1}, hwreg(HW_REG_XCC_ID, 0, 4)")
        A(f"s_lshl_b32 s{sT1}, s{sT1}, 16")
        A(f"s_or_b32 s23, s{sT1}, s{sT10}")
        A("s_mov_b64 exec, 0xff00")
        A(f"v_mov_b32 v{MM}, s23")
        A(f"v_mov_b32 v{LL}, s23")
        A("s_mov_b64 exec, -1")
        A(f"v_lshlrev_b32 v{vT}, 3, v{vL}")
        sfull = opt.get("sfull", True)
        A(f"s_lshl_b32 s{sT0}, s{sJ}, {7 if sfull else 6}")
        A(f"s_add_u32 s{sT0}, s{sT0}, {WS_S}")
        A(f"s_mov_b64 exec, {'0xffff' if sfull else '0xff'}")
        A(f"buffer_store_dwordx2 {v2(MM)}, v{vT}, {srd(rWS)}, s{sT0} offen sc1")
        A("s_mov_b64 exec, -1")
        if opt.get("rank"):
            A(f"v_lshlrev_b32 v{vT}, 8, v{vL}")
            A(f"s_and_b32 s{sT0}, s{sJ}, 3")
            A(f"s_lshl_b32 s{sT0}, s{sT0}, 6")
            A(f"s_add_u32 s{sT0}, s{sT0}, {WS_S}")
            A(f"buffer_load_dwordx2 {v2(Z)}, v{vT}, {srd(rWS)}, s{sT0} offen sc1")
            A("s_waitcnt vmcnt(0)")
            A(f"v_bitop3_b32 v{Z}, v{Z}, v{Z+1}, v{vTAG} bitop3:0x7e")
            A(f"v_and_b32 v{Z}, 0x3ff, v{Z}")
            A(f"v_cmp_eq_u32 s[{sP0}:{sP1}], 0, v{Z}")
            A(f"s_bcnt1_i32_b64 s{sT1}, s[{sP0}:{sP1}]")
            A(f"s_mov_b32 s{sT2}, 1")
            for q, t in enumerate(opt["rank"]):
                A(f"s_cmp_ge_u32 s{sT1}, {t}")
                A(f"s_cselect_b32 s{sT2}, {q+2}, s{sT2}")
            A(f"v_mov_b32 v{Z}, s{sT2}")
            A(f"ds_write_b32 v{vZ}, v{Z} offset:{L_LVL}")
            if stamps:
                A(f"s_add_u32 s{sSTAMP+8}, s{sSTAMP}, s{sT1}")
        lds_wait(L_PRGV, 8)
        Dd = Z
        TP = Z + 16
        if sfull:
            A(f"v_lshrrev_b32 v{vT+4}, 2, v{vL}")
            A(f"v_lshlrev_b32 v{vT+4}, 7, v{vT+4}")
            A(f"v_and_b32 v{vT+5}, 3, v{vL}")
            A(f"v_lshl_add_u32 v{vT+4}, v{vT+5}, 4, v{vT+4}")
            A(f"s_lshl_b32 s{sT1}, s{sG}, 13")
            A(f"v_add_u32 v{vT+4}, s{sT1}, v{vT+4}")
        A(f"v_and_b32 v{vT+5}, 31, v{vL}")
        A(f"v_lshlrev_b32 v{vT+5}, 7, v{vT+5}")
        A(f"s_lshl_b32 s{sT1}, s{sX_}, 12")
        A(f"v_add_u32 v{vT+5}, s{sT1}, v{vT+5}")
        TP = 236
        poll(Dd, [vT + 4] * 4 + [vT + 5], [WS_S + i * 2048 for i in range(4)] + [WS_S + 64], sT10, 0x3ff, TP,
             sleep=opt.get("sleeps", 8))
        A(f"v_cmp_ne_u32 s[{sP0}:{sP1}], s23, v{Dd+16}")
        A(f"s_cmp_eq_u64 s[{sP0}:{sP1}], 0")
        A(f"s_cselect_b32 s{sT1}, {1 if efast else 0}, 0")
        A(f"v_mov_b32 v{Dd+16}, s{sT1}")
        A(f"ds_write_b32 v{vZ}, v{Dd+16} offset:{L_LOC}")
        for i in range(16):
            A(f"v_and_b32 v{Dd+i}, s{sM10}, v{Dd+i}")
        Yy = TP
        Tt = TP + 4
        M0, M1, L0, L1 = Yy, Yy + 2, Yy + 1, Yy + 3
        for (Mx, o) in ((M0, 0), (M1, 2)):
            A(f"v_max_f32 v{Mx}, v{Dd+o}, v{Dd+4+o}")
            A(f"v_max3_f32 v{Mx}, v{Mx}, v{Dd+8+o}, v{Dd+12+o}")
        for Mx in (M0, M1):
            row_red("v_max_f32", Mx, (8, 4))
            xrow_red("v_max_f32", Mx, Tt)
        for (Mx, Lx, o) in ((M0, L0, 0), (M1, L1, 2)):
            for i in range(4):
                r = Dd + 4 * i + o
                A(f"v_sub_f32 v{r}, v{r}, v{Mx}")
                A(f"v_mul_f32 v{r}, s{sLOG2E}, v{r}")
                A(f"v_exp_f32 v{r}, v{r}")
            A(f"v_mul_f32 v{Lx}, v{Dd+o}, v{Dd+o+1}")
            for i in range(1, 4):
                A(f"v_fmac_f32 v{Lx}, v{Dd+4*i+o}, v{Dd+4*i+o+1}")
        for Lx in (L0, L1):
            row_red("v_add_f32", Lx, (8, 4))
            xrow_red("v_add_f32", Lx, Tt)
            A(f"v_rcp_f32 v{Lx}, v{Lx}")
        A(f"v_and_b32 v{vT}, 3, v{vL}")
        A(f"v_lshlrev_b32 v{vT}, 4, v{vT}")
        A(f"ds_write_b128 v{vT}, {v4(Yy)} offset:{L_SG}")
        A(f"v_and_b32 v{vT}, 7, v{vL}")
        A(f"v_lshlrev_b32 v{vT}, 3, v{vT}")
        A(f"v_bfe_u32 v{vT+2}, v{vL}, 3, 2")
        A(f"v_lshl_add_u32 v{vT+2}, v{vT+2}, 8, v{vT}")
        A(f"ds_read_b64 {v2(Dd)}, v{vT} offset:{L_SG}")
        A(f"ds_read_b32 v{Dd+2}, v{vT+2} offset:{L_SP}")
        A(f"v_and_b32 v{vT+3}, 31, v{vL}")
        A(f"v_lshlrev_b32 v{vT+3}, 2, v{vT+3}")
        A("s_waitcnt lgkmcnt(0)")
        A(f"v_sub_f32 v{Dd+2}, v{Dd+2}, v{Dd}")
        A(f"v_mul_f32 v{Dd+2}, s{sLOG2E}, v{Dd+2}")
        A(f"v_exp_f32 v{Dd+2}, v{Dd+2}")
        A(f"v_mul_f32 v{Dd+2}, v{Dd+2}, v{Dd+1}")
        A(f"ds_write_b32 v{vT+3}, v{Dd+2} offset:{L_F}")
        lds_setflag(L_FLAGS)
        stamp(7)
        A.label(f"L_svc_{name}")
        A.vm = []

    A(f"s_cmp_ge_u32 s{sA}, 16")
    A("s_cbranch_scc1 L_roleM")

    mk_srd(rW2, 24, 0 if opt.get("now") else 0x800000)
    mk_srd(rW3, 32, 0 if opt.get("now") else 3584 * 1024 * 2)
    common_addr()
    A(f"v_lshrrev_b32 v{vA2}, 5, v{vL}")
    A(f"v_lshlrev_b32 v{vA2}, 20, v{vA2}")
    A(f"v_lshl_add_u32 v{vA2}, v{vC4}, 2, v{vA2}")
    A(f"s_lshl_b32 s{sKB}, s{sG}, 21")
    A(f"s_and_b32 s{sT2}, s{sRI}, 31")
    A(f"s_lshl_b32 s{sT2}, s{sT2}, 13")
    A(f"s_add_u32 s{sKB}, s{sKB}, s{sT2}")
    A(f"s_lshl_b32 s{sT2}, s{sHW}, 9")
    A(f"s_add_u32 s{sKB}, s{sKB}, s{sT2}")
    wo_off = lambda i: (i >> 2) * 128 * 2048 + (i & 3) * 2048
    wo1 = opt.get("wo1", 16)
    rowsplit_loads(vWb, rW2, sKB, wo_off, range(min(4, wo1)), 0, None, nto)
    A("s_barrier")
    rowsplit_loads(vWb, rW2, sKB, wo_off, range(min(4, wo1), wo1), opt.get("DE", 0), None, nto)
    A("s_waitcnt lgkmcnt(0)")
    tags()
    A(f"s_lshl_b32 s{sPUB}, s{sX_}, 4")
    A(f"s_add_u32 s{sPUB}, s{sPUB}, s{sA}")
    A(f"s_lshl_b32 s{sPUB}, s{sPUB}, 12")
    A(f"s_lshl_b32 s{sT1}, s{sHW}, 10")
    A(f"s_add_u32 s{sPUB}, s{sPUB}, s{sT1}")
    A(f"s_add_u32 s{sPUB}, s{sPUB}, {WS_B}")
    A(f"s_lshl_b32 s{sT1}, s{sG}, 18")
    A(f"s_lshl_b32 s{sT2}, s{sHW}, 16")
    A(f"s_add_u32 s{sT1}, s{sT1}, s{sT2}")
    A(f"s_and_b32 s{sT2}, s{sRI}, 31")
    A(f"s_lshl_b32 s{sT2}, s{sT2}, 7")
    A(f"s_add_u32 s{sT1}, s{sT1}, s{sT2}")
    A(f"v_add_u32 v{vGA}, s{sT1}, v{vA1}")
    A(f"v_and_b32 v{vLR}, 3, v{vN}")
    A(f"v_lshlrev_b32 v{vLR}, 3, v{vLR}")
    A(f"v_lshrrev_b32 v{vT}, 5, v{vL}")
    A(f"v_lshl_add_u32 v{vLR}, v{vT}, 2, v{vLR}")
    A(f"v_lshrrev_b32 v{vT+1}, 2, v{vN}")
    A(f"v_add_u32 v{vLR}, v{vLR}, v{vT+1}")
    A(f"v_lshlrev_b32 v{vLR}, 2, v{vLR}")
    A(f"v_add_u32 v{vLR}, {L_GP}, v{vLR}")
    A(f"v_lshl_add_u32 v{vLE}, v{vT}, 4, v{vN}")
    A(f"v_lshlrev_b32 v{vLE}, 2, v{vLE}")
    A(f"v_add_u32 v{vLE}, {L_GP+1024}, v{vLE}")
    sDI = 16
    A(f"s_mul_i32 s{sDI}, s{sX_}, 14")
    A(f"s_add_u32 s{sDI}, s{sDI}, s{sA}")
    A(f"v_lshrrev_b32 v{vGE}, 3, v{vL}")
    A(f"v_mul_u32_u24 v{vGE}, 3584, v{vGE}")
    A(f"v_and_b32 v{vT+1}, 7, v{vL}")
    A(f"v_lshl_add_u32 v{vGE}, v{vT+1}, 4, v{vGE}")
    A(f"s_and_b32 s{sT0}, s{sHW}, 1")
    A(f"s_mul_i32 s{sT0}, s{sT0}, {8*3584}")
    A(f"s_lshr_b32 s{sT1}, s{sHW}, 1")
    A(f"s_mul_i32 s{sT1}, s{sT1}, 1792")
    A(f"s_add_u32 s{sT0}, s{sT0}, s{sT1}")
    A(f"s_mul_i32 s{sT1}, s{sX_}, {16*3584}")
    A(f"s_add_u32 s{sT0}, s{sT0}, s{sT1}")
    A(f"s_lshl_b32 s{sT1}, s{sA}, 7")
    A(f"s_add_u32 s{sT0}, s{sT0}, s{sT1}")
    A(f"v_add_u32 v{vGE}, s{sT0}, v{vGE}")
    vGB, vHP, vOA, vLB, vGL, vL2 = 44, 45, 46, 47, 43, 63
    sHB = 20
    A(f"v_lshlrev_b32 v{vGL}, 12, v{vGq}")
    A(f"v_lshl_add_u32 v{vGL}, v{vN}, 4, v{vGL}")
    A(f"s_lshl_b32 s{sT0}, s{sX_}, 16")
    A(f"s_lshl_b32 s{sT1}, s{sHW}, 14")
    A(f"s_add_u32 s{sT0}, s{sT0}, s{sT1}")
    A(f"s_lshl_b32 s{sT1}, s{sA}, 8")
    A(f"s_add_u32 s{sT0}, s{sT0}, s{sT1}")
    A(f"v_add_u32 v{vGL}, s{sT0}, v{vGL}")
    A(f"v_lshlrev_b32 v{vL2}, 4, v{vN}")
    A(f"v_lshl_add_u32 v{vL2}, v{vGq}, 2, v{vL2}")
    A(f"s_lshl_b32 s{sT0}, s{sHW}, 8")
    A(f"v_add_u32 v{vL2}, s{sT0}, v{vL2}")
    A(f"v_lshrrev_b32 v{vT}, 5, v{vL}")
    A(f"v_lshlrev_b32 v{vHP}, 15, v{vT}")
    A(f"v_lshl_add_u32 v{vHP}, v{vN}, 4, v{vHP}")
    A(f"s_lshl_b32 s{sHB}, s{sHW}, 16")
    A(f"s_lshl_b32 s{sT1}, s{sA}, 11")
    A(f"s_add_u32 s{sHB}, s{sHB}, s{sT1}")
    A(f"s_lshl_b32 s{sT1}, s{sX_}, 8")
    A(f"s_add_u32 s{sHB}, s{sHB}, s{sT1}")
    A(f"s_add_u32 s{sHB}, s{sHB}, {WS_B2}")
    zero_acc()
    assert wo1 == 16
    pt = opt.get("pt", "")
    vWd = vWa + 64
    vGH, vLN = 41, 42
    perm_to(vWa, vWb, 16)
    A(f"v_lshrrev_b32 v{vA2}, 5, v{vL}")
    A(f"v_lshlrev_b32 v{vA2}, 15, v{vA2}")
    A(f"v_lshl_add_u32 v{vA2}, v{vC4}, 2, v{vA2}")
    A(f"s_lshl_b32 s{sKB}, s{sDI}, 16")
    A(f"s_lshl_b32 s{sT2}, s{sHW}, 9")
    A(f"s_add_u32 s{sKB}, s{sKB}, s{sT2}")
    A(f"s_lshl_b32 s{sT1}, s{sX_}, 12")
    A(f"s_lshl_b32 s{sT2}, s{sHW}, 10")
    A(f"s_add_u32 s{sT2}, s{sT1}, s{sT2}")
    A(f"v_add_u32 v{vGH}, s{sT2}, v{vOV}")
    A(f"s_lshl_b32 s{sT0}, s{sHW}, 3")
    A(f"v_mov_b32 v{vLN}, s{sT0}")
    A(f"s_cmp_lt_u32 s{sA}, 14")
    A(f"s_cselect_b32 s{rW3+2}, s{rW3+2}, 0")
    A.vm = []
    service("W")
    read_loc()
    stamp(6)
    a2 = 0
    d0 = opt.get("d0", 6)
    lds_wait(L_FLAGW, 4, opt.get("wcnt", 4))
    rowsplit_loads(vWb, rW3, sKB, lambda i: i * 2048, range(d0), opt.get("DL0", 0), None, ntd)
    if efast:
        for i, (va, base) in enumerate(((vGL, WS_B + FAST_B),)):
            A(f"s_mov_b32 s{sT0}, {hex(base)}")
            A(f"buffer_load_dwordx4 {v4(vWd+48+4*i)}, v{va}, {srd(rWS)}, s{sT0} offen sc1")
    for p in range(d0 // 2):
        A.wait_vm(f"r{p}")
        for t in range(4):
            a_ = vWb + (2 * p) * 4 + t
            b_ = vWb + (2 * p + 1) * 4 + t
            A(f"v_perm_b32 v{vWd+(2*p)*4+t}, v{b_}, v{a_}, s{sPLO}")
            A(f"v_perm_b32 v{vWd+(2*p+1)*4+t}, v{b_}, v{a_}, s{sPHI}")
    assert d0 <= 8
    aw = "p"
    lds_wait(L_CNTP, 2, 4)
    if opt.get("a1", True):
        A(f"s_mov_b64 exec, {hex(opt.get('a1m', 0xff))}")
        A(f"v_mov_b32 v{Z+8}, s{sT10}")
        A.label("L_a1")
        A(f"s_mov_b32 s{sT0}, {hex(WS_A + opt.get('a1off', 0))}")
        A(f"buffer_load_dwordx4 {v4(Z)}, v{vGA}, {srd(rWS)}, s{sT0} offen sc1")
        A("s_waitcnt vmcnt(0)")
        A(f"v_bitop3_b32 v{Z+4}, v{Z}, v{Z+1}, v{Z+8} bitop3:0x7e")
        A(f"v_and_b32 v{Z+4}, 0x3ff, v{Z+4}")
        A(f"v_cmp_ne_u32 s[{sP0}:{sP1}], 0, v{Z+4}")
        A(f"s_cmp_eq_u64 s[{sP0}:{sP1}], 0")
        A("s_cbranch_scc1 L_a1d")
        A("s_sleep 4")
        A(f"s_sub_u32 s{sTO}, s{sTO}, 1")
        A(f"s_cmp_lg_u32 s{sTO}, 0")
        A("s_cbranch_scc1 L_a1")
        A.label("L_a1d")
        A("s_mov_b64 exec, -1")
    if aw == "f":
        lds_wait(L_CNTP, 1, 4)
    poll(Z, vGA, [WS_A, WS_A + 32768], sT10, 0x3ff, Z + 8, sleep=opt.get("sleepA", 0), back=opt.get("backA"),
         entry="L_a2_entry" if (a2 and wo1 < 16) else None)
    for i in range(8):
        A(f"v_and_b32 v{Z+i}, s{sM10}, v{Z+i}")
    for c in range(4):
        A(f"v_add_f32 v{Z+c}, v{Z+c}, v{Z+4+c}")
    red4_to_lds(vLW, 0)
    stamp(12)
    read4_from_lds(vLR)
    A(f"v_add_f32 v{Z}, v{Z}, v{Z+2}")
    pack_pairs(Z, Z + 4)
    gemv_publish(vWa, 8, lambda p: (Z + 4, 2 * p), "none")

    store_loc(ACC, vA3, sPUB)
    stamp(3)
    poll(Z, vGL, [WS_B], sT10, 0x3ff, Z + 8)
    for i in range(4):
        A(f"v_and_b32 v{Z+i}, s{sM10}, v{Z+i}")
    A(f"v_permlane32_swap_b32 v{Z}, v{Z+2}")
    A(f"v_permlane32_swap_b32 v{Z+1}, v{Z+3}")
    A(f"v_pk_add_f32 {v2(Z)}, {v2(Z)}, {v2(Z+2)}")
    A(f"v_permlane16_swap_b32 v{Z}, v{Z+1}")
    A(f"v_add_f32 v{Z}, v{Z}, v{Z+1}")
    A(f"ds_write_b32 v{vL2}, v{Z} offset:{L_O}")
    A(f"v_lshlrev_b32 v{vT+2}, 4, v{vN}")
    A.vm = []
    dmid = (d0 + 16) // 2 if opt.get("dpre", False) else d0
    dend = 16 if opt.get("dpre", False) else d0
    rowsplit_loads(vWb, rW3, sKB, lambda i: i * 2048, range(d0, dmid), 0, None, ntd)
    A("s_waitcnt lgkmcnt(0)")
    A("s_barrier")
    for w in range(4):
        A(f"ds_read_b128 {v4(Z+4*w)}, v{vT+2} offset:{L_O+256*w}")
    rowsplit_loads(vWb, rW3, sKB, lambda i: i * 2048, range(dmid, dend), 0, None, ntd)
    A("s_waitcnt lgkmcnt(0)")
    for (d_, s_) in ((0, 4), (8, 12), (0, 8)):
        for c in range(0, 4, 2):
            A(f"v_pk_add_f32 {v2(Z+d_+c)}, {v2(Z+d_+c)}, {v2(Z+s_+c)}")
    for c in range(4):
        tag10(Z + c)
    A("s_mov_b32 exec_lo, 0xffff")
    A("s_mov_b32 exec_hi, 0xffff")
    A(f"buffer_store_dwordx4 {v4(Z)}, v{vHP}, {srd(rWS)}, s{sHB} offen sc1")
    A("s_mov_b64 exec, -1")
    stamp(13)
    rowsplit_loads(vWb, rW3, sKB, lambda i: i * 2048, range(dend, 16), opt.get("DLD", 0), None, ntd)
    if efast:
        for i, (va, base) in enumerate(((vGH, WS_H + FAST_H), (vGE, WS_EF), (vGE, WS_C + WS_EF - WS_E))):
            A(f"s_mov_b32 s{sT0}, {hex(base)}")
            A(f"buffer_load_dwordx4 {v4(vWa+48+4*i)}, v{va}, {srd(rWS)}, s{sT0} offen sc1")
    A(f"s_add_u32 s{sPUB}, s{sPUB}, {WS_D - WS_B}")
    A(f"s_cmp_ge_u32 s{sA}, 14")
    A("s_cbranch_scc1 L_final0")
    for p in range(d0 // 2, 8):
        A.wait_vm(f"r{p}")
        for t in range(4):
            a_ = vWb + (2 * p) * 4 + t
            b_ = vWb + (2 * p + 1) * 4 + t
            A(f"v_perm_b32 v{vWd+(2*p)*4+t}, v{b_}, v{a_}, s{sPLO}")
            A(f"v_perm_b32 v{vWd+(2*p+1)*4+t}, v{b_}, v{a_}, s{sPHI}")
    zero_acc()
    stamp(9)
    H_ = vWa
    poll(H_, vGH, [WS_H], sT16, 0xffff, H_ + 8)
    A(f"v_mov_b32 v{Z+12}, s{sT10}")
    A(f"s_mov_b32 s{sT3}, 1")
    for i, so in enumerate([WS_E, WS_C]):
        A(f"s_mov_b32 s{sT0}, {hex(so + ((WS_EF - WS_E) if efast else 0))}")
        A(f"buffer_load_dwordx4 {v4(Z+4*i)}, v{vGE}, {srd(rWS)}, s{sT0} offen sc1")
    for i in range(4):
        A(f"v_and_b32 v{H_+i}, s{sM16}, v{H_+i}")
    A(f"v_readfirstlane_b32 s{sT1}, v{H_}")
    S1, S2, TT = H_ + 8, H_ + 9, H_ + 10
    for i in range(4):
        A(f"v_subrev_f32 v{H_+i}, s{sT1}, v{H_+i}")
    A(f"v_add_f32 v{S1}, v{H_}, v{H_+1}")
    A(f"v_mul_f32 v{S2}, v{H_}, v{H_}")
    A(f"v_add_f32 v{TT}, v{H_+2}, v{H_+3}")
    A(f"v_fmac_f32 v{S2}, v{H_+1}, v{H_+1}")
    A(f"v_add_f32 v{S1}, v{S1}, v{TT}")
    A(f"v_fmac_f32 v{S2}, v{H_+2}, v{H_+2}")
    A(f"v_fmac_f32 v{S2}, v{H_+3}, v{H_+3}")
    A(f"v_permlane32_swap_b32 v{S1}, v{S2}")
    A(f"v_add_f32 v{S1}, v{S1}, v{S2}")
    row_red("v_add_f32", S1, (8, 4, 2, 1))
    A(f"v_mov_b32 v{TT}, v{S1}")
    A(f"v_permlane16_swap_b32 v{TT}, v{S1}")
    A(f"v_add_f32 v{S1}, v{S1}, v{TT}")
    A(f"v_mov_b32 v{S2}, v{S1}")
    A(f"v_permlane32_swap_b32 v{S1}, v{S2}")
    A(f"v_mul_f32 v{TT}, 0x3b800000, v{S1}")
    A(f"v_fma_f32 v{S2}, -v{TT}, v{S1}, v{S2}")
    A(f"v_add_f32 v{S1}, s{sT1}, v{TT}")
    A(f"ds_write_b64 v{vLN}, {v2(S1)} offset:{L_LN}")
    stamp(4)
    A("s_branch L_eentry")
    poll(Z, vGE, [WS_E, WS_C], sT10, 0x3ff, Z + 8, alt=(WS_EF - WS_E, efast) if efast else None, entry="L_eentry")
    for i in range(8):
        A(f"v_and_b32 v{Z+i}, s{sM10}, v{Z+i}")
    for R in (Z, Z + 4):
        A(f"v_permlane32_swap_b32 v{R}, v{R+2}")
        A(f"v_permlane32_swap_b32 v{R+1}, v{R+3}")
    for R in (Z, Z + 4):
        A(f"v_pk_add_f32 {v2(R)}, {v2(R)}, {v2(R+2)}")
    for R in (Z, Z + 4):
        A(f"v_permlane16_swap_b32 v{R}, v{R+1}")
    for R in (Z, Z + 4):
        A(f"v_add_f32 v{R}, v{R}, v{R+1}")
    for R in (Z, Z + 4):
        A(f"v_add_f32_dpp v{R}, v{R}, v{R} row_ror:8 {DPPALL}")
    A(f"ds_write_b32 v{vLW}, v{Z} offset:{L_GP+1024}")
    A(f"ds_write_b32 v{vLW}, v{Z+4} offset:{L_GP+1536}")
    A("s_waitcnt lgkmcnt(0)")
    A("s_barrier")
    stamp(10)
    A(f"ds_read_b128 {v4(H_+12)}, v{vZ} offset:{L_LN}")
    A(f"ds_read_b128 {v4(H_+16)}, v{vZ} offset:{L_LN+16}")
    for k in range(2):
        A(f"ds_read2_b32 {v2(Z+2*k)}, v{vLE} offset0:{64*k} offset1:{64*k+32}")
        A(f"ds_read2_b32 {v2(Z+4+2*k)}, v{vLE} offset0:{128+64*k} offset1:{128+64*k+32}")
    A("s_waitcnt lgkmcnt(4)")
    MEAN, VAR = H_ + 8, H_ + 9
    A(f"v_pk_add_f32 {v2(MEAN)}, {v2(H_+12)}, {v2(H_+14)}")
    A(f"v_pk_add_f32 {v2(H_+10)}, {v2(H_+16)}, {v2(H_+18)}")
    A(f"v_pk_add_f32 {v2(MEAN)}, {v2(MEAN)}, {v2(H_+10)}")
    A(f"v_mul_f32 v{MEAN}, 0x3e800000, v{MEAN}")
    A(f"v_mul_f32 v{VAR}, 0x3b800000, v{VAR}")
    for k in range(4):
        A(f"v_sub_f32 v{H_+12+2*k}, v{H_+12+2*k}, v{MEAN}")
    for k in range(4):
        A(f"v_fmac_f32 v{VAR}, v{H_+12+2*k}, v{H_+12+2*k}")
    A(f"v_mul_f32 v{VAR}, 0x3e800000, v{VAR}")
    MB, RS = H_ + 22, H_ + 23
    ln_finish(MEAN, VAR, MB, RS)
    A("s_waitcnt lgkmcnt(0)")
    Gv, Uv = Z, Z + 2
    for k in range(4):
        A(f"v_add_f32 v{Z+2*k}, v{Z+2*k}, v{Z+2*k+1}")
    A(f"v_fma_f32 v{Gv}, -v{MB}, v{Z+4}, v{Gv}")
    A(f"v_fma_f32 v{Uv}, -v{MB}, v{Z+6}, v{Uv}")
    A(f"v_mul_f32 v{Gv}, v{Gv}, v{RS}")
    A(f"v_mul_f32 v{Uv}, v{Uv}, v{RS}")
    rbf(Gv, Gv)
    rbf(Uv, Uv)
    T1, T2 = Z + 1, Z + 3
    A(f"v_mul_f32 v{T1}, v{Gv}, v{Gv}")
    A(f"v_mul_f32 v{T1}, v{T1}, v{Gv}")
    A(f"v_mov_b32 v{T2}, v{Gv}")
    A(f"v_fmac_f32 v{T2}, 0x3d372713, v{T1}")
    A(f"v_mul_f32 v{T2}, 0xc0135761, v{T2}")
    A(f"v_exp_f32 v{T2}, v{T2}")
    A(f"v_add_f32 v{T2}, 1.0, v{T2}")
    A(f"v_rcp_f32 v{T2}, v{T2}")
    A(f"v_mul_f32 v{Gv}, v{Gv}, v{T2}")
    rbf(Gv, Gv)
    A(f"v_mul_f32 v{Gv}, v{Gv}, v{Uv}")
    pack_pairs(Gv, Z + 4)
    gemv_publish(vWd, 8, lambda p: (Z + 4, 2 * p))
    stamp(14)
    A("s_branch L_end")
    A.label("L_final0")
    if opt.get("wb", 0):
        A(f"s_cmp_lg_u32 s{sA}, 15")
        A("s_cbranch_scc1 L_end")
        A(f"s_cmp_lg_u32 s{sHW}, 0")
        A("s_cbranch_scc1 L_end")
        A.vm = []
        if opt["wb"] & 1:
            A("buffer_wbl2 sc1")
            A("s_waitcnt vmcnt(0)")
        if opt["wb"] & 2:
            A(f"v_subrev_u32 v{vGE}, 256, v{vGE}")
            poll(Z, vGE, [WS_E, WS_E + 8 * 3584], sT10, 0x3ff, Z + 8, sleep=2)
            A("buffer_wbl2 sc1")
    A("s_branch L_end")

    A.label("L_roleM")
    A.vm = []
    A("s_setprio 3")
    A(f"s_lshl_b32 s{sT0}, s{sG}, 5")
    A(f"s_add_u32 s{sRI}, s{sRI}, s{sT0}")
    mk_srd(rW1, 22, 0 if opt.get("noq") else 0x800000)
    XR = vWa + 64
    A(f"v_lshlrev_b32 v{vT}, 5, v{vL}")
    A(f"buffer_load_dwordx4 {v4(XR)}, v{vT}, {srd(rX)}, 0 offen", "x")
    A(f"buffer_load_dwordx4 {v4(XR+4)}, v{vT}, {srd(rX)}, 0 offen offset:16", "x")
    A(f"v_lshrrev_b32 v{vT+1}, 2, v{vL}")
    A(f"v_lshlrev_b32 v{vT+1}, 4, v{vT+1}")
    A(f"s_lshl_b32 s{sT0}, s{sHW}, 8")
    A(f"v_add_u32 v{vT+1}, s{sT0}, v{vT+1}")
    A(f"v_lshlrev_b32 v{vT+2}, 1, v{vT+1}")
    stq = 8 if opt.get("stagq", True) else 0
    A(f"s_and_b32 s{sT2}, s{sRI}, 1")
    A(f"s_mul_i32 s{sT3}, s{sT2}, {2*stq}")
    A(f"s_sub_u32 s{sT0}, 16, s{sT3}")
    A(f"buffer_load_dwordx4 {v4(XR+8)}, v{vT+2}, {srd(rX)}, s{sT3} offen", "x")
    A(f"buffer_load_dwordx4 {v4(XR+12)}, v{vT+2}, {srd(rX)}, s{sT0} offen", "x")
    A(f"v_lshlrev_b32 v{vT+2}, 13, v{vT+1}")
    A(f"v_and_b32 v{vT+3}, 3, v{vL}")
    A(f"v_lshl_add_u32 v{vT+2}, v{vT+3}, 4, v{vT+2}")
    A(f"s_lshl_b32 s{sT1}, s{sRI}, 6")
    A(f"s_mul_i32 s{sT2}, s{sT2}, {stq*8192}")
    A(f"s_sub_u32 s{sT3}, s{sT1}, s{sT2}")
    A(f"s_add_u32 s{sT1}, s{sT1}, s{sT2}")
    for i in range(16):
        A(f"s_add_u32 s{sT0}, s{sT3 if (i & 8) else sT1}, {i*8192}")
        A(f"buffer_load_dwordx4 {v4(vWa+4*i)}, v{vT+2}, {srd(rW1)}, s{sT0} offen{ntq}", f"wq{i//2}")
    if opt.get("qbar_early", True):
        A("s_barrier")
    A.wait_vm("x")
    F = XR + 16
    for i in range(8):
        unpack(F + 2 * i, F + 2 * i + 1, XR + i)
    MB, RD = XR + 32, XR + 33
    ln_stats([F + i for i in range(16)], XR + 34, XR + 35, XR + 36, MB, RD)
    XP = XR + 40
    for p in range(8):
        unpack(XR + 38, XR + 39, XR + 8 + p)
        ln_apply_pair(XP + p, XR + 38, XR + 39, MB, RD)
    for p in range(8):
        A.wait_vm(f"wq{p}")
        for t in range(4):
            a = vWa + (2 * p) * 4 + t
            b = vWa + (2 * p + 1) * 4 + t
            A(f"v_perm_b32 v{Z+8+2*t}, v{b}, v{a}, s{sPLO}")
            A(f"v_perm_b32 v{Z+8+2*t+1}, v{b}, v{a}, s{sPHI}")
        for c in range(8):
            src = "0" if p == 0 else f"v{Z+c}"
            A(f"v_dot2_f32_bf16 v{Z+c}, v{Z+8+c}, v{XP+p}, {src}")
    red8_rows(Z)
    for r in (8, 4):
        for c in range(2):
            A(f"v_add_f32_dpp v{Z+c}, v{Z+c}, v{Z+c} row_ror:{r} {DPPALL}")
    A(f"v_and_b32 v{vT+3}, 3, v{vL}")
    A(f"v_lshlrev_b32 v{vT+3}, 5, v{vT+3}")
    A(f"v_lshl_add_u32 v{vT+3}, v{vGq}, 3, v{vT+3}")
    A(f"s_lshl_b32 s{sT0}, s{sHW}, 7")
    A(f"v_add_u32 v{vT+3}, s{sT0}, v{vT+3}")
    A(f"ds_write_b64 v{vT+3}, {v2(Z)} offset:{L_QPART}")
    A("s_waitcnt lgkmcnt(0)")
    if not opt.get("qbar_early", True):
        A("s_barrier")
    tags()
    lds_arrive(L_CNTQ, sT0)
    A(f"s_cmp_lg_u32 s{sT0}, 3")
    A("s_cbranch_scc1 L_qpub_done")
    A("s_mov_b64 exec, 0xff")
    for w in range(4):
        A(f"ds_read_b128 {v4(Z+4*w)}, v{vOV} offset:{L_QPART+128*w}")
    A("s_waitcnt lgkmcnt(0)")
    for st in (2, 1):
        for w in range(st):
            for c in range(4):
                A(f"v_add_f32 v{Z+4*w+c}, v{Z+4*w+c}, v{Z+4*(w+st)+c}")
    for c in range(4):
        rbf(Z + c, Z + c)
        A(f"v_or_b32 v{Z+c}, s{sT16}, v{Z+c}")
    A(f"s_lshl_b32 s{sT0}, s{sRI}, 7")
    A(f"s_add_u32 s{sT0}, s{sT0}, {WS_Q}")
    A(f"buffer_store_dwordx4 {v4(Z)}, v{vOV}, {srd(rWS)}, s{sT0} offen sc1")
    A("s_mov_b64 exec, -1")
    A.label("L_qpub_done")
    A.vm = []
    stamp(1)
    A("s_setprio 0")
    A(f"s_mul_i32 s{sRI}, s{sX_}, 14")
    A(f"s_add_u32 s{sRI}, s{sRI}, s{sA}")
    A(f"s_sub_u32 s{sRI}, s{sRI}, 16")
    A(f"s_cmp_lt_u32 s{sHW}, 2")
    A(f"s_cselect_b32 s{rW1}, s28, s30")
    A(f"s_cselect_b32 s{rW1+1}, s29, s31")
    A(f"s_and_b32 s{rW1+1}, s{rW1+1}, 0xffff")
    A(f"s_mov_b32 s{rW1+2}, {hex(0 if opt.get('now') else 1024*3584*2)}")
    A(f"s_mov_b32 s{rW1+3}, 0x20000")
    common_addr()
    sKC, sCG = 16, 17
    A(f"s_sub_u32 s{sKC}, s{sA}, 16")
    A(f"v_lshrrev_b32 v{vA2}, 5, v{vL}")
    A(f"v_mul_u32_u24 v{vA2}, {32*7168}, v{vA2}")
    A(f"v_lshl_add_u32 v{vA2}, v{vC4}, 2, v{vA2}")
    A(f"s_mul_i32 s{sKB}, s{sKC}, {64*7168}")
    A(f"s_mul_i32 s{sT2}, s{sX_}, 896")
    A(f"s_add_u32 s{sKB}, s{sKB}, s{sT2}")
    A(f"s_and_b32 s{sT3}, s{sHW}, 1")
    A(f"s_lshl_b32 s{sT2}, s{sT3}, 9")
    A(f"s_add_u32 s{sKB}, s{sKB}, s{sT2}")
    A(f"s_cmp_eq_u32 s{sT3}, 0")
    A(f"s_cselect_b32 s{sMK}, -1, 0x00ffffff")
    A(f"s_mov_b32 s{sMK+1}, s{sMK}")
    gu1 = opt.get("gu1", 0)

    gst = {"done": 0}
    CS, vONE = 200, 208
    for c in range(8):
        A(f"v_mov_b32 v{CS+c}, 0")
    A(f"v_mov_b32 v{vONE}, 0x3f803f80")

    def gu_perm(p):
        for t in range(4):
            a = vWa + 8 + (2 * p) * 4 + t
            b = vWa + 8 + (2 * p + 1) * 4 + t
            A(f"v_perm_b32 v{vWa+(2*p)*4+t}, v{b}, v{a}, s{sPLO}")
            A(f"v_perm_b32 v{vWa+(2*p+1)*4+t}, v{b}, v{a}, s{sPHI}")
        for c in range(8):
            w = vWa + (2 * p + (c & 1)) * 4 + (c >> 1)
            A(f"v_dot2c_f32_bf16 v{CS+c}, v{vONE}, v{w}")
        gst["done"] = p + 1

    def gu_loads(rng, d):
        for i in rng:
            A(f"s_add_u32 s{sT0}, s{sKB}, {i*7168}")
            throttle(d)
            A(f"s_mov_b64 exec, s[{sMK}:{sMK+1}]")
            A(f"buffer_load_dwordx4 {v4(vWa+8+4*i)}, v{vA2}, {srd(rW1)}, s{sT0} offen{ntg}", f"gu{i//2}")
            A("s_mov_b64 exec, -1")
            p = gst["done"]
            if 2 * p + 1 < i and f"gu{p}" not in A.vm:
                gu_perm(p)

    def gu_finish(n):
        while gst["done"] < n // 2:
            A.wait_vm(f"gu{gst['done']}")
            gu_perm(gst["done"])

    gu_loads(range(gu1), opt.get("DG1", 2))
    gu_finish(gu1)
    A(f"s_lshl_b32 s{sPUB}, s{sX_}, 4")
    A(f"s_add_u32 s{sPUB}, s{sPUB}, s{sKC}")
    A(f"s_mul_i32 s{sPUB}, s{sPUB}, 3584")
    A(f"s_lshr_b32 s{sT1}, s{sHW}, 1")
    A(f"s_mul_i32 s{sT1}, s{sT1}, 1792")
    A(f"s_add_u32 s{sPUB}, s{sPUB}, s{sT1}")
    A(f"s_lshl_b32 s{sT1}, s{sT3}, 10")
    A(f"s_add_u32 s{sPUB}, s{sPUB}, s{sT1}")
    A(f"s_add_u32 s{sPUB}, s{sPUB}, {WS_E}")
    A(f"v_and_b32 v{vGE}, 7, v{vL}")
    A(f"v_lshlrev_b32 v{vGE}, 4, v{vGE}")
    A(f"v_lshrrev_b32 v{vT}, 5, v{vL}")
    A(f"v_lshl_add_u32 v{vGE}, v{vT}, 7, v{vGE}")
    A(f"v_bfe_u32 v{vT+1}, v{vL}, 3, 2")
    A(f"v_lshl_add_u32 v{vGA}, v{vT+1}, 8, v{vGE}")
    A(f"s_lshl_b32 s{sT1}, s{sX_}, 15")
    A(f"s_lshl_b32 s{sT2}, s{sKC}, 11")
    A(f"s_add_u32 s{sT1}, s{sT1}, s{sT2}")
    A(f"v_add_u32 v{vGA}, s{sT1}, v{vGA}")
    XH = 212
    A(f"v_lshrrev_b32 v{vT+2}, 1, v{vGE}")
    A(f"s_lshl_b32 s{sT0}, s{sKC}, 7")
    A(f"buffer_load_dwordx2 {v2(XH+4)}, v{vT+2}, {srd(rX)}, s{sT0} offen")
    A(f"s_lshl_b32 s{sCG}, s{sX_}, 12")
    A(f"s_lshl_b32 s{sT2}, s{sKC}, 8")
    A(f"s_add_u32 s{sCG}, s{sCG}, s{sT2}")
    A(f"s_add_u32 s{sCG}, s{sCG}, {WS_H}")
    A(f"s_lshl_b32 s{sT0}, s{sKC}, 1")
    A(f"s_sub_u32 s{sT0}, s{sX_}, s{sT0}")
    A(f"s_and_b32 s22, s{sT0}, 7")
    A(f"s_lshl_b32 s{sRID}, s{sKC}, 1")
    A(f"s_add_u32 s{sRID}, s{sRID}, s22")
    A(f"s_and_b32 s{sRID}, s{sRID}, 31")
    A(f"s_lshl_b32 s{sT0}, s{sHW}, 17")
    A(f"s_lshl_b32 s{sT1}, s{sRID}, 7")
    A(f"s_add_u32 s{sT0}, s{sT0}, s{sT1}")
    A(f"v_add_u32 v{vGB}, s{sT0}, v{vA1}")
    A(f"v_and_b32 v{vLB}, 7, v{vL}")
    A(f"v_lshlrev_b32 v{vOA}, 3, v{vLB}")
    A(f"v_lshlrev_b32 v{vLB}, 4, v{vLB}")
    A("s_waitcnt vmcnt(0)")
    unpack(XH, XH + 1, XH + 4)
    unpack(XH + 2, XH + 3, XH + 5)
    zero_acc()
    service("M")
    read_loc()
    pretouch(WS_PT + [(vA2, rW1, (sKB, i * 7168)) for i in (0, 8, 16, 24, 31)])
    g0 = opt.get("g0", 0)
    if g0:
        lds_wait(L_FLAGW, 4, opt.get("wcnt", 4))
        gu_loads(range(gu1, gu1 + g0), 0)
        gu1 += g0
    ga = opt.get("gu_after", "o")
    if ga == "flag":
        lds_wait(L_FLAGW, 4, opt.get("wcnt", 4))
    elif ga == "o":
        lds_wait(L_CNTO, 4, 4)
    else:
        lds_wait(L_CNTP, 4, 4)
    gu2 = gu1
    if ga == "g":
        gu2 = opt.get("gu2", gu1)
        gu_loads(range(gu1, gu2), opt.get("DLG", 12))
        A(f"s_cmp_lg_u32 s{sHW}, 0")
        A("s_cbranch_scc1 L_gwait")
        svm = list(A.vm)
        A(f"v_lshlrev_b32 v{vT+4}, 12, v{vL}")
        A(f"s_lshl_b32 s{sT1}, s{sG}, 18")
        A(f"s_lshl_b32 s{sT2}, s{sC}, 6")
        A(f"s_add_u32 s{sT1}, s{sT1}, s{sT2}")
        A(f"v_add_u32 v{vT+4}, s{sT1}, v{vT+4}")
        poll(Z, vT + 4, [WS_A], sT10, 0x3ff, Z + 8, sleep=opt.get("sleepG", 6))
        lds_setflag(L_FLAGG)
        A.label("L_gwait")
        A.vm = svm
        lds_wait(L_FLAGG, 2)
    stamp(3)
    if "d" in opt.get("pt", ""):
        A("s_cmp_ge_u32 s22, 2")
        A("s_cbranch_scc1 L_nopt")
        svm = list(A.vm)
        for i in range(4):
            A(f"s_mov_b32 s{sT0}, {hex(WS_D + i * 32768)}")
            A(f"buffer_load_dwordx4 {v4(220+4*i)}, v{vGB}, {srd(rWS)}, s{sT0} offen sc1")
        A.label("L_nopt")
        A.vm = svm
    gu_loads(range(gu2, 32), opt.get("DLG", 12))
    stamp(4)
    A(f"s_add_u32 s{sKB}, s{sPUB}, {WS_EF - WS_E}")
    A(f"s_add_u32 s20, s{sPUB}, {WS_C - WS_E}")
    A(f"s_add_u32 s21, s{sKB}, {WS_C - WS_E}")

    def cs_final():
        for c in range(4):
            A(f"v_permlane32_swap_b32 v{CS+c}, v{CS+c+4}")
        for c in range(0, 4, 2):
            A(f"v_pk_add_f32 {v2(CS+c)}, {v2(CS+c)}, {v2(CS+c+4)}")
        for c in range(4):
            tag10(CS + c)

    bpipe = opt.get("bpipe", True)
    if bpipe:
        A(f"v_mov_b32 v{Z+12}, s{sT10}")
        for i, so in enumerate([WS_B2, WS_B2 + 1024]):
            A(f"s_mov_b32 s{sT0}, {hex(so)}")
            A(f"buffer_load_dwordx4 {v4(Z+4*i)}, v{vGA}, {srd(rWS)}, s{sT0} offen sc1")
    gu_finish(32)
    cs_final()
    if opt.get("csafe", False):
        A(f"s_mov_b64 exec, s[{sMK}:{sMK+1}]")
        A(f"buffer_store_dwordx4 {v4(CS)}, v{vA3}, {srd(rWS)}, s20 offen sc1")
        A("s_mov_b64 exec, -1")
        A("s_waitcnt vmcnt(1)")
        A("s_branch L_bentry2")
    stamp(6)
    if bpipe:
        A("s_branch L_bentry")
    poll(Z, vGA, [WS_B2, WS_B2 + 1024], sT10, 0x3ff, Z + 8, entry="L_bentry" if bpipe else None)
    if not opt.get("csafe", False):
        A(f"s_mov_b64 exec, s[{sMK}:{sMK+1}]")
        store_loc(CS, vA3, 20)
        A("s_mov_b64 exec, -1")
    stamp(13)
    for i in range(8):
        A(f"v_and_b32 v{Z+i}, s{sM10}, v{Z+i}")
    for c in range(0, 4, 2):
        A(f"v_pk_add_f32 {v2(Z+c)}, {v2(Z+c)}, {v2(Z+4+c)}")
    for c in range(4):
        A(f"v_add_f32_dpp v{Z+c}, v{Z+c}, v{Z+c} row_ror:8 {DPPALL}")
    for c in range(4):
        A(f"v_mov_b32 v{Z+4+c}, v{Z+c}")
    for c in range(4):
        A(f"v_permlane16_swap_b32 v{Z+4+c}, v{Z+c}")
    for c in range(0, 4, 2):
        A(f"v_pk_add_f32 {v2(Z+c)}, {v2(Z+c)}, {v2(Z+4+c)}")
    A(f"v_cvt_pk_bf16_f32 v{Z+4}, v{Z}, v{Z+1}")
    A(f"v_cvt_pk_bf16_f32 v{Z+5}, v{Z+2}, v{Z+3}")
    unpack(Z, Z + 1, Z + 4)
    unpack(Z + 2, Z + 3, Z + 5)
    for c in range(0, 4, 2):
        A(f"v_pk_add_f32 {v2(Z+c)}, {v2(Z+c)}, {v2(XH+c)}")
    A(f"v_cvt_pk_bf16_f32 v{Z+12}, v{Z}, v{Z+1}")
    A(f"v_cvt_pk_bf16_f32 v{Z+13}, v{Z+2}, v{Z+3}")
    A(f"s_cmp_lg_u32 s{sHW}, 3")
    A("s_cbranch_scc1 L_hrep")
    A(f"v_mov_b32 v{Z+8}, s{sT16}")
    for k in range(2):
        A(f"v_lshl_or_b32 v{Z+2*k}, v{Z+12+k}, 16, v{Z+8}")
        A(f"v_and_or_b32 v{Z+2*k+1}, v{Z+12+k}, s{sM16}, v{Z+8}")
    A("s_mov_b32 exec_lo, 0xff")
    A("s_mov_b32 exec_hi, 0xff")
    store_loc(Z, vGE, sCG)
    A("s_mov_b64 exec, -1")
    A.label("L_hrep")
    gemv_publish(vWa, 16, lambda p: (Z + 12 + (p & 1), p >> 1), True)
    stamp(12)
    A("s_cmp_ge_u32 s22, 2")
    A("s_cbranch_scc1 L_end")
    HH = XH
    unpack(HH, HH + 1, Z + 12)
    unpack(HH + 2, HH + 3, Z + 13)
    A("s_cmp_eq_u32 s22, 0")
    A("s_cselect_b32 s24, 0xff, 0")
    A("s_cselect_b32 s25, 0, 0xff")
    if opt.get("dback", False):
        A("s_waitcnt vmcnt(0)")
    poll(Z, vGB, [WS_D + i * 32768 for i in range(4)], sT10, 0x3ff, Z + 16, {1: 0xffff, 3: 0xffff})
    for i in range(16):
        A(f"v_and_b32 v{Z+i}, s{sM10}, v{Z+i}")
    for (d_, s_) in ((0, 4), (8, 12), (0, 8)):
        for c in range(0, 4, 2):
            A(f"v_pk_add_f32 {v2(Z+d_+c)}, {v2(Z+d_+c)}, {v2(Z+s_+c)}")
    red4_to_lds(vLW, 1536)
    A(f"s_cmp_lg_u32 s{sHW}, 0")
    A("s_cbranch_scc1 L_end")
    for w in range(4):
        A(f"ds_read_b128 {v4(Z+4*w)}, v{vLB} offset:{L_GP+1536+128*w}")
    A(f"s_lshl_b32 s{sT0}, s{sRID}, 6")
    A("s_waitcnt lgkmcnt(0)")
    for (d_, s_) in ((0, 4), (8, 12), (0, 8)):
        for c in range(0, 4, 2):
            A(f"v_pk_add_f32 {v2(Z+d_+c)}, {v2(Z+d_+c)}, {v2(Z+s_+c)}")
    A(f"v_cvt_pk_bf16_f32 v{Z+4}, v{Z}, v{Z+1}")
    A(f"v_cvt_pk_bf16_f32 v{Z+5}, v{Z+2}, v{Z+3}")
    unpack(Z, Z + 1, Z + 4)
    unpack(Z + 2, Z + 3, Z + 5)
    for c in range(0, 4, 2):
        A(f"v_pk_add_f32 {v2(Z+c)}, {v2(Z+c)}, {v2(HH+c)}")
    A(f"v_cvt_pk_bf16_f32 v{Z+4}, v{Z}, v{Z+1}")
    A(f"v_cvt_pk_bf16_f32 v{Z+5}, v{Z+2}, v{Z+3}")
    A("s_mov_b64 exec, s[24:25]")
    A(f"buffer_store_dwordx2 {v2(Z+4)}, v{vOA}, {srd(rOUT)}, s{sT0} offen{pol('pout', '')}")
    A("s_mov_b64 exec, -1")
    stamp(15)
    A(f"s_cmp_lg_u32 s{sRID}, 0")
    A("s_cbranch_scc1 L_end")
    A(f"v_mov_b32 v{Z}, s{sE}")
    A("s_mov_b64 exec, 1")
    A(f"buffer_store_dword v{Z}, v{vZ}, {srd(rWS)}, 0 offen offset:{WS_EPOCH} sc1")
    A("s_mov_b64 exec, -1")

    A.label("L_end")
    if stamps:
        A("s_mov_b64 exec, 1")
        A(f"s_lshl_b32 s{sT0}, s2, 3")
        A(f"s_add_u32 s{sT0}, s{sT0}, s{sW}")
        A(f"s_lshl_b32 s{sT0}, s{sT0}, 6")
        A(f"s_add_u32 s{sT0}, s{sT0}, {WS_STAMP}")
        for q in range(4):
            for k in range(4):
                A(f"v_mov_b32 v{vT+k}, s{sSTAMP+4*q+k}")
            A(f"buffer_store_dwordx4 {v4(vT)}, v{vZ}, {srd(rWS)}, s{sT0} offen offset:{16*q}")
            A("s_nop 2")
    A.label("L_exit")
    A("s_endpgm")
    A.raw('.section .rodata,"a"')
    A.raw(".p2align 6")
    A.raw(f".amdhsa_kernel {NAME}_kernel")
    A.raw("  .amdhsa_next_free_vgpr 256")
    A.raw("  .amdhsa_next_free_sgpr 102")
    A.raw("  .amdhsa_accum_offset 256")
    A.raw("  .amdhsa_group_segment_fixed_size 0")
    A.raw("  .amdhsa_kernarg_size 96")
    A.raw("  .amdhsa_user_sgpr_count 2")
    A.raw("  .amdhsa_user_sgpr_kernarg_segment_ptr 1")
    A.raw("  .amdhsa_system_sgpr_workgroup_id_x 1")
    A.raw("  .amdhsa_float_denorm_mode_32 3")
    A.raw(".end_amdhsa_kernel")
    return A.text()


if __name__ == "__main__":
    import json
    opt = json.loads(sys.argv[2]) if len(sys.argv) > 2 else {}
    out = sys.argv[1] if len(sys.argv) > 1 else "k.s"
    open(out, "w").write(gen(opt))
```

```python
import sys
from asmlib import Asm

NAME = "sequential_preLN__gqa_block_cached__glu_gated_geglu__decode"

HEADER = """; Kernarg layout for this problem (96 bytes, ptrs only, base s[0:1]):
; Generated by a script of my own. One persistent launch, one 8-wave workgroup per CU (wg = 8a + x).
"""

STAMP_NAMES = ["start", "qpub", "qgath", "kiss", "qrdy", "qk", "wland", "s_glob", "viss", "prdy", "pv", "apub",
               "hopA", "h", "hopC", "end"]

WS_EPOCH = 0x0
WS_Q = 0x1000
WS_S = 0x8000
WS_H = 0x10000
WS_HINT = 0x20000
WS_A = 0x100000
WS_B = 0x200000
WS_D = 0x300000
WS_STAMP = 0x400000
WS_B2 = 0x380000
FAST_B = 0
FAST_H = 0
WS_E = 0x500000
WS_C = 0x580000
WS_EF = WS_E
WS_SIZE = 0x600000

L_CNTQ, L_FLAGQ, L_CNTS, L_FLAGS = 0, 4, 8, 12
L_FLAGW = 16
L_CNTO = 20
L_CNTB = 24
L_CNTP = 28
L_PRGK, L_PRGV, L_FLAGG = 32, 36, 40
L_LVL = 44
L_LOC = 52
L_CK = 48
L_Q = 0x200
L_SP = 0xC00
L_SG = 0x1400
L_F = 0x1480
L_LN = 0x1800
L_GP = 0x2000
L_QPART = 0x2C00
L_O = 0x3000
L_KV = 0x8000
NLDS = 3
LDS_BYTES = L_KV + 4 * NLDS * 8192

sW = 3
sX_, sA, sJ, sRI, sG, sC = 4, 5, 6, 7, 8, 9
sT16, sT10 = 10, 11
sPLO, sPHI = 12, 13
sM10, sM16 = 14, 15
rX, rK, rV, rW1, rW2, rW3, rOUT, rWS = 40, 44, 48, 52, 56, 60, 68, 72
sTO, sKB, sE, sLOG2E = 76, 77, 78, 79
sSTAMP = 80
sT0, sT1, sT2, sT3 = 96, 97, 98, 99
sP0, sP1 = 100, 101
sSCALE, sLDSB, sPUB, sHW = 64, 65, 66, 67

vL, vN, vGq, vOK, vOV, vM, vH, vZ = 0, 1, 2, 3, 4, 5, 6, 7
vT = 8
vQ = 16
vS = 32
vR = 96


def srd(r):
    return f"s[{r}:{r+3}]"


def v4(r):
    return f"v[{r}:{r+3}]"


def v2(r):
    return f"v[{r}:{r+1}]"


DPPALL = "row_mask:0xf bank_mask:0xf"


def gen(opt):
    A = Asm()
    stamps = opt.get("stamps", False)
    pol = lambda k, d: (" " + opt.get(k, d)).rstrip()
    ntq, nto, ntg, ntd = pol("pq", ""), pol("po", ""), pol("pg", "nt"), pol("pd", "nt")
    ntk, ntv = pol("pk", "nt"), pol("pv", "nt")
    D = opt.get("D", 5)
    DC = opt.get("DC", 7)
    DG = opt.get("DG", 1)

    def stamp(k):
        if not stamps:
            return
        A(f"s_memrealtime s[{sP0}:{sP1}]")
        A("s_waitcnt lgkmcnt(0)")
        A(f"s_mov_b32 s{sSTAMP+k}, s{sP0}")

    def mk_srd(r, ptr, size):
        A(f"s_mov_b32 s{r}, s{ptr}")
        A(f"s_and_b32 s{r+1}, s{ptr+1}, 0xffff")
        A(f"s_mov_b32 s{r+2}, {hex(size)}")
        A(f"s_mov_b32 s{r+3}, 0x20000")

    def rbf(dst, src):
        A(f"v_cvt_pk_bf16_f32 v{dst}, v{src}, v{src}")
        A(f"v_and_b32 v{dst}, s{sM16}, v{dst}")

    def row_red(op, x, rors):
        for r in rors:
            A(f"{op}_dpp v{x}, v{x}, v{x} row_ror:{r} {DPPALL}")

    def xrow_red(op, x, t):
        A(f"v_mov_b32 v{t}, v{x}")
        A(f"v_permlane16_swap_b32 v{t}, v{x}")
        A(f"{op} v{x}, v{x}, v{t}")
        A(f"v_mov_b32 v{t}, v{x}")
        A(f"v_permlane32_swap_b32 v{t}, v{x}")
        A(f"{op} v{x}, v{x}, v{t}")

    def wave_sum(x, t):
        row_red("v_add_f32", x, (8, 4, 2, 1))
        xrow_red("v_add_f32", x, t)

    def ln_finish(mean, var, out_mb, out_r):
        rbf(out_mb, mean)
        rbf(var, var)
        A(f"v_add_f32 v{var}, 0x3727c5ac, v{var}")
        rbf(var, var)
        A(f"v_sqrt_f32 v{var}, v{var}")
        rbf(var, var)
        A(f"v_rcp_f32 v{out_r}, v{var}")

    def ln_stats(vals, t0, t1, t2, out_mb, out_r):
        A(f"v_add_f32 v{t0}, v{vals[0]}, v{vals[1]}")
        A(f"v_add_f32 v{t1}, v{vals[2]}, v{vals[3]}")
        for i in range(4, 16, 2):
            A(f"v_add_f32 v{t0}, v{t0}, v{vals[i]}")
            A(f"v_add_f32 v{t1}, v{t1}, v{vals[i+1]}")
        A(f"v_add_f32 v{t0}, v{t0}, v{t1}")
        wave_sum(t0, t1)
        A(f"v_mul_f32 v{t0}, 0x3a800000, v{t0}")
        A(f"v_sub_f32 v{t1}, v{vals[0]}, v{t0}")
        A(f"v_mul_f32 v{t2}, v{t1}, v{t1}")
        for i in range(1, 16):
            A(f"v_sub_f32 v{t1}, v{vals[i]}, v{t0}")
            A(f"v_fmac_f32 v{t2}, v{t1}, v{t1}")
        wave_sum(t2, t1)
        A(f"v_mul_f32 v{t2}, 0x3a800000, v{t2}")
        ln_finish(t0, t2, out_mb, out_r)

    def ln_apply_pair(dst, a, b, mb, r):
        A(f"v_sub_f32 v{a}, v{a}, v{mb}")
        A(f"v_sub_f32 v{b}, v{b}, v{mb}")
        A(f"v_cvt_pk_bf16_f32 v{b}, v{a}, v{b}")
        A(f"v_lshlrev_b32 v{a}, 16, v{b}")
        A(f"v_and_b32 v{b}, s{sM16}, v{b}")
        A(f"v_mul_f32 v{a}, v{a}, v{r}")
        A(f"v_mul_f32 v{b}, v{b}, v{r}")
        A(f"v_cvt_pk_bf16_f32 v{dst}, v{a}, v{b}")

    def unpack(dlo, dhi, src):
        A(f"v_lshlrev_b32 v{dlo}, 16, v{src}")
        A(f"v_and_b32 v{dhi}, s{sM16}, v{src}")

    def perm_inplace(src, nrows, tmp):
        for p in range(nrows // 2):
            for t in range(4):
                a = src + (2 * p) * 4 + t
                b = src + (2 * p + 1) * 4 + t
                A(f"v_perm_b32 v{tmp+t}, v{b}, v{a}, s{sPHI}")
                A(f"v_perm_b32 v{a}, v{b}, v{a}, s{sPLO}")
            for t in range(4):
                A(f"v_mov_b32 v{src+(2*p+1)*4+t}, v{tmp+t}")

    def dots(acc, wp, xp, npairs):
        for p in range(npairs):
            for c in range(8):
                src = "0" if p == 0 else f"v{acc+c}"
                w = wp + (2 * p + (c & 1)) * 4 + (c >> 1)
                A(f"v_dot2_f32_bf16 v{acc+c}, v{w}, v{xp+p}, {src}")

    def red8_rows(acc):
        for c in range(4):
            A(f"v_permlane32_swap_b32 v{acc+c}, v{acc+c+4}")
        for c in range(4):
            A(f"v_add_f32 v{acc+c}, v{acc+c}, v{acc+c+4}")
        for c in range(2):
            A(f"v_permlane16_swap_b32 v{acc+c}, v{acc+c+2}")
        for c in range(2):
            A(f"v_add_f32 v{acc+c}, v{acc+c}, v{acc+c+2}")

    def tag10(r):
        if not opt.get("trunc", False):
            A(f"v_add_u32 v{r}, 0x200, v{r}")
        A(f"v_and_or_b32 v{r}, v{r}, s{sM10}, v{vTAG}")

    def lds_wait(off, sl=2, atleast=1):
        lp = A.newlabel("ldsw")
        dn = A.newlabel("ldsd")
        A.label(lp)
        A(f"ds_read_b32 v{vT}, v{vZ} offset:{off}")
        A("s_waitcnt lgkmcnt(0)")
        A(f"v_readfirstlane_b32 s{sT0}, v{vT}")
        A(f"s_cmp_ge_u32 s{sT0}, {atleast}")
        A(f"s_cbranch_scc1 {dn}")
        A(f"s_sleep {sl}")
        A(f"s_sub_u32 s{sTO}, s{sTO}, 1")
        A(f"s_cmp_lg_u32 s{sTO}, 0")
        A(f"s_cbranch_scc1 {lp}")
        A("s_branch L_end")
        A.label(dn)

    def lds_arrive(off, dst_s):
        A(f"v_mov_b32 v{vT+1}, 1")
        A("s_mov_b64 exec, 1")
        A(f"ds_add_rtn_u32 v{vT}, v{vZ}, v{vT+1} offset:{off}")
        A("s_waitcnt lgkmcnt(0)")
        A(f"v_readfirstlane_b32 s{dst_s}, v{vT}")
        A("s_mov_b64 exec, -1")

    def lds_inc(off):
        A(f"v_mov_b32 v{vT+1}, 1")
        A("s_mov_b64 exec, 1")
        A(f"ds_add_u32 v{vZ}, v{vT+1} offset:{off}")
        A("s_mov_b64 exec, -1")

    def lds_setflag(off):
        A(f"v_mov_b32 v{vT+1}, 1")
        A(f"ds_write_b32 v{vZ}, v{vT+1} offset:{off}")

    ool = []

    def poll(dst, voff, soffs, tagreg, mask, t, execs=None, sleep=0, alt=None, back=None, entry=None, hook=None):
        n = len(soffs)
        execs = execs or {}
        lp = A.newlabel("poll")
        rt = A.newlabel("pollr")
        if execs:
            A(f"s_mov_b64 s[{sP0}:{sP1}], -1")
        A.label(lp)
        for i in execs:
            for c in range(4):
                A(f"v_mov_b32 v{dst+4*i+c}, s{tagreg}")
        for i in range(n):
            A(f"s_mov_b32 s{sT0}, {hex(soffs[i])}")
            sk = None
            if i in execs:
                A(f"s_and_b32 exec_hi, exec_hi, {hex(execs[i])}")
                sk = A.newlabel("psk")
                A(f"s_cbranch_execz {sk}")
            vo = voff[i] if isinstance(voff, (list, tuple)) else voff
            A(f"buffer_load_dwordx4 {v4(dst+4*i)}, v{vo}, {srd(rWS)}, s{sT0} offen sc1")
            if i in execs:
                A.label(sk)
                A(f"s_mov_b64 exec, s[{sP0}:{sP1}]")
        if entry:
            A.label(entry)
        A("s_waitcnt vmcnt(0)")
        for i in range(4 * n):
            A(f"v_xor_b32 v{dst+i}, s{tagreg}, v{dst+i}")
        regs = [dst + i for i in range(4 * n)]
        k = 0
        while len(regs) > 1:
            nxt = []
            j = 0
            while j < len(regs):
                grp = regs[j:j + 3]
                if len(grp) == 1:
                    nxt.append(grp[0])
                else:
                    d = grp[0] if grp[0] >= t and grp[0] < t + 2 * n + 1 and not (dst <= grp[0] < dst + 4 * n) else None
                    if d is None:
                        d = t + k
                        k += 1
                    A(f"v_or3_b32 v{d}, v{grp[0]}, v{grp[1]}, v{grp[2]}" if len(grp) == 3 else f"v_or_b32 v{d}, v{grp[0]}, v{grp[1]}")
                    nxt.append(d)
                j += 3
            regs = nxt
        assert k <= 2 * n + 1
        r = regs[0]
        A(f"v_and_b32 v{r}, {hex(mask)}, v{r}")
        A(f"v_cmp_ne_u32 s[{sP0}:{sP1}], 0, v{r}")
        A("s_mov_b64 exec, -1")
        A(f"s_cmp_lg_u64 s[{sP0}:{sP1}], 0")
        A(f"s_cbranch_scc1 {rt}")
        ool.append((rt, lp, sleep))

    def emit_ool():
        for rt, lp, sleep in ool:
            A.label(rt)
            if sleep:
                A(f"s_sleep {sleep}")
            A(f"s_sub_u32 s{sTO}, s{sTO}, 1")
            A(f"s_cmp_eq_u32 s{sTO}, 0")
            A("s_cbranch_scc1 L_end")
            A(f"s_mov_b64 exec, s[{sP0}:{sP1}]")
            A(f"s_branch {lp}")
        ool.clear()

    def throttle(d):
        if d and len(A.vm) >= d:
            A(f"s_waitcnt vmcnt({d-1})")

    LV0 = opt.get("LV", [5, 6, 8, 8])
    LV1 = opt.get("LV1", [5, 7, 8, 8])
    tcount = [0]
    sLVL, sCLS = 36, 37

    def throttle2(on):
        if not on:
            return
        if on < 0:
            throttle(-on)
            return
        tcount[0] += 1
        LV = LV1 if tcount[0] & 1 else LV0
        if len(A.vm) >= LV[-1]:
            A(f"s_waitcnt vmcnt({LV[-1]-1})")
        sv = list(A.vm)
        lab = None
        for lv in range(len(LV) - 2, -1, -1):
            if len(sv) >= LV[lv] and LV[lv] < LV[lv + 1]:
                lab = lab or A.newlabel("th")
                A(f"s_cmp_gt_u32 s{sLVL}, {lv}")
                A(f"s_cbranch_scc1 {lab}")
                A(f"s_waitcnt vmcnt({LV[lv]-1})")
        if lab:
            A.label(lab)
        A.vm = sv

    def tok(item):
        return f"{item[0]}{item[1]}"

    st = {}

    def blk_reg(b):
        return vR + (b - NLDS) * 32

    def issue(item, d):
        kind, b, i = item
        ps = {("k", 0, 0): 2, ("k", 0, 4): 7, ("k", 1, 0): 1, ("k", 2, 0): 12, ("k", 4, 0): 13, ("k", 6, 0): 14, ("v", 2, 0): 6, ("v", 4, 0): 15}
        if item in ps and opt.get("pstamps", False):
            stamp(ps[item])
        idx = (0 if kind == "k" else 64) + 8 * b + i
        if opt.get("rank") and idx > 64 and idx < 64 + opt.get("rank_end", 64) and d:
            if i % 4 == 0:
                A(f"ds_read_b32 v{vT+7}, v{vZ} offset:{L_LVL}")
                st["pend"] = True
            elif st.get("pend"):
                A("s_waitcnt lgkmcnt(0)")
                A(f"v_readfirstlane_b32 s{sT1}, v{vT+7}")
                A(f"s_sub_u32 s{sT1}, s{sT1}, 1")
                A(f"s_cselect_b32 s{sLVL}, s{sLVL}, s{sT1}")
                st["pend"] = False
        if opt.get("rank") and idx == 64 + opt.get("rank_end", 64):
            A(f"s_mov_b32 s{sLVL}, {opt.get('rank_base', 1)}")
        blk = (0 if kind == "k" else 8) + b
        if opt.get("bt") and i == 0 and blk in set(opt["bt"]) and blk > 0:
            A(f"s_cmp_eq_u32 s35, {blk}")
            A(f"s_cselect_b32 s{sLVL}, s{sCLS}, s{sLVL}")
        if kind == "k":
            off = (i >> 2) * 4096 + ((i >> 1) & 1) * 512 + (i & 1) * 128
            va, rs, nt = vOK, rK, ntk
        else:
            off = i * 1024
            va, rs, nt = vOV, rV, ntv
        if b < NLDS:
            A(f"s_add_u32 s{sT0}, s{sKB}, {hex((b<<21) + off)}")
            A(f"s_add_u32 m0, s{sLDSB}, {hex(b*8192 + i*1024)}")
            throttle2(d)
            A(f"buffer_load_dwordx4 v{va}, {srd(rs)}, s{sT0} offen{nt} lds", tok(item))
        else:
            A(f"s_add_u32 s{sT0}, s{sKB}, {hex((b<<21) + (off & ~4095))}")
            throttle2(d)
            A(f"buffer_load_dwordx4 {v4(blk_reg(b)+4*i)}, v{va}, {srd(rs)}, s{sT0} offen offset:{off & 4095}{nt}",
              tok(item))

    vTAG = vH

    def tags():
        A(f"s_add_u32 s{sE}, s{sE}, 1")
        A(f"s_and_b32 s{sT16}, s{sE}, 0xffff")
        A(f"s_and_b32 s{sT10}, s{sE}, 0x3ff")
        A(f"v_mov_b32 v{vTAG}, s{sT10}")

    A.raw(HEADER.rstrip("\n"))
    A.raw(f"; @launch grid=(256,1,1) block=(512,1,1) lds={LDS_BYTES}")
    A.raw('.amdgcn_target "amdgcn-amd-amdhsa--gfx950"')
    A.raw(".text")
    A.raw(f".globl {NAME}_kernel")
    A.raw(".p2align 8")
    A.raw(f".type {NAME}_kernel,@function")
    A.raw(f"{NAME}_kernel:")
    A("s_cmp_ge_u32 s2, 256")
    A("s_cbranch_scc1 L_exit")
    A("s_load_dwordx16 s[16:31], s[0:1], 0")
    A("s_load_dwordx8 s[32:39], s[0:1], 64")
    if stamps:
        A(f"s_memrealtime s[{sP0}:{sP1}]")
        for k in range(16):
            A(f"s_mov_b32 s{sSTAMP+k}, 0")
    A(f"v_lshrrev_b32 v{vT}, 6, v0")
    A(f"v_and_b32 v{vL}, 63, v0")
    A(f"v_readfirstlane_b32 s{sW}, v{vT}")
    A(f"v_mov_b32 v{vZ}, 0")
    A(f"v_and_b32 v{vN}, 15, v{vL}")
    A(f"v_lshrrev_b32 v{vGq}, 4, v{vL}")
    for i in range(4):
        A(f"v_mov_b32 v{vT+i}, 0")
    A(f"s_cmp_lg_u32 s{sW}, 0")
    A("s_cbranch_scc1 L_nozero")
    A(f"ds_write_b128 v{vZ}, {v4(vT)}")
    A(f"ds_write_b128 v{vZ}, {v4(vT)} offset:16")
    A(f"ds_write_b128 v{vZ}, {v4(vT)} offset:32")
    A(f"ds_write_b128 v{vZ}, {v4(vT)} offset:48")
    A.label("L_nozero")
    A(f"s_and_b32 s{sX_}, s2, 7")
    A(f"s_lshr_b32 s{sA}, s2, 3")
    sWL = 35
    gmap = opt.get("gmap", "x")
    if gmap == "a2":
        A(f"s_and_b32 s{sG}, s{sA}, 3")
        A(f"s_lshr_b32 s{sT0}, s{sA}, 2")
        A(f"s_lshl_b32 s{sC}, s{sT0}, 3")
        A(f"s_add_u32 s{sC}, s{sC}, s{sX_}")
        A(f"s_lshl_b32 s{sRI}, s{sX_}, 2")
        A(f"s_add_u32 s{sRI}, s{sRI}, s{sT0}")
    else:
        A(f"s_lshr_b32 s{sG}, s{sX_}, 1")
        A(f"s_and_b32 s{sC}, s{sX_}, 1")
        A(f"s_lshl_b32 s{sRI}, s{sC}, 4")
        A(f"s_and_b32 s{sT0}, s{sA}, 15")
        A(f"s_add_u32 s{sRI}, s{sRI}, s{sT0}")
        A(f"s_lshl_b32 s{sC}, s{sC}, 5")
        A(f"s_add_u32 s{sC}, s{sC}, s{sA}")
    A(f"s_lshl_b32 s{sJ}, s{sG}, 6")
    A(f"s_add_u32 s{sJ}, s{sJ}, s{sC}")
    A(f"s_and_b32 s{sHW}, s{sW}, 3")
    A(f"s_mov_b32 s{sPLO}, 0x05040100")
    A(f"s_mov_b32 s{sPHI}, 0x07060302")
    A(f"s_mov_b32 s{sM10}, 0xfffffc00")
    A(f"s_mov_b32 s{sM16}, 0xffff0000")
    A(f"s_mov_b32 s{sTO}, 200000")
    A(f"s_mov_b32 s{sLOG2E}, 0x3fb8aa3b")
    A(f"s_mov_b32 s{sSCALE}, 0x3db504f3")
    A(f"s_lshl_b32 s{sKB}, s{sG}, 24")
    A(f"s_lshl_b32 s{sT0}, s{sC}, 2")
    A(f"s_add_u32 s{sT0}, s{sT0}, s{sHW}")
    A(f"s_lshl_b32 s{sT0}, s{sT0}, 13")
    A(f"s_add_u32 s{sKB}, s{sKB}, s{sT0}")
    A(f"s_mul_i32 s{sLDSB}, s{sHW}, {NLDS*8192}")
    A(f"s_add_u32 s{sLDSB}, s{sLDSB}, {L_KV}")
    A(f"v_and_b32 v{vT+4}, 3, v{vN}")
    A(f"v_lshlrev_b32 v{vT+4}, 10, v{vT+4}")
    A(f"v_bfe_u32 v{vT+5}, v{vN}, 2, 1")
    A(f"v_lshl_add_u32 v{vT+4}, v{vT+5}, 8, v{vT+4}")
    A(f"v_lshrrev_b32 v{vT+5}, 3, v{vN}")
    A(f"v_lshl_add_u32 v{vT+4}, v{vT+5}, 6, v{vT+4}")
    A(f"v_lshl_add_u32 v{vOK}, v{vGq}, 4, v{vT+4}")
    A(f"v_lshlrev_b32 v{vOV}, 4, v{vL}")
    A("s_waitcnt lgkmcnt(0)")
    if stamps:
        A(f"s_mov_b32 s{sSTAMP}, s{sP0}")
    A(f"s_load_dword s{sE}, s[38:39], {WS_EPOCH}")
    mk_srd(rWS, 38, WS_SIZE)
    A(f"s_cmp_ge_u32 s{sW}, 4")
    A("s_cbranch_scc1 L_helper")

    mk_srd(rK, 18, 0x4000000)
    mk_srd(rV, 20, 0x4000000)
    k_items = [("k", b, i) for b in range(8) for i in range(8)]
    v_items = [("v", b, i) for b in range(8) for i in range(8)]
    lvO, lvQ, lvQs = opt.get("lv", [0, 1, 2])
    A(f"s_and_b32 s{sT0}, s{sRI}, 14")
    A(f"s_cmp_eq_u32 s{sT0}, 6")
    A(f"s_cselect_b32 s{sCLS}, {lvQs}, {lvQ}")
    A(f"s_cmp_ge_u32 s{sJ}, 254")
    A(f"s_cselect_b32 s{sCLS}, {lvQs}, s{sCLS}")
    A(f"s_cmp_lt_u32 s{sA}, 16")
    A(f"s_cselect_b32 s{sCLS}, {lvO}, s{sCLS}")
    A(f"s_mov_b32 s{sLVL}, s{sCLS}")
    sBST = 35
    bt = opt.get("bt")
    if bt:
        packed = sum((v & 15) << (4 * i) for i, v in enumerate(bt))
        A(f"s_getreg_b32 s{sT0}, hwreg(HW_REG_XCC_ID, 0, 3)")
        A(f"s_lshl_b32 s{sT0}, s{sT0}, 2")
        A(f"s_lshr_b32 s{sBST}, {hex(packed)}, s{sT0}")
        A(f"s_and_b32 s{sBST}, s{sBST}, 15")
        A(f"s_cselect_b32 s{sT0}, 1, 0")
        A(f"s_add_u32 s{sLVL}, s{sLVL}, s{sT0}")
    npre = opt.get("bpos", 4)
    nun = opt.get("nun", 0)
    for k, it in enumerate(k_items[:npre]):
        issue(it, 0 if k < nun else 1)
    A("s_barrier")
    A("s_waitcnt lgkmcnt(0)")
    tags()

    qpos = opt.get("qpos", 48)
    for k, it in enumerate(k_items):
        if k >= npre:
            issue(it, 1)
            if k + 1 == qpos:
                lds_inc(L_PRGK)
    stamp(3)
    lds_wait(L_FLAGQ)
    A(f"v_and_b32 v{vT}, 7, v{vN}")
    A(f"v_mul_u32_u24 v{vT}, 272, v{vT}")
    A(f"v_lshl_add_u32 v{vT}, v{vGq}, 4, v{vT}")
    A(f"v_lshrrev_b32 v{vT+1}, 3, v{vN}")
    A(f"v_lshl_add_u32 v{vT}, v{vT+1}, 6, v{vT}")
    for h in range(2):
        A(f"ds_read_b128 {v4(vQ+4*h)}, v{vT} offset:{L_Q+128*h}")
    A(f"v_add_u32 v{vM}, s{sLDSB}, v{vOV}")
    A("s_waitcnt lgkmcnt(0)")
    stamp(4)
    stream = list(v_items)

    def sprinkle(n=1):
        for _ in range(n):
            if stream:
                issue(stream.pop(0), 0)

    def score_round(a, b):
        A(f"v_cvt_pk_bf16_f32 v{b}, v{a}, v{b}")
        A(f"v_lshlrev_b32 v{a}, 16, v{b}")
        A(f"v_and_b32 v{b}, s{sM16}, v{b}")
        A(f"v_mul_f32 v{a}, s{sSCALE}, v{a}")
        A(f"v_mul_f32 v{b}, s{sSCALE}, v{b}")
        A(f"v_cvt_pk_bf16_f32 v{b}, v{a}, v{b}")
        A(f"v_lshlrev_b32 v{a}, 16, v{b}")
        A(f"v_and_b32 v{b}, s{sM16}, v{b}")

    def combine(t):
        d0, d1 = vS + 4 * t, vQ + 8 + 4 * (t & 1)
        for r in range(4):
            A(f"v_permlane32_swap_b32 v{d0+r}, v{d1+r}")
        for r in range(4):
            A(f"v_add_f32_dpp v{d0+r}, v{d1+r}, v{d0+r} row_ror:8 {DPPALL}")
        score_round(d0, d0 + 1)
        score_round(d0 + 2, d0 + 3)

    STG = vS + 32
    for b in range(8):
        A.wait_vm(f"k{b}")
        if b < NLDS:
            for i in range(8):
                A(f"ds_read_b128 {v4(STG+4*i)}, v{vM} offset:{b*8192+i*1024}")
            A("s_waitcnt lgkmcnt(0)")
            base = STG
        else:
            base = blk_reg(b)
        for tt in range(2):
            t = 2 * b + tt
            d0, d1 = vS + 4 * t, vQ + 8 + 4 * (t & 1)
            r = base + tt * 16
            A(f"v_mfma_f32_16x16x32_bf16 {v4(d0)}, {v4(r)}, {v4(vQ)}, 0")
            A(f"v_mfma_f32_16x16x32_bf16 {v4(d1)}, {v4(r+8)}, {v4(vQ)}, 0")
            A(f"v_mfma_f32_16x16x32_bf16 {v4(d0)}, {v4(r+4)}, {v4(vQ+4)}, {v4(d0)}")
            A(f"v_mfma_f32_16x16x32_bf16 {v4(d1)}, {v4(r+12)}, {v4(vQ+4)}, {v4(d1)}")
            if t > 0:
                combine(t - 1)
        sprinkle(opt.get("spr_qk", 2))
    combine(15)
    stamp(5)
    vLA = vQ
    A(f"v_mov_b32 v{vLA}, v{vM}")
    A(f"v_max_f32 v{vM}, v{vS}, v{vS+1}")
    for i in range(2, 64, 2):
        A(f"v_max3_f32 v{vM}, v{vM}, v{vS+i}, v{vS+i+1}")
    xrow_red("v_max_f32", vM, vT + 2)
    sprinkle()
    for i in range(64):
        A(f"v_sub_f32 v{vS+i}, v{vS+i}, v{vM}")
        A(f"v_mul_f32 v{vS+i}, s{sLOG2E}, v{vS+i}")
        A(f"v_exp_f32 v{vS+i}, v{vS+i}")
        if i % 16 == 15:
            sprinkle()
    A(f"v_add_f32 v{vT+2}, v{vS}, v{vS+1}")
    A(f"v_add_f32 v{vT+3}, v{vS+2}, v{vS+3}")
    for i in range(4, 64, 2):
        A(f"v_add_f32 v{vT+2}, v{vT+2}, v{vS+i}")
        A(f"v_add_f32 v{vT+3}, v{vT+3}, v{vS+i+1}")
    A(f"v_add_f32 v{vT+3}, v{vT+2}, v{vT+3}")
    A(f"v_mov_b32 v{vT+2}, v{vM}")
    sprinkle()
    A(f"v_lshlrev_b32 v{vT+4}, 3, v{vN}")
    A(f"v_lshl_add_u32 v{vT+4}, v{vGq}, 6, v{vT+4}")
    A(f"s_lshl_b32 s{sT0}, s{sW}, 8")
    A(f"v_add_u32 v{vT+4}, s{sT0}, v{vT+4}")
    A("s_mov_b32 exec_lo, 0x00ff00ff")
    A("s_mov_b32 exec_hi, 0x00ff00ff")
    A(f"ds_write_b64 v{vT+4}, {v2(vT+2)} offset:{L_SP}")
    A("s_mov_b64 exec, -1")
    lds_inc(L_CNTS)
    if "lvV" in opt:
        A(f"s_mov_b32 s{sLVL}, {opt['lvV']}")

    vP = vS
    vO = vS + 32
    for i in range(32):
        A(f"v_cvt_pk_bf16_f32 v{vP+i}, v{vS+2*i}, v{vS+2*i+1}")
    spos = opt.get("spos", 32)
    wpos = opt.get("wpos", 64)
    cnt = [64 - len(stream)]
    assert cnt[0] < spos
    work = []
    nxt = [0]

    def pv_chunks(b):
        R = blk_reg(7) if b < NLDS else blk_reg(b)
        ch = []
        if b < NLDS:
            def stage():
                for i in range(8):
                    A(f"ds_read_b128 {v4(R+4*i)}, v{vLA} offset:{b*8192+i*1024}")
            ch.append(stage)
        for t in range(4):
            def chunk(t=t):
                if b < NLDS and t == 0:
                    A("s_waitcnt lgkmcnt(0)")
                for u in range(4):
                    A(f"v_perm_b32 v{vQ+8+u}, v{R+(2*u+1)*4+t}, v{R+(2*u)*4+t}, s{sPLO}")
                for u in range(4):
                    A(f"v_perm_b32 v{vQ+12+u}, v{R+(2*u+1)*4+t}, v{R+(2*u)*4+t}, s{sPHI}")
                for hh in range(2):
                    m = 2 * t + hh
                    c = "0" if b == 0 else v4(vO + 4 * m)
                    A(f"v_mfma_f32_16x16x32_bf16 {v4(vO+4*m)}, {v4(vP+4*b)}, {v4(vQ+8+4*hh)}, {c}")
            ch.append(chunk)
        return ch

    while stream:
        if stream[0][1] == 7:
            assert nxt[0] >= NLDS
            while work and nxt[0] <= NLDS:
                work.pop(0)()
        issue(stream.pop(0), 1)
        cnt[0] += 1
        if cnt[0] == spos:
            lds_inc(L_PRGV)
        if cnt[0] == opt.get("lvpos", 0):
            A(f"s_max_u32 s{sLVL}, s{sLVL}, {opt.get('lvmin', 1)}")
        if cnt[0] == wpos:
            lds_inc(L_FLAGW)
        if not work and cnt[0] >= 8 * (nxt[0] + 1) and f"v{nxt[0]}" not in A.vm:
            work.extend(pv_chunks(nxt[0]))
            nxt[0] += 1
        for _ in range(2):
            if work:
                work.pop(0)()
    while work:
        work.pop(0)()
    while nxt[0] < 7:
        A.wait_vm(f"v{nxt[0]}")
        for c in pv_chunks(nxt[0]):
            c()
        nxt[0] += 1
    vF = blk_reg(3)
    lds_wait(L_FLAGS)
    A(f"v_and_b32 v{vT}, 1, v{vL}")
    A(f"v_lshlrev_b32 v{vT}, 4, v{vT}")
    for w in range(4):
        A(f"ds_read_b128 {v4(vF+4*w)}, v{vT} offset:{L_F+32*w}")
    vOW, vOR = vQ + 1, vQ + 2
    A(f"v_mul_u32_u24 v{vOW}, 272, v{vN}")
    A(f"v_lshl_add_u32 v{vOW}, v{vGq}, 4, v{vOW}")
    A(f"s_mul_i32 s{sT0}, s{sW}, 4352")
    A(f"v_add_u32 v{vOW}, s{sT0}, v{vOW}")
    A(f"s_lshl_b32 s{sT0}, s{sW}, 2")
    A(f"v_add_u32 v{vOR}, s{sT0}, v{vGq}")
    A(f"v_mul_u32_u24 v{vOR}, 272, v{vOR}")
    A(f"v_lshl_add_u32 v{vOR}, v{vN}, 4, v{vOR}")
    A(f"s_lshl_b32 s{sT3}, s{sJ}, 12")
    A(f"s_lshl_b32 s{sT1}, s{sW}, 10")
    A(f"s_add_u32 s{sT3}, s{sT3}, s{sT1}")
    A(f"s_add_u32 s{sT3}, s{sT3}, {WS_A}")
    A(f"v_mov_b32 v{vT+1}, 1")
    stamp(9)
    A.wait_vm("v7")
    stamp(8)

    def o_write(t):
        A("s_mov_b64 exec, 0xffffffff")
        for m in (2 * t, 2 * t + 1):
            A(f"ds_write_b128 v{vOW}, {v4(vO+4*m)} offset:{L_O+32*m}")
        A("s_mov_b64 exec, -1")

    for t, c in enumerate(pv_chunks(7)):
        c()
        if t > 0:
            o_write(t - 1)
    o_write(3)
    stamp(10)
    Z = blk_reg(4)
    A("s_mov_b64 exec, 1")
    A(f"ds_add_u32 v{vZ}, v{vT+1} offset:{L_CNTO}")
    A("s_mov_b64 exec, -1")
    A.label("L_owait")
    A(f"ds_read_b32 v{vT}, v{vZ} offset:{L_CNTO}")
    for w in range(4):
        A(f"ds_read_b128 {v4(Z+4*w)}, v{vOR} offset:{L_O+4352*w}")
    A("s_waitcnt lgkmcnt(0)")
    A(f"v_readfirstlane_b32 s{sT0}, v{vT}")
    A(f"s_cmp_eq_u32 s{sT0}, 4")
    A("s_cbranch_scc1 L_oready")
    A(f"s_sub_u32 s{sTO}, s{sTO}, 1")
    A(f"s_cmp_lg_u32 s{sTO}, 0")
    A("s_cbranch_scc1 L_owait")
    A("s_branch L_end")
    A.label("L_oready")
    for c in range(4):
        A(f"v_mul_f32 v{Z+c}, v{Z+c}, v{vF+c}")
    for w in range(1, 4):
        for c in range(4):
            A(f"v_fmac_f32 v{Z+c}, v{Z+4*w+c}, v{vF+4*w+c}")
    for c in range(4):
        tag10(Z + c)
    A(f"buffer_store_dwordx4 {v4(Z)}, v{vOV}, {srd(rWS)}, s{sT3} offen sc1")
    if opt.get("pubwait", False):
        A("s_waitcnt vmcnt(0)")
    lds_inc(L_CNTP)
    stamp(11)
    A("s_branch L_end")

    A.label("L_helper")
    A.vm = []
    vTAG = vM
    Z = 16
    ACC = 48
    vA1, vA2, vA3 = vOK, vH, 15
    vWa = 64
    vWb = 192
    vGA, vLW, vLR, vX0, vC4, vGE, vLE = 56, 57, 58, 59, 60, 61, 62
    sRID = sLDSB
    mk_srd(rX, 16, 2048)
    mk_srd(rOUT, 34, 2048)

    def rowsplit_loads(dst, rs, sbase, row_off, rng, d, token, ntw):
        for i in rng:
            off = row_off(i)
            A(f"s_add_u32 s{sT0}, s{sbase}, {off & ~4095}")
            throttle(d)
            A(f"buffer_load_dwordx4 {v4(dst+4*i)}, v{vA2}, {srd(rs)}, s{sT0} offen offset:{off & 4095}{ntw}",
              token or f"r{i//2}")

    def perm_to(dst, src, nrows):
        for p in range(nrows // 2):
            A.wait_vm(f"r{p}")
            for t in range(4):
                a = src + (2 * p) * 4 + t
                b = src + (2 * p + 1) * 4 + t
                A(f"v_perm_b32 v{dst+(2*p)*4+t}, v{b}, v{a}, s{sPLO}")
                A(f"v_perm_b32 v{dst+(2*p+1)*4+t}, v{b}, v{a}, s{sPHI}")

    def zero_acc():
        for c in range(8):
            A(f"v_mov_b32 v{ACC+c}, 0")

    sMK = 18
    efast = opt.get("efast", 64)

    def gemv_publish(wp, npairs, xsrc, emode=False):
        for p in range(npairs):
            xr, ln = xsrc(p)
            for c in range(8):
                w = wp + (2 * p + (c & 1)) * 4 + (c >> 1)
                A(f"v_dot2c_f32_bf16_dpp v{ACC+c}, v{xr}, v{w} row_newbcast:{ln} {DPPALL}")
        for c in range(4):
            A(f"v_permlane32_swap_b32 v{ACC+c}, v{ACC+c+4}")
        for c in range(0, 4, 2):
            A(f"v_pk_add_f32 {v2(ACC+c)}, {v2(ACC+c)}, {v2(ACC+c+4)}")
        for c in range(4):
            tag10(ACC + c)
        if emode == "none":
            return
        if emode:
            A(f"s_mov_b64 exec, s[{sMK}:{sMK+1}]")
            store_loc(ACC, vA3, sPUB, (200, vA3, 20))
        else:
            A(f"buffer_store_dwordx4 {v4(ACC)}, v{vA3}, {srd(rWS)}, s{sPUB} offen sc1")
        if emode:
            A("s_mov_b64 exec, -1")

    sLOC = 26

    def read_loc():
        lds_wait(L_FLAGS, 8)
        A(f"ds_read_b32 v{vT}, v{vZ} offset:{L_LOC}")
        A("s_waitcnt lgkmcnt(0)")
        A(f"v_readfirstlane_b32 s{sLOC}, v{vT}")

    def store_loc(data, va, sreg, second=None):
        l1, l2 = A.newlabel("sl"), A.newlabel("sl")
        A(f"s_cmp_eq_u32 s{sLOC}, 0")
        A(f"s_cbranch_scc1 {l1}")
        sv = list(A.vm)
        A(f"buffer_store_dwordx4 {v4(data)}, v{va}, {srd(rWS)}, s{sreg} offen")
        if second:
            A(f"buffer_store_dwordx4 {v4(second[0])}, v{second[1]}, {srd(rWS)}, s{second[2]} offen")
        A(f"s_branch {l2}")
        A.label(l1)
        A.vm = sv
        A(f"buffer_store_dwordx4 {v4(data)}, v{va}, {srd(rWS)}, s{sreg} offen sc1")
        if second:
            A(f"buffer_store_dwordx4 {v4(second[0])}, v{second[1]}, {srd(rWS)}, s{second[2]} offen sc1")
        A.label(l2)

    def pack_pairs(src, dst):
        A(f"v_mov_b32_dpp v{dst}, v{src} quad_perm:[1,0,3,2] {DPPALL}")
        A(f"v_cvt_pk_bf16_f32 v{dst}, v{src}, v{dst}")

    def red4_to_lds(waddr, ldsoff):
        A(f"v_permlane32_swap_b32 v{Z}, v{Z+2}")
        A(f"v_permlane32_swap_b32 v{Z+1}, v{Z+3}")
        A(f"v_pk_add_f32 {v2(Z)}, {v2(Z)}, {v2(Z+2)}")
        A(f"v_permlane16_swap_b32 v{Z}, v{Z+1}")
        A(f"v_add_f32 v{Z}, v{Z}, v{Z+1}")
        row_red("v_add_f32", Z, (8,))
        A(f"ds_write_b32 v{waddr}, v{Z} offset:{L_GP+ldsoff}")
        A("s_waitcnt lgkmcnt(0)")
        A("s_barrier")

    def read4_from_lds(addr):
        for k in range(2):
            A(f"ds_read2_b32 {v2(Z+2*k)}, v{addr} offset0:{64*k} offset1:{64*k+32}")
        A("s_waitcnt lgkmcnt(0)")
        A(f"v_add_f32 v{Z}, v{Z}, v{Z+1}")
        A(f"v_add_f32 v{Z+2}, v{Z+2}, v{Z+3}")

    def common_addr():
        A(f"v_and_b32 v{vA3}, 31, v{vL}")
        A(f"v_lshlrev_b32 v{vC4}, 2, v{vA3}")
        A(f"v_lshlrev_b32 v{vA3}, 5, v{vA3}")
        A(f"v_lshrrev_b32 v{vT}, 5, v{vL}")
        A(f"v_lshl_add_u32 v{vA3}, v{vT}, 4, v{vA3}")
        A(f"v_lshrrev_b32 v{vA1}, 3, v{vL}")
        A(f"v_lshlrev_b32 v{vA1}, 12, v{vA1}")
        A(f"v_and_b32 v{vT+1}, 7, v{vL}")
        A(f"v_lshl_add_u32 v{vA1}, v{vT+1}, 4, v{vA1}")
        A(f"v_lshlrev_b32 v{vLW}, 4, v{vT+1}")
        A(f"v_lshl_add_u32 v{vLW}, v{vGq}, 2, v{vLW}")
        A(f"s_lshl_b32 s{sT0}, s{sHW}, 7")
        A(f"v_add_u32 v{vLW}, s{sT0}, v{vLW}")

    def pretouch(items):
        if not opt.get("pretouch", False):
            return
        lds_wait(L_PRGV, 8)
        A("s_mov_b32 exec_lo, 1")
        A("s_mov_b32 exec_hi, 1")
        for k, (va, rs, so) in enumerate(items):
            if isinstance(so, tuple):
                A(f"s_add_u32 s{sT0}, s{so[0]}, {so[1]}")
            else:
                A(f"s_mov_b32 s{sT0}, {hex(so)}")
            A(f"buffer_load_dword v{Z+k}, v{va}, {srd(rs)}, s{sT0} offen")
        A("s_mov_b64 exec, -1")
        A("s_waitcnt vmcnt(0)")

    WS_PT = [(vZ, rWS, 0x1f0000 - 0x1000 + 0x100000), (vZ, rWS, 0x3f8000), (vZ, rWS, 0x20000)]

    def watch(va, base, name):
        A("s_mov_b64 exec, 0xff")
        A(f"v_mov_b32 v{Z+8}, s{sT10}")
        A(f"s_mov_b32 s{sT1}, {hex(base)}")
        A.label(f"L_{name}")
        A(f"buffer_load_dwordx4 {v4(Z)}, v{va}, {srd(rWS)}, s{sT1} offen sc1")
        A("s_waitcnt vmcnt(0)")
        A(f"v_bitop3_b32 v{Z+4}, v{Z}, v{Z+1}, v{Z+8} bitop3:0x7e")
        A(f"v_and_b32 v{Z+4}, 0x3ff, v{Z+4}")
        A(f"v_cmp_ne_u32 s[{sP0}:{sP1}], 0, v{Z+4}")
        A(f"s_cmp_eq_u64 s[{sP0}:{sP1}], 0")
        A(f"s_cbranch_scc1 L_{name}d")
        A("s_sleep 2")
        A(f"s_sub_u32 s{sTO}, s{sTO}, 1")
        A(f"s_cmp_lg_u32 s{sTO}, 0")
        A(f"s_cbranch_scc1 L_{name}")
        A.label(f"L_{name}d")
        A("s_mov_b64 exec, -1")

    def hint_wait(delay):
        A(f"s_lshl_b32 s{sT1}, s{sX_}, 7")
        A(f"v_mov_b32 v{vT+4}, s{sT1}")
        poll(Z, vT + 4, [WS_HINT], sT16, 0xffff, Z + 8, sleep=opt.get("sleepH", 2))
        if delay:
            A(f"s_sleep {delay}")

    def service(name):
        A(f"s_cmp_lg_u32 s{sHW}, 0")
        A(f"s_cbranch_scc1 L_svc_{name}")
        X = Z
        lds_wait(L_PRGK, 8)
        A(f"s_lshl_b32 s{sT1}, s{sG}, 12")
        A(f"v_add_u32 v{vT+4}, s{sT1}, v{vOV}")
        poll(X, vT + 4, [WS_Q + i * 1024 for i in range(4)], sT16, 0xffff, X + 16, sleep=opt.get("sleepq", 8))
        A(f"v_lshrrev_b32 v{vT+1}, 5, v{vL}")
        A(f"v_mul_u32_u24 v{vT+1}, 272, v{vT+1}")
        A(f"v_and_b32 v{vT+2}, 31, v{vL}")
        A(f"v_lshl_add_u32 v{vT+1}, v{vT+2}, 3, v{vT+1}")
        for i in range(4):
            A(f"v_perm_b32 v{X+16+2*i}, v{X+4*i+1}, v{X+4*i}, s{sPHI}")
            A(f"v_perm_b32 v{X+16+2*i+1}, v{X+4*i+3}, v{X+4*i+2}, s{sPHI}")
            A(f"ds_write_b64 v{vT+1}, {v2(X+16+2*i)} offset:{L_Q+i*2*272}")
        lds_setflag(L_FLAGQ)
        stamp(2)
        lds_wait(L_CNTS, 4, 4)
        Y = Z
        A(f"v_and_b32 v{vT}, 7, v{vL}")
        A(f"v_lshlrev_b32 v{vT}, 3, v{vT}")
        A(f"v_lshrrev_b32 v{vT+1}, 3, v{vL}")
        A(f"v_lshl_add_u32 v{vT}, v{vT+1}, 7, v{vT}")
        for g in range(2):
            A(f"ds_read_b64 {v2(Y+2*g)}, v{vT} offset:{L_SP+64*g}")
        A("s_waitcnt lgkmcnt(0)")
        MM, LL, TT = vT + 2, vT + 3, Y + 6
        A(f"v_max_f32 v{MM}, v{Y}, v{Y+2}")
        row_red("v_max_f32", MM, (8,))
        xrow_red("v_max_f32", MM, TT)
        for g in range(2):
            A(f"v_sub_f32 v{Y+2*g}, v{Y+2*g}, v{MM}")
            A(f"v_mul_f32 v{Y+2*g}, s{sLOG2E}, v{Y+2*g}")
            A(f"v_exp_f32 v{Y+2*g}, v{Y+2*g}")
        A(f"v_mul_f32 v{LL}, v{Y}, v{Y+1}")
        A(f"v_fmac_f32 v{LL}, v{Y+2}, v{Y+3}")
        row_red("v_add_f32", LL, (8,))
        xrow_red("v_add_f32", LL, TT)
        A(f"v_or_b32 v{MM}, s{sT10}, v{MM}")
        tag10(LL)
        A(f"s_getreg_b32 s{sT1}, hwreg(HW_REG_XCC_ID, 0, 4)")
        A(f"s_lshl_b32 s{sT1}, s{sT1}, 16")
        A(f"s_or_b32 s23, s{sT1}, s{sT10}")
        A("s_mov_b64 exec, 0xff00")
        A(f"v_mov_b32 v{MM}, s23")
        A(f"v_mov_b32 v{LL}, s23")
        A("s_mov_b64 exec, -1")
        A(f"v_lshlrev_b32 v{vT}, 3, v{vL}")
        sfull = opt.get("sfull", True)
        A(f"s_lshl_b32 s{sT0}, s{sJ}, {7 if sfull else 6}")
        A(f"s_add_u32 s{sT0}, s{sT0}, {WS_S}")
        A(f"s_mov_b64 exec, {'0xffff' if sfull else '0xff'}")
        A(f"buffer_store_dwordx2 {v2(MM)}, v{vT}, {srd(rWS)}, s{sT0} offen sc1")
        A("s_mov_b64 exec, -1")
        if opt.get("rank"):
            A(f"v_lshlrev_b32 v{vT}, 8, v{vL}")
            A(f"s_and_b32 s{sT0}, s{sJ}, 3")
            A(f"s_lshl_b32 s{sT0}, s{sT0}, 6")
            A(f"s_add_u32 s{sT0}, s{sT0}, {WS_S}")
            A(f"buffer_load_dwordx2 {v2(Z)}, v{vT}, {srd(rWS)}, s{sT0} offen sc1")
            A("s_waitcnt vmcnt(0)")
            A(f"v_bitop3_b32 v{Z}, v{Z}, v{Z+1}, v{vTAG} bitop3:0x7e")
            A(f"v_and_b32 v{Z}, 0x3ff, v{Z}")
            A(f"v_cmp_eq_u32 s[{sP0}:{sP1}], 0, v{Z}")
            A(f"s_bcnt1_i32_b64 s{sT1}, s[{sP0}:{sP1}]")
            A(f"s_mov_b32 s{sT2}, 1")
            for q, t in enumerate(opt["rank"]):
                A(f"s_cmp_ge_u32 s{sT1}, {t}")
                A(f"s_cselect_b32 s{sT2}, {q+2}, s{sT2}")
            A(f"v_mov_b32 v{Z}, s{sT2}")
            A(f"ds_write_b32 v{vZ}, v{Z} offset:{L_LVL}")
            if stamps:
                A(f"s_add_u32 s{sSTAMP+8}, s{sSTAMP}, s{sT1}")
        lds_wait(L_PRGV, 8)
        Dd = Z
        TP = Z + 16
        if sfull:
            A(f"v_lshrrev_b32 v{vT+4}, 2, v{vL}")
            A(f"v_lshlrev_b32 v{vT+4}, 7, v{vT+4}")
            A(f"v_and_b32 v{vT+5}, 3, v{vL}")
            A(f"v_lshl_add_u32 v{vT+4}, v{vT+5}, 4, v{vT+4}")
            A(f"s_lshl_b32 s{sT1}, s{sG}, 13")
            A(f"v_add_u32 v{vT+4}, s{sT1}, v{vT+4}")
        A(f"v_and_b32 v{vT+5}, 31, v{vL}")
        A(f"v_lshlrev_b32 v{vT+5}, 7, v{vT+5}")
        A(f"s_lshl_b32 s{sT1}, s{sX_}, 12")
        A(f"v_add_u32 v{vT+5}, s{sT1}, v{vT+5}")
        TP = 236
        poll(Dd, [vT + 4] * 4 + [vT + 5], [WS_S + i * 2048 for i in range(4)] + [WS_S + 64], sT10, 0x3ff, TP,
             sleep=opt.get("sleeps", 8))
        A(f"s_andn2_b32 s{sT1}, s23, 0x3ff")
        A(f"v_cmp_ne_u32 s[{sP0}:{sP1}], s{sT1}, v{Dd+16}")
        A(f"s_cmp_eq_u64 s[{sP0}:{sP1}], 0")
        A(f"s_cselect_b32 s{sT1}, {1 if efast else 0}, 0")
        A(f"v_mov_b32 v{Dd+16}, s{sT1}")
        A(f"ds_write_b32 v{vZ}, v{Dd+16} offset:{L_LOC}")
        Yy = TP
        Tt = TP + 4
        M0, M1, L0, L1 = Yy, Yy + 2, Yy + 1, Yy + 3
        for (Mx, o) in ((M0, 0), (M1, 2)):
            A(f"v_max_f32 v{Mx}, v{Dd+o}, v{Dd+4+o}")
            A(f"v_max3_f32 v{Mx}, v{Mx}, v{Dd+8+o}, v{Dd+12+o}")
        for Mx in (M0, M1):
            row_red("v_max_f32", Mx, (8, 4))
            xrow_red("v_max_f32", Mx, Tt)
        for (Mx, Lx, o) in ((M0, L0, 0), (M1, L1, 2)):
            for i in range(4):
                r = Dd + 4 * i + o
                A(f"v_sub_f32 v{r}, v{r}, v{Mx}")
                A(f"v_mul_f32 v{r}, s{sLOG2E}, v{r}")
                A(f"v_exp_f32 v{r}, v{r}")
            A(f"v_mul_f32 v{Lx}, v{Dd+o}, v{Dd+o+1}")
            for i in range(1, 4):
                A(f"v_fmac_f32 v{Lx}, v{Dd+4*i+o}, v{Dd+4*i+o+1}")
        for Lx in (L0, L1):
            row_red("v_add_f32", Lx, (8, 4))
            xrow_red("v_add_f32", Lx, Tt)
            A(f"v_rcp_f32 v{Lx}, v{Lx}")
        A(f"v_and_b32 v{vT}, 3, v{vL}")
        A(f"v_lshlrev_b32 v{vT}, 4, v{vT}")
        A(f"ds_write_b128 v{vT}, {v4(Yy)} offset:{L_SG}")
        A(f"v_and_b32 v{vT}, 7, v{vL}")
        A(f"v_lshlrev_b32 v{vT}, 3, v{vT}")
        A(f"v_bfe_u32 v{vT+2}, v{vL}, 3, 2")
        A(f"v_lshl_add_u32 v{vT+2}, v{vT+2}, 8, v{vT}")
        A(f"ds_read_b64 {v2(Dd)}, v{vT} offset:{L_SG}")
        A(f"ds_read_b32 v{Dd+2}, v{vT+2} offset:{L_SP}")
        A(f"v_and_b32 v{vT+3}, 31, v{vL}")
        A(f"v_lshlrev_b32 v{vT+3}, 2, v{vT+3}")
        A("s_waitcnt lgkmcnt(0)")
        A(f"v_sub_f32 v{Dd+2}, v{Dd+2}, v{Dd}")
        A(f"v_mul_f32 v{Dd+2}, s{sLOG2E}, v{Dd+2}")
        A(f"v_exp_f32 v{Dd+2}, v{Dd+2}")
        A(f"v_mul_f32 v{Dd+2}, v{Dd+2}, v{Dd+1}")
        A(f"ds_write_b32 v{vT+3}, v{Dd+2} offset:{L_F}")
        lds_setflag(L_FLAGS)
        stamp(7)
        A.label(f"L_svc_{name}")
        A.vm = []

    A(f"s_cmp_ge_u32 s{sA}, 16")
    A("s_cbranch_scc1 L_roleM")

    mk_srd(rW2, 24, 0 if opt.get("now") else 0x800000)
    mk_srd(rW3, 32, 0 if opt.get("now") else 3584 * 1024 * 2)
    common_addr()
    A(f"v_lshrrev_b32 v{vA2}, 5, v{vL}")
    A(f"v_lshlrev_b32 v{vA2}, 20, v{vA2}")
    A(f"v_lshl_add_u32 v{vA2}, v{vC4}, 2, v{vA2}")
    A(f"s_lshl_b32 s{sKB}, s{sG}, 21")
    A(f"s_and_b32 s{sT2}, s{sRI}, 31")
    A(f"s_lshl_b32 s{sT2}, s{sT2}, 13")
    A(f"s_add_u32 s{sKB}, s{sKB}, s{sT2}")
    A(f"s_lshl_b32 s{sT2}, s{sHW}, 9")
    A(f"s_add_u32 s{sKB}, s{sKB}, s{sT2}")
    wo_off = lambda i: (i >> 2) * 128 * 2048 + (i & 3) * 2048
    wo1 = opt.get("wo1", 16)
    rowsplit_loads(vWb, rW2, sKB, wo_off, range(min(4, wo1)), 0, None, nto)
    A("s_barrier")
    rowsplit_loads(vWb, rW2, sKB, wo_off, range(min(4, wo1), wo1), opt.get("DE", 0), None, nto)
    A("s_waitcnt lgkmcnt(0)")
    tags()
    A(f"s_lshl_b32 s{sPUB}, s{sX_}, 4")
    A(f"s_add_u32 s{sPUB}, s{sPUB}, s{sA}")
    A(f"s_lshl_b32 s{sPUB}, s{sPUB}, 12")
    A(f"s_lshl_b32 s{sT1}, s{sHW}, 10")
    A(f"s_add_u32 s{sPUB}, s{sPUB}, s{sT1}")
    A(f"s_add_u32 s{sPUB}, s{sPUB}, {WS_B}")
    A(f"s_lshl_b32 s{sT1}, s{sG}, 18")
    A(f"s_lshl_b32 s{sT2}, s{sHW}, 16")
    A(f"s_add_u32 s{sT1}, s{sT1}, s{sT2}")
    A(f"s_and_b32 s{sT2}, s{sRI}, 31")
    A(f"s_lshl_b32 s{sT2}, s{sT2}, 7")
    A(f"s_add_u32 s{sT1}, s{sT1}, s{sT2}")
    A(f"v_add_u32 v{vGA}, s{sT1}, v{vA1}")
    A(f"v_and_b32 v{vLR}, 3, v{vN}")
    A(f"v_lshlrev_b32 v{vLR}, 3, v{vLR}")
    A(f"v_lshrrev_b32 v{vT}, 5, v{vL}")
    A(f"v_lshl_add_u32 v{vLR}, v{vT}, 2, v{vLR}")
    A(f"v_lshrrev_b32 v{vT+1}, 2, v{vN}")
    A(f"v_add_u32 v{vLR}, v{vLR}, v{vT+1}")
    A(f"v_lshlrev_b32 v{vLR}, 2, v{vLR}")
    A(f"v_add_u32 v{vLR}, {L_GP}, v{vLR}")
    A(f"v_lshl_add_u32 v{vLE}, v{vT}, 4, v{vN}")
    A(f"v_lshlrev_b32 v{vLE}, 2, v{vLE}")
    A(f"v_add_u32 v{vLE}, {L_GP+1024}, v{vLE}")
    sDI = 16
    A(f"s_mul_i32 s{sDI}, s{sX_}, 14")
    A(f"s_add_u32 s{sDI}, s{sDI}, s{sA}")
    A(f"v_lshrrev_b32 v{vGE}, 3, v{vL}")
    A(f"v_mul_u32_u24 v{vGE}, 3584, v{vGE}")
    A(f"v_and_b32 v{vT+1}, 7, v{vL}")
    A(f"v_lshl_add_u32 v{vGE}, v{vT+1}, 4, v{vGE}")
    A(f"s_and_b32 s{sT0}, s{sHW}, 1")
    A(f"s_mul_i32 s{sT0}, s{sT0}, {8*3584}")
    A(f"s_lshr_b32 s{sT1}, s{sHW}, 1")
    A(f"s_mul_i32 s{sT1}, s{sT1}, 1792")
    A(f"s_add_u32 s{sT0}, s{sT0}, s{sT1}")
    A(f"s_mul_i32 s{sT1}, s{sX_}, {16*3584}")
    A(f"s_add_u32 s{sT0}, s{sT0}, s{sT1}")
    A(f"s_lshl_b32 s{sT1}, s{sA}, 7")
    A(f"s_add_u32 s{sT0}, s{sT0}, s{sT1}")
    A(f"v_add_u32 v{vGE}, s{sT0}, v{vGE}")
    vGB, vHP, vOA, vLB, vGL, vL2 = 44, 45, 46, 47, 43, 63
    sHB = 20
    A(f"v_lshlrev_b32 v{vGL}, 12, v{vGq}")
    A(f"v_lshl_add_u32 v{vGL}, v{vN}, 4, v{vGL}")
    A(f"s_lshl_b32 s{sT0}, s{sX_}, 16")
    A(f"s_lshl_b32 s{sT1}, s{sHW}, 14")
    A(f"s_add_u32 s{sT0}, s{sT0}, s{sT1}")
    A(f"s_lshl_b32 s{sT1}, s{sA}, 8")
    A(f"s_add_u32 s{sT0}, s{sT0}, s{sT1}")
    A(f"v_add_u32 v{vGL}, s{sT0}, v{vGL}")
    A(f"v_lshlrev_b32 v{vL2}, 4, v{vN}")
    A(f"v_lshl_add_u32 v{vL2}, v{vGq}, 2, v{vL2}")
    A(f"s_lshl_b32 s{sT0}, s{sHW}, 8")
    A(f"v_add_u32 v{vL2}, s{sT0}, v{vL2}")
    A(f"v_lshrrev_b32 v{vT}, 5, v{vL}")
    A(f"v_lshlrev_b32 v{vHP}, 15, v{vT}")
    A(f"v_lshl_add_u32 v{vHP}, v{vN}, 4, v{vHP}")
    A(f"s_lshl_b32 s{sHB}, s{sHW}, 16")
    A(f"s_lshl_b32 s{sT1}, s{sA}, 11")
    A(f"s_add_u32 s{sHB}, s{sHB}, s{sT1}")
    A(f"s_lshl_b32 s{sT1}, s{sX_}, 8")
    A(f"s_add_u32 s{sHB}, s{sHB}, s{sT1}")
    A(f"s_add_u32 s{sHB}, s{sHB}, {WS_B2}")
    zero_acc()
    assert wo1 == 16
    pt = opt.get("pt", "")
    vWd = vWa + 64
    vGH, vLN = 41, 42
    perm_to(vWa, vWb, 16)
    A(f"v_lshrrev_b32 v{vA2}, 5, v{vL}")
    A(f"v_lshlrev_b32 v{vA2}, 15, v{vA2}")
    A(f"v_lshl_add_u32 v{vA2}, v{vC4}, 2, v{vA2}")
    A(f"s_lshl_b32 s{sKB}, s{sDI}, 16")
    A(f"s_lshl_b32 s{sT2}, s{sHW}, 9")
    A(f"s_add_u32 s{sKB}, s{sKB}, s{sT2}")
    A(f"s_lshl_b32 s{sT1}, s{sX_}, 12")
    A(f"s_lshl_b32 s{sT2}, s{sHW}, 10")
    A(f"s_add_u32 s{sT2}, s{sT1}, s{sT2}")
    A(f"v_add_u32 v{vGH}, s{sT2}, v{vOV}")
    A(f"s_lshl_b32 s{sT0}, s{sHW}, 3")
    A(f"v_mov_b32 v{vLN}, s{sT0}")
    A(f"s_cmp_lt_u32 s{sA}, 14")
    A(f"s_cselect_b32 s{rW3+2}, s{rW3+2}, 0")
    A.vm = []
    service("W")
    read_loc()
    stamp(6)
    a2 = 0
    d0 = opt.get("d0", 6)
    lds_wait(L_FLAGW, 4, opt.get("wcnt", 4))
    rowsplit_loads(vWb, rW3, sKB, lambda i: i * 2048, range(d0), opt.get("DL0", 0), None, ntd)
    if efast:
        for i, (va, base) in enumerate(((vGL, WS_B + FAST_B),)):
            A(f"s_mov_b32 s{sT0}, {hex(base)}")
            A(f"buffer_load_dwordx4 {v4(vWd+48+4*i)}, v{va}, {srd(rWS)}, s{sT0} offen sc1")
    for p in range(d0 // 2):
        A.wait_vm(f"r{p}")
        for t in range(4):
            a_ = vWb + (2 * p) * 4 + t
            b_ = vWb + (2 * p + 1) * 4 + t
            A(f"v_perm_b32 v{vWd+(2*p)*4+t}, v{b_}, v{a_}, s{sPLO}")
            A(f"v_perm_b32 v{vWd+(2*p+1)*4+t}, v{b_}, v{a_}, s{sPHI}")
    assert d0 <= 8
    aw = "p"
    lds_wait(L_CNTP, 2, 4)
    if opt.get("a1", True):
        A(f"s_mov_b64 exec, {hex(opt.get('a1m', 0xff))}")
        A(f"v_mov_b32 v{Z+8}, s{sT10}")
        A.label("L_a1")
        A(f"s_mov_b32 s{sT0}, {hex(WS_A + opt.get('a1off', 0))}")
        A(f"buffer_load_dwordx4 {v4(Z)}, v{vGA}, {srd(rWS)}, s{sT0} offen sc1")
        A("s_waitcnt vmcnt(0)")
        A(f"v_bitop3_b32 v{Z+4}, v{Z}, v{Z+1}, v{Z+8} bitop3:0x7e")
        A(f"v_and_b32 v{Z+4}, 0x3ff, v{Z+4}")
        A(f"v_cmp_ne_u32 s[{sP0}:{sP1}], 0, v{Z+4}")
        A(f"s_cmp_eq_u64 s[{sP0}:{sP1}], 0")
        A("s_cbranch_scc1 L_a1d")
        A("s_sleep 4")
        A(f"s_sub_u32 s{sTO}, s{sTO}, 1")
        A(f"s_cmp_lg_u32 s{sTO}, 0")
        A("s_cbranch_scc1 L_a1")
        A.label("L_a1d")
        A("s_mov_b64 exec, -1")
    if aw == "f":
        lds_wait(L_CNTP, 1, 4)
    poll(Z, vGA, [WS_A, WS_A + 32768], sT10, 0x3ff, Z + 8, sleep=opt.get("sleepA", 0), back=opt.get("backA"),
         entry="L_a2_entry" if (a2 and wo1 < 16) else None)
    for c in range(0, 4, 2):
        A(f"v_pk_add_f32 {v2(Z+c)}, {v2(Z+c)}, {v2(Z+4+c)}")
    red4_to_lds(vLW, 0)
    stamp(12)
    read4_from_lds(vLR)
    A(f"v_add_f32 v{Z}, v{Z}, v{Z+2}")
    pack_pairs(Z, Z + 4)
    gemv_publish(vWa, 8, lambda p: (Z + 4, 2 * p), "none")

    store_loc(ACC, vA3, sPUB)
    stamp(3)
    poll(Z, vGL, [WS_B], sT10, 0x3ff, Z + 8)
    A(f"v_permlane32_swap_b32 v{Z}, v{Z+2}")
    A(f"v_permlane32_swap_b32 v{Z+1}, v{Z+3}")
    A(f"v_pk_add_f32 {v2(Z)}, {v2(Z)}, {v2(Z+2)}")
    A(f"v_permlane16_swap_b32 v{Z}, v{Z+1}")
    A(f"v_add_f32 v{Z}, v{Z}, v{Z+1}")
    A(f"ds_write_b32 v{vL2}, v{Z} offset:{L_O}")
    A(f"v_lshlrev_b32 v{vT+2}, 4, v{vN}")
    A.vm = []
    dmid = (d0 + 16) // 2 if opt.get("dpre", False) else d0
    dend = 16 if opt.get("dpre", False) else d0
    rowsplit_loads(vWb, rW3, sKB, lambda i: i * 2048, range(d0, dmid), 0, None, ntd)
    A("s_waitcnt lgkmcnt(0)")
    A("s_barrier")
    for w in range(4):
        A(f"ds_read_b128 {v4(Z+4*w)}, v{vT+2} offset:{L_O+256*w}")
    rowsplit_loads(vWb, rW3, sKB, lambda i: i * 2048, range(dmid, dend), 0, None, ntd)
    A("s_waitcnt lgkmcnt(0)")
    for (d_, s_) in ((0, 4), (8, 12), (0, 8)):
        for c in range(0, 4, 2):
            A(f"v_pk_add_f32 {v2(Z+d_+c)}, {v2(Z+d_+c)}, {v2(Z+s_+c)}")
    for c in range(4):
        tag10(Z + c)
    A("s_mov_b32 exec_lo, 0xffff")
    A("s_mov_b32 exec_hi, 0xffff")
    A(f"buffer_store_dwordx4 {v4(Z)}, v{vHP}, {srd(rWS)}, s{sHB} offen sc1")
    A("s_mov_b64 exec, -1")
    stamp(13)
    rowsplit_loads(vWb, rW3, sKB, lambda i: i * 2048, range(dend, 16), opt.get("DLD", 0), None, ntd)
    if efast:
        for i, (va, base) in enumerate(((vGH, WS_H + FAST_H), (vGE, WS_EF), (vGE, WS_C + WS_EF - WS_E))):
            A(f"s_mov_b32 s{sT0}, {hex(base)}")
            A(f"buffer_load_dwordx4 {v4(vWa+48+4*i)}, v{va}, {srd(rWS)}, s{sT0} offen sc1")
    A(f"s_add_u32 s{sPUB}, s{sPUB}, {WS_D - WS_B}")
    A(f"s_cmp_ge_u32 s{sA}, 14")
    A("s_cbranch_scc1 L_final0")
    for p in range(d0 // 2, 8):
        A.wait_vm(f"r{p}")
        for t in range(4):
            a_ = vWb + (2 * p) * 4 + t
            b_ = vWb + (2 * p + 1) * 4 + t
            A(f"v_perm_b32 v{vWd+(2*p)*4+t}, v{b_}, v{a_}, s{sPLO}")
            A(f"v_perm_b32 v{vWd+(2*p+1)*4+t}, v{b_}, v{a_}, s{sPHI}")
    zero_acc()
    stamp(9)
    H_ = vWa
    poll(H_, vGH, [WS_H], sT16, 0xffff, H_ + 8)
    for i, so in enumerate([WS_E, WS_C]):
        A(f"s_mov_b32 s{sT0}, {hex(so + ((WS_EF - WS_E) if efast else 0))}")
        A(f"buffer_load_dwordx4 {v4(Z+4*i)}, v{vGE}, {srd(rWS)}, s{sT0} offen sc1")
    A(f"v_readfirstlane_b32 s{sT1}, v{H_}")
    S1, S2, TT = H_ + 8, H_ + 9, H_ + 10
    for i in range(4):
        A(f"v_subrev_f32 v{H_+i}, s{sT1}, v{H_+i}")
    A(f"v_add_f32 v{S1}, v{H_}, v{H_+1}")
    A(f"v_mul_f32 v{S2}, v{H_}, v{H_}")
    A(f"v_add_f32 v{TT}, v{H_+2}, v{H_+3}")
    A(f"v_fmac_f32 v{S2}, v{H_+1}, v{H_+1}")
    A(f"v_add_f32 v{S1}, v{S1}, v{TT}")
    A(f"v_fmac_f32 v{S2}, v{H_+2}, v{H_+2}")
    A(f"v_fmac_f32 v{S2}, v{H_+3}, v{H_+3}")
    A(f"v_permlane32_swap_b32 v{S1}, v{S2}")
    A(f"v_add_f32 v{S1}, v{S1}, v{S2}")
    row_red("v_add_f32", S1, (8, 4, 2, 1))
    A(f"v_mov_b32 v{TT}, v{S1}")
    A(f"v_permlane16_swap_b32 v{TT}, v{S1}")
    A(f"v_add_f32 v{S1}, v{S1}, v{TT}")
    A(f"v_mov_b32 v{S2}, v{S1}")
    A(f"v_permlane32_swap_b32 v{S1}, v{S2}")
    A(f"v_mul_f32 v{TT}, 0x3b800000, v{S1}")
    A(f"v_fma_f32 v{S2}, -v{TT}, v{S1}, v{S2}")
    A(f"v_add_f32 v{S1}, s{sT1}, v{TT}")
    A(f"ds_write_b64 v{vLN}, {v2(S1)} offset:{L_LN}")
    stamp(4)
    A("s_branch L_eentry")
    poll(Z, vGE, [WS_E, WS_C], sT10, 0x3ff, Z + 8, alt=(WS_EF - WS_E, efast) if efast else None, entry="L_eentry")
    for R in (Z, Z + 4):
        A(f"v_permlane32_swap_b32 v{R}, v{R+2}")
        A(f"v_permlane32_swap_b32 v{R+1}, v{R+3}")
    for R in (Z, Z + 4):
        A(f"v_pk_add_f32 {v2(R)}, {v2(R)}, {v2(R+2)}")
    for R in (Z, Z + 4):
        A(f"v_permlane16_swap_b32 v{R}, v{R+1}")
    for R in (Z, Z + 4):
        A(f"v_add_f32 v{R}, v{R}, v{R+1}")
    for R in (Z, Z + 4):
        A(f"v_add_f32_dpp v{R}, v{R}, v{R} row_ror:8 {DPPALL}")
    A(f"ds_write_b32 v{vLW}, v{Z} offset:{L_GP+1024}")
    A(f"ds_write_b32 v{vLW}, v{Z+4} offset:{L_GP+1536}")
    A("s_waitcnt lgkmcnt(0)")
    A("s_barrier")
    stamp(10)
    A(f"ds_read_b128 {v4(H_+12)}, v{vZ} offset:{L_LN}")
    A(f"ds_read_b128 {v4(H_+16)}, v{vZ} offset:{L_LN+16}")
    for k in range(2):
        A(f"ds_read2_b32 {v2(Z+2*k)}, v{vLE} offset0:{64*k} offset1:{64*k+32}")
        A(f"ds_read2_b32 {v2(Z+4+2*k)}, v{vLE} offset0:{128+64*k} offset1:{128+64*k+32}")
    A("s_waitcnt lgkmcnt(4)")
    MEAN, VAR = H_ + 8, H_ + 9
    A(f"v_pk_add_f32 {v2(MEAN)}, {v2(H_+12)}, {v2(H_+14)}")
    A(f"v_pk_add_f32 {v2(H_+10)}, {v2(H_+16)}, {v2(H_+18)}")
    A(f"v_pk_add_f32 {v2(MEAN)}, {v2(MEAN)}, {v2(H_+10)}")
    A(f"v_mul_f32 v{MEAN}, 0x3e800000, v{MEAN}")
    A(f"v_mul_f32 v{VAR}, 0x3b800000, v{VAR}")
    for k in range(4):
        A(f"v_sub_f32 v{H_+12+2*k}, v{H_+12+2*k}, v{MEAN}")
    for k in range(4):
        A(f"v_fmac_f32 v{VAR}, v{H_+12+2*k}, v{H_+12+2*k}")
    A(f"v_mul_f32 v{VAR}, 0x3e800000, v{VAR}")
    MB, RS = H_ + 22, H_ + 23
    ln_finish(MEAN, VAR, MB, RS)
    A("s_waitcnt lgkmcnt(0)")
    Gv, Uv = Z, Z + 2
    for k in range(4):
        A(f"v_add_f32 v{Z+2*k}, v{Z+2*k}, v{Z+2*k+1}")
    A(f"v_fma_f32 v{Gv}, -v{MB}, v{Z+4}, v{Gv}")
    A(f"v_fma_f32 v{Uv}, -v{MB}, v{Z+6}, v{Uv}")
    A(f"v_mul_f32 v{Gv}, v{Gv}, v{RS}")
    A(f"v_mul_f32 v{Uv}, v{Uv}, v{RS}")
    rbf(Gv, Gv)
    rbf(Uv, Uv)
    T1, T2 = Z + 1, Z + 3
    A(f"v_mul_f32 v{T1}, v{Gv}, v{Gv}")
    A(f"v_mul_f32 v{T1}, v{T1}, v{Gv}")
    A(f"v_mov_b32 v{T2}, v{Gv}")
    A(f"v_fmac_f32 v{T2}, 0x3d372713, v{T1}")
    A(f"v_mul_f32 v{T2}, 0xc0135761, v{T2}")
    A(f"v_exp_f32 v{T2}, v{T2}")
    A(f"v_add_f32 v{T2}, 1.0, v{T2}")
    A(f"v_rcp_f32 v{T2}, v{T2}")
    A(f"v_mul_f32 v{Gv}, v{Gv}, v{T2}")
    rbf(Gv, Gv)
    A(f"v_mul_f32 v{Gv}, v{Gv}, v{Uv}")
    pack_pairs(Gv, Z + 4)
    gemv_publish(vWd, 8, lambda p: (Z + 4, 2 * p))
    stamp(14)
    A("s_branch L_end")
    A.label("L_final0")
    if opt.get("wb", 0):
        A(f"s_cmp_lg_u32 s{sA}, 15")
        A("s_cbranch_scc1 L_end")
        A(f"s_cmp_lg_u32 s{sHW}, 0")
        A("s_cbranch_scc1 L_end")
        A.vm = []
        if opt["wb"] & 1:
            A("buffer_wbl2 sc1")
            A("s_waitcnt vmcnt(0)")
        if opt["wb"] & 2:
            A(f"v_subrev_u32 v{vGE}, 256, v{vGE}")
            poll(Z, vGE, [WS_E, WS_E + 8 * 3584], sT10, 0x3ff, Z + 8, sleep=2)
            A("buffer_wbl2 sc1")
    A("s_branch L_end")

    emit_ool()
    A.label("L_roleM")
    A.vm = []
    A("s_setprio 3")
    A(f"s_lshl_b32 s{sT0}, s{sG}, 5")
    A(f"s_add_u32 s{sRI}, s{sRI}, s{sT0}")
    mk_srd(rW1, 22, 0 if opt.get("noq") else 0x800000)
    XR = vWa + 64
    A(f"v_lshlrev_b32 v{vT}, 5, v{vL}")
    A(f"buffer_load_dwordx4 {v4(XR)}, v{vT}, {srd(rX)}, 0 offen", "x")
    A(f"buffer_load_dwordx4 {v4(XR+4)}, v{vT}, {srd(rX)}, 0 offen offset:16", "x")
    A(f"v_lshrrev_b32 v{vT+1}, 2, v{vL}")
    A(f"v_lshlrev_b32 v{vT+1}, 4, v{vT+1}")
    A(f"s_lshl_b32 s{sT0}, s{sHW}, 8")
    A(f"v_add_u32 v{vT+1}, s{sT0}, v{vT+1}")
    A(f"v_lshlrev_b32 v{vT+2}, 1, v{vT+1}")
    stq = 8 if opt.get("stagq", True) else 0
    A(f"s_and_b32 s{sT2}, s{sRI}, 1")
    A(f"s_mul_i32 s{sT3}, s{sT2}, {2*stq}")
    A(f"s_sub_u32 s{sT0}, 16, s{sT3}")
    A(f"buffer_load_dwordx4 {v4(XR+8)}, v{vT+2}, {srd(rX)}, s{sT3} offen", "x")
    A(f"buffer_load_dwordx4 {v4(XR+12)}, v{vT+2}, {srd(rX)}, s{sT0} offen", "x")
    A(f"v_lshlrev_b32 v{vT+2}, 13, v{vT+1}")
    A(f"v_and_b32 v{vT+3}, 3, v{vL}")
    A(f"v_lshl_add_u32 v{vT+2}, v{vT+3}, 4, v{vT+2}")
    A(f"s_lshl_b32 s{sT1}, s{sRI}, 6")
    A(f"s_mul_i32 s{sT2}, s{sT2}, {stq*8192}")
    A(f"s_sub_u32 s{sT3}, s{sT1}, s{sT2}")
    A(f"s_add_u32 s{sT1}, s{sT1}, s{sT2}")
    for i in range(16):
        A(f"s_add_u32 s{sT0}, s{sT3 if (i & 8) else sT1}, {i*8192}")
        A(f"buffer_load_dwordx4 {v4(vWa+4*i)}, v{vT+2}, {srd(rW1)}, s{sT0} offen{ntq}", f"wq{i//2}")
    if opt.get("qbar_early", True):
        A("s_barrier")
    A.wait_vm("x")
    F = XR + 16
    for i in range(8):
        unpack(F + 2 * i, F + 2 * i + 1, XR + i)
    MB, RD = XR + 32, XR + 33
    ln_stats([F + i for i in range(16)], XR + 34, XR + 35, XR + 36, MB, RD)
    XP = XR + 40
    for p in range(8):
        unpack(XR + 38, XR + 39, XR + 8 + p)
        ln_apply_pair(XP + p, XR + 38, XR + 39, MB, RD)
    for p in range(8):
        A.wait_vm(f"wq{p}")
        for t in range(4):
            a = vWa + (2 * p) * 4 + t
            b = vWa + (2 * p + 1) * 4 + t
            A(f"v_perm_b32 v{Z+8+2*t}, v{b}, v{a}, s{sPLO}")
            A(f"v_perm_b32 v{Z+8+2*t+1}, v{b}, v{a}, s{sPHI}")
        for c in range(8):
            src = "0" if p == 0 else f"v{Z+c}"
            A(f"v_dot2_f32_bf16 v{Z+c}, v{Z+8+c}, v{XP+p}, {src}")
    red8_rows(Z)
    for r in (8, 4):
        for c in range(2):
            A(f"v_add_f32_dpp v{Z+c}, v{Z+c}, v{Z+c} row_ror:{r} {DPPALL}")
    A(f"v_and_b32 v{vT+3}, 3, v{vL}")
    A(f"v_lshlrev_b32 v{vT+3}, 5, v{vT+3}")
    A(f"v_lshl_add_u32 v{vT+3}, v{vGq}, 3, v{vT+3}")
    A(f"s_lshl_b32 s{sT0}, s{sHW}, 7")
    A(f"v_add_u32 v{vT+3}, s{sT0}, v{vT+3}")
    A(f"ds_write_b64 v{vT+3}, {v2(Z)} offset:{L_QPART}")
    A("s_waitcnt lgkmcnt(0)")
    if not opt.get("qbar_early", True):
        A("s_barrier")
    tags()
    lds_arrive(L_CNTQ, sT0)
    A(f"s_cmp_lg_u32 s{sT0}, 3")
    A("s_cbranch_scc1 L_qpub_done")
    A("s_mov_b64 exec, 0xff")
    for w in range(4):
        A(f"ds_read_b128 {v4(Z+4*w)}, v{vOV} offset:{L_QPART+128*w}")
    A("s_waitcnt lgkmcnt(0)")
    for st in (2, 1):
        for w in range(st):
            for c in range(4):
                A(f"v_add_f32 v{Z+4*w+c}, v{Z+4*w+c}, v{Z+4*(w+st)+c}")
    for c in range(4):
        rbf(Z + c, Z + c)
        A(f"v_or_b32 v{Z+c}, s{sT16}, v{Z+c}")
    A(f"s_lshl_b32 s{sT0}, s{sRI}, 7")
    A(f"s_add_u32 s{sT0}, s{sT0}, {WS_Q}")
    A(f"buffer_store_dwordx4 {v4(Z)}, v{vOV}, {srd(rWS)}, s{sT0} offen sc1")
    A("s_mov_b64 exec, -1")
    A.label("L_qpub_done")
    A.vm = []
    stamp(1)
    A("s_setprio 0")
    A(f"s_mul_i32 s{sRI}, s{sX_}, 14")
    A(f"s_add_u32 s{sRI}, s{sRI}, s{sA}")
    A(f"s_sub_u32 s{sRI}, s{sRI}, 16")
    A(f"s_cmp_lt_u32 s{sHW}, 2")
    A(f"s_cselect_b32 s{rW1}, s28, s30")
    A(f"s_cselect_b32 s{rW1+1}, s29, s31")
    A(f"s_and_b32 s{rW1+1}, s{rW1+1}, 0xffff")
    A(f"s_mov_b32 s{rW1+2}, {hex(0 if opt.get('now') else 1024*3584*2)}")
    A(f"s_mov_b32 s{rW1+3}, 0x20000")
    common_addr()
    sKC, sCG = 16, 17
    A(f"s_sub_u32 s{sKC}, s{sA}, 16")
    A(f"v_lshrrev_b32 v{vA2}, 5, v{vL}")
    A(f"v_mul_u32_u24 v{vA2}, {32*7168}, v{vA2}")
    A(f"v_lshl_add_u32 v{vA2}, v{vC4}, 2, v{vA2}")
    A(f"s_mul_i32 s{sKB}, s{sKC}, {64*7168}")
    A(f"s_mul_i32 s{sT2}, s{sX_}, 896")
    A(f"s_add_u32 s{sKB}, s{sKB}, s{sT2}")
    A(f"s_and_b32 s{sT3}, s{sHW}, 1")
    A(f"s_lshl_b32 s{sT2}, s{sT3}, 9")
    A(f"s_add_u32 s{sKB}, s{sKB}, s{sT2}")
    A(f"s_cmp_eq_u32 s{sT3}, 0")
    A(f"s_cselect_b32 s{sMK}, -1, 0x00ffffff")
    A(f"s_mov_b32 s{sMK+1}, s{sMK}")
    gu1 = opt.get("gu1", 0)

    gst = {"done": 0}
    CS, vONE = 200, 208
    for c in range(8):
        A(f"v_mov_b32 v{CS+c}, 0")
    A(f"v_mov_b32 v{vONE}, 0x3f803f80")

    def gu_perm(p):
        for t in range(4):
            a = vWa + 8 + (2 * p) * 4 + t
            b = vWa + 8 + (2 * p + 1) * 4 + t
            A(f"v_perm_b32 v{vWa+(2*p)*4+t}, v{b}, v{a}, s{sPLO}")
            A(f"v_perm_b32 v{vWa+(2*p+1)*4+t}, v{b}, v{a}, s{sPHI}")
        for c in range(8):
            w = vWa + (2 * p + (c & 1)) * 4 + (c >> 1)
            A(f"v_dot2c_f32_bf16 v{CS+c}, v{vONE}, v{w}")
        gst["done"] = p + 1

    def gu_loads(rng, d):
        for i in rng:
            A(f"s_add_u32 s{sT0}, s{sKB}, {i*7168}")
            throttle(d)
            A(f"s_mov_b64 exec, s[{sMK}:{sMK+1}]")
            A(f"buffer_load_dwordx4 {v4(vWa+8+4*i)}, v{vA2}, {srd(rW1)}, s{sT0} offen{ntg}", f"gu{i//2}")
            A("s_mov_b64 exec, -1")
            p = gst["done"]
            if 2 * p + 1 < i and f"gu{p}" not in A.vm:
                gu_perm(p)

    def gu_finish(n):
        while gst["done"] < n // 2:
            A.wait_vm(f"gu{gst['done']}")
            gu_perm(gst["done"])

    gu_loads(range(gu1), opt.get("DG1", 2))
    gu_finish(gu1)
    A(f"s_lshl_b32 s{sPUB}, s{sX_}, 4")
    A(f"s_add_u32 s{sPUB}, s{sPUB}, s{sKC}")
    A(f"s_mul_i32 s{sPUB}, s{sPUB}, 3584")
    A(f"s_lshr_b32 s{sT1}, s{sHW}, 1")
    A(f"s_mul_i32 s{sT1}, s{sT1}, 1792")
    A(f"s_add_u32 s{sPUB}, s{sPUB}, s{sT1}")
    A(f"s_lshl_b32 s{sT1}, s{sT3}, 10")
    A(f"s_add_u32 s{sPUB}, s{sPUB}, s{sT1}")
    A(f"s_add_u32 s{sPUB}, s{sPUB}, {WS_E}")
    A(f"v_and_b32 v{vGE}, 7, v{vL}")
    A(f"v_lshlrev_b32 v{vGE}, 4, v{vGE}")
    A(f"v_lshrrev_b32 v{vT}, 5, v{vL}")
    A(f"v_lshl_add_u32 v{vGE}, v{vT}, 7, v{vGE}")
    A(f"v_bfe_u32 v{vT+1}, v{vL}, 3, 2")
    A(f"v_lshl_add_u32 v{vGA}, v{vT+1}, 8, v{vGE}")
    A(f"s_lshl_b32 s{sT1}, s{sX_}, 15")
    A(f"s_lshl_b32 s{sT2}, s{sKC}, 11")
    A(f"s_add_u32 s{sT1}, s{sT1}, s{sT2}")
    A(f"v_add_u32 v{vGA}, s{sT1}, v{vGA}")
    XH = 212
    A(f"v_lshrrev_b32 v{vT+2}, 1, v{vGE}")
    A(f"s_lshl_b32 s{sT0}, s{sKC}, 7")
    A(f"buffer_load_dwordx2 {v2(XH+4)}, v{vT+2}, {srd(rX)}, s{sT0} offen")
    A(f"s_lshl_b32 s{sCG}, s{sX_}, 12")
    A(f"s_lshl_b32 s{sT2}, s{sKC}, 8")
    A(f"s_add_u32 s{sCG}, s{sCG}, s{sT2}")
    A(f"s_add_u32 s{sCG}, s{sCG}, {WS_H}")
    A(f"s_lshl_b32 s{sT0}, s{sKC}, 1")
    A(f"s_sub_u32 s{sT0}, s{sX_}, s{sT0}")
    A(f"s_and_b32 s22, s{sT0}, 7")
    A(f"s_lshl_b32 s{sRID}, s{sKC}, 1")
    A(f"s_add_u32 s{sRID}, s{sRID}, s22")
    A(f"s_and_b32 s{sRID}, s{sRID}, 31")
    A(f"s_lshl_b32 s{sT0}, s{sHW}, 17")
    A(f"s_lshl_b32 s{sT1}, s{sRID}, 7")
    A(f"s_add_u32 s{sT0}, s{sT0}, s{sT1}")
    A(f"v_add_u32 v{vGB}, s{sT0}, v{vA1}")
    A(f"v_and_b32 v{vLB}, 7, v{vL}")
    A(f"v_lshlrev_b32 v{vOA}, 3, v{vLB}")
    A(f"v_lshlrev_b32 v{vLB}, 4, v{vLB}")
    A("s_waitcnt vmcnt(0)")
    unpack(XH, XH + 1, XH + 4)
    unpack(XH + 2, XH + 3, XH + 5)
    zero_acc()
    service("M")
    read_loc()
    pretouch(WS_PT + [(vA2, rW1, (sKB, i * 7168)) for i in (0, 8, 16, 24, 31)])
    g0 = opt.get("g0", 0)
    if g0:
        lds_wait(L_FLAGW, 4, opt.get("wcnt", 4))
        gu_loads(range(gu1, gu1 + g0), 0)
        gu1 += g0
    ga = opt.get("gu_after", "o")
    if ga == "flag":
        lds_wait(L_FLAGW, 4, opt.get("wcnt", 4))
    elif ga == "o":
        lds_wait(L_CNTO, 4, 4)
    else:
        lds_wait(L_CNTP, 4, 4)
    gu2 = gu1
    if ga == "g":
        gu2 = opt.get("gu2", gu1)
        gu_loads(range(gu1, gu2), opt.get("DLG", 12))
        A(f"s_cmp_lg_u32 s{sHW}, 0")
        A("s_cbranch_scc1 L_gwait")
        svm = list(A.vm)
        A(f"v_lshlrev_b32 v{vT+4}, 12, v{vL}")
        A(f"s_lshl_b32 s{sT1}, s{sG}, 18")
        A(f"s_lshl_b32 s{sT2}, s{sC}, 6")
        A(f"s_add_u32 s{sT1}, s{sT1}, s{sT2}")
        A(f"v_add_u32 v{vT+4}, s{sT1}, v{vT+4}")
        poll(Z, vT + 4, [WS_A], sT10, 0x3ff, Z + 8, sleep=opt.get("sleepG", 6))
        lds_setflag(L_FLAGG)
        A.label("L_gwait")
        A.vm = svm
        lds_wait(L_FLAGG, 2)
    stamp(3)
    if "d" in opt.get("pt", ""):
        A("s_cmp_ge_u32 s22, 2")
        A("s_cbranch_scc1 L_nopt")
        svm = list(A.vm)
        for i in range(4):
            A(f"s_mov_b32 s{sT0}, {hex(WS_D + i * 32768)}")
            A(f"buffer_load_dwordx4 {v4(220+4*i)}, v{vGB}, {srd(rWS)}, s{sT0} offen sc1")
        A.label("L_nopt")
        A.vm = svm
    gu_loads(range(gu2, 32), opt.get("DLG", 12))
    stamp(4)
    A(f"s_add_u32 s{sKB}, s{sPUB}, {WS_EF - WS_E}")
    A(f"s_add_u32 s20, s{sPUB}, {WS_C - WS_E}")
    A(f"s_add_u32 s21, s{sKB}, {WS_C - WS_E}")

    def cs_final():
        for c in range(4):
            A(f"v_permlane32_swap_b32 v{CS+c}, v{CS+c+4}")
        for c in range(0, 4, 2):
            A(f"v_pk_add_f32 {v2(CS+c)}, {v2(CS+c)}, {v2(CS+c+4)}")
        for c in range(4):
            tag10(CS + c)

    bpipe = opt.get("bpipe", True)
    if bpipe:
        for i, so in enumerate([WS_B2, WS_B2 + 1024]):
            A(f"s_mov_b32 s{sT0}, {hex(so)}")
            A(f"buffer_load_dwordx4 {v4(Z+4*i)}, v{vGA}, {srd(rWS)}, s{sT0} offen sc1")
    gu_finish(32)
    cs_final()
    if opt.get("csafe", False):
        A(f"s_mov_b64 exec, s[{sMK}:{sMK+1}]")
        A(f"buffer_store_dwordx4 {v4(CS)}, v{vA3}, {srd(rWS)}, s20 offen sc1")
        A("s_mov_b64 exec, -1")
        A("s_waitcnt vmcnt(1)")
        A("s_branch L_bentry2")
    stamp(6)
    if bpipe:
        A("s_branch L_bentry")
    poll(Z, vGA, [WS_B2, WS_B2 + 1024], sT10, 0x3ff, Z + 8, entry="L_bentry" if bpipe else None)
    stamp(13)
    for c in range(0, 4, 2):
        A(f"v_pk_add_f32 {v2(Z+c)}, {v2(Z+c)}, {v2(Z+4+c)}")
    for c in range(4):
        A(f"v_add_f32_dpp v{Z+c}, v{Z+c}, v{Z+c} row_ror:8 {DPPALL}")
    for c in range(4):
        A(f"v_mov_b32 v{Z+4+c}, v{Z+c}")
    for c in range(4):
        A(f"v_permlane16_swap_b32 v{Z+4+c}, v{Z+c}")
    for c in range(0, 4, 2):
        A(f"v_pk_add_f32 {v2(Z+c)}, {v2(Z+c)}, {v2(Z+4+c)}")
    A(f"v_cvt_pk_bf16_f32 v{Z+4}, v{Z}, v{Z+1}")
    A(f"v_cvt_pk_bf16_f32 v{Z+5}, v{Z+2}, v{Z+3}")
    unpack(Z, Z + 1, Z + 4)
    unpack(Z + 2, Z + 3, Z + 5)
    for c in range(0, 4, 2):
        A(f"v_pk_add_f32 {v2(Z+c)}, {v2(Z+c)}, {v2(XH+c)}")
    A(f"v_cvt_pk_bf16_f32 v{Z+12}, v{Z}, v{Z+1}")
    A(f"v_cvt_pk_bf16_f32 v{Z+13}, v{Z+2}, v{Z+3}")
    A(f"s_cmp_lg_u32 s{sHW}, 3")
    A("s_cbranch_scc1 L_hrep")
    A(f"v_mov_b32 v{Z+8}, s{sT16}")
    for k in range(2):
        A(f"v_lshl_or_b32 v{Z+2*k}, v{Z+12+k}, 16, v{Z+8}")
        A(f"v_and_or_b32 v{Z+2*k+1}, v{Z+12+k}, s{sM16}, v{Z+8}")
    A("s_mov_b32 exec_lo, 0xff")
    A("s_mov_b32 exec_hi, 0xff")
    store_loc(Z, vGE, sCG)
    A("s_mov_b64 exec, -1")
    A.label("L_hrep")
    gemv_publish(vWa, 16, lambda p: (Z + 12 + (p & 1), p >> 1), True)
    stamp(12)
    A("s_cmp_ge_u32 s22, 2")
    A("s_cbranch_scc1 L_end")
    HH = XH
    unpack(HH, HH + 1, Z + 12)
    unpack(HH + 2, HH + 3, Z + 13)
    A("s_cmp_eq_u32 s22, 0")
    A("s_cselect_b32 s24, 0xff, 0")
    A("s_cselect_b32 s25, 0, 0xff")
    if opt.get("dback", False):
        A("s_waitcnt vmcnt(0)")
    poll(Z, vGB, [WS_D + i * 32768 for i in range(4)], sT10, 0x3ff, Z + 16, {1: 0xffff, 3: 0xffff})
    for (d_, s_) in ((0, 4), (8, 12), (0, 8)):
        for c in range(0, 4, 2):
            A(f"v_pk_add_f32 {v2(Z+d_+c)}, {v2(Z+d_+c)}, {v2(Z+s_+c)}")
    red4_to_lds(vLW, 1536)
    A(f"s_cmp_lg_u32 s{sHW}, 0")
    A("s_cbranch_scc1 L_end")
    for w in range(4):
        A(f"ds_read_b128 {v4(Z+4*w)}, v{vLB} offset:{L_GP+1536+128*w}")
    A(f"s_lshl_b32 s{sT0}, s{sRID}, 6")
    A("s_waitcnt lgkmcnt(0)")
    for (d_, s_) in ((0, 4), (8, 12), (0, 8)):
        for c in range(0, 4, 2):
            A(f"v_pk_add_f32 {v2(Z+d_+c)}, {v2(Z+d_+c)}, {v2(Z+s_+c)}")
    A(f"v_cvt_pk_bf16_f32 v{Z+4}, v{Z}, v{Z+1}")
    A(f"v_cvt_pk_bf16_f32 v{Z+5}, v{Z+2}, v{Z+3}")
    unpack(Z, Z + 1, Z + 4)
    unpack(Z + 2, Z + 3, Z + 5)
    for c in range(0, 4, 2):
        A(f"v_pk_add_f32 {v2(Z+c)}, {v2(Z+c)}, {v2(HH+c)}")
    A(f"v_cvt_pk_bf16_f32 v{Z+4}, v{Z}, v{Z+1}")
    A(f"v_cvt_pk_bf16_f32 v{Z+5}, v{Z+2}, v{Z+3}")
    A("s_mov_b64 exec, s[24:25]")
    A(f"buffer_store_dwordx2 {v2(Z+4)}, v{vOA}, {srd(rOUT)}, s{sT0} offen{pol('pout', '')}")
    A("s_mov_b64 exec, -1")
    stamp(15)
    A(f"s_cmp_lg_u32 s{sRID}, 0")
    A("s_cbranch_scc1 L_end")
    A(f"v_mov_b32 v{Z}, s{sE}")
    A("s_mov_b64 exec, 1")
    A(f"buffer_store_dword v{Z}, v{vZ}, {srd(rWS)}, 0 offen offset:{WS_EPOCH} sc1")
    A("s_mov_b64 exec, -1")

    A("s_branch L_end")
    emit_ool()
    A.label("L_end")
    if stamps:
        A("s_mov_b64 exec, 1")
        A(f"s_lshl_b32 s{sT0}, s2, 3")
        A(f"s_add_u32 s{sT0}, s{sT0}, s{sW}")
        A(f"s_lshl_b32 s{sT0}, s{sT0}, 6")
        A(f"s_add_u32 s{sT0}, s{sT0}, {WS_STAMP}")
        for q in range(4):
            for k in range(4):
                A(f"v_mov_b32 v{vT+k}, s{sSTAMP+4*q+k}")
            A(f"buffer_store_dwordx4 {v4(vT)}, v{vZ}, {srd(rWS)}, s{sT0} offen offset:{16*q}")
            A("s_nop 2")
    A.label("L_exit")
    A("s_endpgm")
    A.raw('.section .rodata,"a"')
    A.raw(".p2align 6")
    A.raw(f".amdhsa_kernel {NAME}_kernel")
    A.raw("  .amdhsa_next_free_vgpr 256")
    A.raw("  .amdhsa_next_free_sgpr 102")
    A.raw("  .amdhsa_accum_offset 256")
    A.raw("  .amdhsa_group_segment_fixed_size 0")
    A.raw("  .amdhsa_kernarg_size 96")
    A.raw("  .amdhsa_user_sgpr_count 2")
    A.raw("  .amdhsa_user_sgpr_kernarg_segment_ptr 1")
    A.raw("  .amdhsa_system_sgpr_workgroup_id_x 1")
    A.raw("  .amdhsa_float_denorm_mode_32 3")
    A.raw(".end_amdhsa_kernel")
    return A.text()


if __name__ == "__main__":
    import json
    opt = json.loads(sys.argv[2]) if len(sys.argv) > 2 else {}
    out = sys.argv[1] if len(sys.argv) > 1 else "k.s"
    open(out, "w").write(gen(opt))
```
